```python
import torch

def _softmax(x, axis=-1):
    return torch.softmax(x, dim=axis)

def _gelu(x):
    return torch.nn.functional.gelu(x, approximate='tanh')

def _silu(x):
    return torch.nn.functional.silu(x)

def _sigmoid(x):
    return torch.sigmoid(x)

def _layernorm(x, axis=-1, eps=1e-05):
    m = x.mean(dim=axis, keepdim=True)
    v = x.var(dim=axis, keepdim=True, unbiased=False)
    return (x - m) / torch.sqrt(v + eps)

def _scatter_add(tgt, idx, src, axis=0):
    return tgt.clone().index_add_(axis, idx, src)

def _segment_sum(src, seg, n):
    out = torch.zeros((n,) + src.shape[1:], dtype=src.dtype)
    return out.index_add_(0, seg, src)

def _pad(x, pw):
    flat = tuple((v for pair in reversed(pw) for v in pair))
    return torch.nn.functional.pad(x, flat)
kernel_name = 'standalone__tree_speculative_verify_tree_attention_over_candidate_token_tree__decode'

def setup_inputs():

    _w = lambda a: (lambda t: t.to(torch.bfloat16) if t.is_floating_point() else t)(torch.as_tensor(a))
    B, Hq, Hkv, T, C, D = (2, 32, 8, 1, 32768, 128)
    tree_mask = torch.zeros((B, T, T), dtype=float)
    for b in range(B):
        parent = torch.zeros(T, dtype=torch.int64)
        for i in range(1, T):
            parent[i] = int(torch.randint(0, i, (1,)).item())
        for i in range(T):
            j = i
            tree_mask[b, i, j] = 1.0
            while j > 0:
                j = parent[j]
                tree_mask[b, i, j] = 1.0
    return {'q': _w((lambda *s: torch.randn(*s, dtype=torch.bfloat16) * 0.8)(B, Hq, T, D)), 'k_cache': _w((lambda *s: torch.randn(*s, dtype=torch.bfloat16) * 0.8)(B, Hkv, C, D)), 'v_cache': _w((lambda *s: torch.randn(*s, dtype=torch.bfloat16) * 0.05)(B, Hkv, C, D)), 'k_tree': _w((lambda *s: torch.randn(*s, dtype=torch.bfloat16) * 0.8)(B, Hkv, T, D)), 'v_tree': _w((lambda *s: torch.randn(*s, dtype=torch.bfloat16) * 0.05)(B, Hkv, T, D)), 'tree_mask': _w(tree_mask)}

def reference(q, k_cache, v_cache, k_tree, v_tree, tree_mask):
    B, Hq, T, D = q.shape
    Hkv, C = (k_cache.shape[1], k_cache.shape[2])
    rep = Hq // Hkv
    kc = (lambda x, n, axis: torch.repeat_interleave(x, n, dim=axis))(k_cache, rep, axis=1)
    vc = (lambda x, n, axis: torch.repeat_interleave(x, n, dim=axis))(v_cache, rep, axis=1)
    kt = (lambda x, n, axis: torch.repeat_interleave(x, n, dim=axis))(k_tree, rep, axis=1)
    vt = (lambda x, n, axis: torch.repeat_interleave(x, n, dim=axis))(v_tree, rep, axis=1)
    k = torch.concatenate([kc, kt], axis=2)
    v = torch.concatenate([vc, vt], axis=2)
    scale = D ** (-0.5)
    scores = torch.einsum('bhqd,bhkd->bhqk', q, k) * scale
    ctx_mask = torch.ones((B, 1, T, C), dtype=scores.dtype)
    tm = tree_mask[:, None, :, :].clone()
    full_mask = torch.concatenate([ctx_mask, tm], axis=-1)
    scores = scores + (1.0 - full_mask) * -1000000000.0
    p = _softmax(scores, axis=-1)
    return torch.einsum('bhqk,bhkd->bhqd', p, v)
```

```python
import re

TRANS = ("v_exp_f32", "v_log_f32", "v_rcp_f32", "v_rsq_f32", "v_sqrt_f32")
RMW = ("v_fmac_f32", "v_fmac_f32_dpp")
_REG = re.compile(r"(?<![\w.])([vs])(?:(\d+)|\[(\d+):(\d+)\])(?![\w])")


def regs(op):
    out = set()
    op = op.strip()
    if op in ("vcc",):
        return {("s", "vcc")}
    for m in _REG.finditer(op):
        if m.group(2) is not None:
            out.add((m.group(1), int(m.group(2))))
        else:
            for i in range(int(m.group(3)), int(m.group(4)) + 1):
                out.add((m.group(1), i))
    return out


def split_ops(rest):
    ops, depth, cur = [], 0, ""
    for ch in rest:
        if ch == "[":
            depth += 1
        if ch == "]":
            depth -= 1
        if ch == "," and depth == 0:
            ops.append(cur.strip())
            cur = ""
        else:
            cur += ch
    if cur.strip():
        ops.append(cur.strip())
    return ops


class Ins:
    def __init__(self, text):
        self.text = text
        body = text.split(";")[0].strip()
        self.label = body.endswith(":")
        self.directive = body.startswith(".") or body == ""
        self.kind = None
        self.w, self.r = set(), set()
        self.a = self.b = self.c = set()
        self.states = 0
        self.dpp = self.trans = self.perm = self.lane = False
        self.wide_store = False
        self.data = set()
        if self.label or self.directive:
            return
        parts = body.split(None, 1)
        self.op = op = parts[0]
        rest = parts[1] if len(parts) > 1 else ""
        ops = split_ops(rest)
        self.states = 1
        if op == "s_nop":
            self.states = int(ops[0], 0) + 1
            self.kind = "salu"
        elif op.startswith("s_"):
            self.kind = "salu"
        elif op.startswith("v_mfma"):
            self.kind = "mfma"
            self.w = regs(ops[0])
            self.a, self.b, self.c = regs(ops[1]), regs(ops[2]), regs(ops[3])
            self.r = self.a | self.b | self.c
        elif op.startswith("v_"):
            self.kind = "valu"
            last = ops[-1].split()
            mods = last[1:]
            ops[-1] = last[0]
            self.dpp = op.endswith("_dpp")
            self.trans = op.replace("_e32", "").replace("_e64", "") in TRANS
            self.perm = op.startswith("v_permlane")
            self.lane = op.startswith(("v_readlane", "v_readfirstlane"))
            self.w = regs(ops[0])
            srcs = ops[1:]
            if "_co_" in op:
                self.w |= regs(ops[1])
                srcs = ops[2:]
            for s in srcs:
                self.r |= regs(s)
            if self.perm:
                self.w |= regs(ops[1])
                self.r |= regs(ops[0])
            if op in RMW or self.dpp:
                self.r |= regs(ops[0])
        elif op in ("buffer_wbl2", "buffer_inv"):
            self.kind = "vmem"
        elif op.startswith(("buffer_", "global_")):
            self.kind = "vmem"
            ops[-1] = ops[-1].split()[0]
            lds = " lds" in body
            if "load" in op and not lds:
                self.w = regs(ops[0])
                for s in ops[1:]:
                    self.r |= regs(s)
            else:
                for s in ops:
                    self.r |= regs(s)
                if "atomic" in op and " sc0" in body:
                    self.w = regs(ops[0])
                if "store" in op and ("x4" in op or "x3" in op):
                    self.wide_store = True
                    self.data = regs(ops[0] if op.startswith("buffer_") else ops[1])
        elif op.startswith("ds_"):
            self.kind = "ds"
            ops[-1] = ops[-1].split()[0]
            if op.startswith(("ds_read", "ds_bpermute", "ds_swizzle")):
                self.w = regs(ops[0])
                for s in ops[1:]:
                    self.r |= regs(s)
            else:
                for s in ops:
                    self.r |= regs(s)
        else:
            raise ValueError("unknown instruction: " + text)


def vonly(s):
    return {x for x in s if x[0] == "v"}


def sonly(s):
    return {x for x in s if x[0] == "s"}


def need(prev, cur):
    n = 0
    if prev.kind == "valu":
        pw, ps = vonly(prev.w), sonly(prev.w)
        if cur.kind == "mfma" and pw & cur.r:
            n = max(n, 2)
        if cur.kind == "valu":
            if cur.dpp and pw & cur.r:
                n = max(n, 2)
            if cur.perm and pw & cur.r:
                n = max(n, 2)
            if cur.lane and pw & cur.r:
                n = max(n, 1)
            if prev.trans and pw & cur.r:
                n = max(n, 1)
            if ps & cur.r:
                n = max(n, 4 if cur.lane else 2)
        if cur.kind == "vmem" and ps & cur.r:
            n = max(n, 5)
        if cur.kind in ("vmem", "ds") and prev.trans and pw & cur.r:
            n = max(n, 1)
    if prev.kind == "mfma":
        if cur.kind == "mfma":
            if prev.w & (cur.a | cur.b):
                n = max(n, 8)
            if prev.w & cur.c:
                n = max(n, 0 if (prev.w == cur.c and prev.op == cur.op) else 6)
        elif cur.kind in ("valu", "vmem", "ds"):
            if prev.w & (cur.r | cur.w):
                n = max(n, 8)
            if cur.kind == "valu" and vonly(prev.c) & cur.w:
                n = max(n, 3)
    if prev.kind == "vmem" and prev.wide_store and prev.data & cur.w:
        n = max(n, 2)
    return n


class Asm:
    def __init__(self):
        self.ins = []

    def __call__(self, text):
        for line in text.strip("\n").split("\n"):
            line = line.strip()
            if line:
                self._add(Ins(line))

    def _short(self, hist, cur):
        short, dist = 0, 0
        for prev in reversed(hist):
            if dist >= 12:
                break
            if prev.kind:
                short = max(short, need(prev, cur) - dist)
                dist += prev.states
        return short

    def _add(self, cur):
        if cur.kind:
            short = self._short(self.ins, cur)
            if short > 0:
                self.ins.append(Ins("s_nop %d" % (short - 1)))
        self.ins.append(cur)

    def mark(self):
        return len(self.ins)

    def loop_check(self, start, end=None):
        body = self.ins[start:end]
        hist = list(body)
        for cur in body:
            if cur.kind:
                assert self._short(hist, cur) <= 0, "back-edge hazard at " + cur.text
            hist.append(cur)

    def edge_check(self, src_end, dst_start):
        hist = list(self.ins[:src_end])
        for cur in self.ins[dst_start:dst_start + 16]:
            if cur.kind:
                assert self._short(hist, cur) <= 0, "jump hazard at " + cur.text
            hist.append(cur)

    def text(self):
        out = []
        for i in self.ins:
            out.append(i.text if (i.label or i.directive) else "    " + i.text)
        return "\n".join(out) + "\n"

    def max_v(self):
        m = 0
        for i in self.ins:
            for k, n in i.w | i.r:
                if k == "v":
                    m = max(m, n)
        return m + 1
```

```python
import math
import struct
import sys

from asmlib import Asm

NAME = "standalone__tree_speculative_verify_tree_attention_over_candidate_token_tree__decode"
HEADER = open("cdna_kernels/%s.s.ref" % NAME).read().split("; Override launch")[0]


def f32(x):
    return "0x%08x" % struct.unpack("<I", struct.pack("<f", x))[0]


def vr(a, n):
    return "v[%d:%d]" % (a, a + n - 1)


def gen(W=8, N=8, mapping="ilv", wgmap="xcd", pol="nt", stamp=0):
    S = 16
    NWG = 16 * S
    PAIR = 1 << 23
    TILE = N * 1024
    T = PAIR // (TILE * S * W)
    assert T >= 1 and N % 2 == 0
    C = 128 ** -0.5 * math.log2(math.e)
    pol = pol.replace("+", " ").replace("none", "")
    a = Asm()

    sW, sP, sS, sOff, sCnt, sC, sT0, sT1, sOwn, sMask = (
        "s3", "s6", "s7", "s20", "s21", "s22", "s23", "s32", "s33", "s34")
    nv = [1]

    def alloc(n, al=1):
        nv[0] = (nv[0] + al - 1) // al * al
        r = nv[0]
        nv[0] += n
        return r

    NO = (N + 3) // 4
    vLane = alloc(1)
    vKoff = alloc(NO)
    vVoff = alloc(NO)
    vMX, vMY = alloc(1), alloc(1)
    vM, vL, vAl, vNmc, vA, vB = (alloc(1) for _ in range(6))
    vQ = alloc(4, 4)
    vO = alloc(8, 4)
    vT = alloc(N // 2)
    NXY = 4
    vXY = alloc(2 * NXY, 2)
    ND = 4
    vD = alloc(4 * ND, 4)
    vK = alloc(4 * N, 4)
    vV = alloc(4 * N, 4)
    vBuf = vD

    ldsM = W * 2048
    ldsL = ldsM + 16 * W
    LDS = ldsL + 16 * W

    def kload(j):
        a("buffer_load_dwordx4 %s, v%d, s[24:27], %s offen offset:%d %s"
          % (vr(vK + 4 * j, 4), vKoff + j // 4, sOff, (j % 4) * 1024, pol))

    def vload(j):
        a("buffer_load_dwordx4 %s, v%d, s[28:31], %s offen offset:%d %s"
          % (vr(vV + 4 * j, 4), vVoff + j // 4, sOff, (j % 4) * 1024, pol))

    DPPF = "row_mask:0xf bank_mask:0xf"

    def fold_a(t, d):
        a("v_add_f32_dpp v%d, v%d, v%d row_ror:12 row_mask:0xf bank_mask:0x1" % (t, d + 1, d))
        a("v_add_f32_dpp v%d, v%d, v%d row_ror:12 row_mask:0xf bank_mask:0x4" % (t, d + 3, d + 2))

    def fold_b(t, d):
        a("v_add_f32_dpp v%d, v%d, v%d row_ror:4 row_mask:0xf bank_mask:0x2" % (t, d, d + 1))
        a("v_add_f32_dpp v%d, v%d, v%d row_ror:4 row_mask:0xf bank_mask:0x8" % (t, d + 2, d + 3))

    def fold_c(t):
        a("v_add_f32_dpp v%d, v%d, v%d row_ror:8 %s" % (t, t, t, DPPF))

    def rows_reduce(op, x, tmp, dst=None):
        dst = x if dst is None else dst
        a("v_mov_b32 v%d, v%d" % (tmp, x))
        a("v_permlane16_swap_b32 v%d, v%d" % (x, tmp))
        a("%s v%d, v%d, v%d" % (op, x, x, tmp))
        a("v_mov_b32 v%d, v%d" % (tmp, x))
        a("v_permlane32_swap_b32 v%d, v%d" % (x, tmp))
        a("%s v%d, v%d, v%d" % (op, dst, x, tmp))

    def stamp_at(i):
        if stamp:
            a("s_memrealtime s[%d:%d]" % (40 + 2 * i, 41 + 2 * i))

    a("%s_kernel:" % NAME)
    a("s_cmp_ge_u32 s2, %d" % NWG)
    a("s_cbranch_scc1 L_end")
    a("s_load_dwordx2 s[24:25], s[0:1], 8")
    a("s_load_dwordx2 s[28:29], s[0:1], 16")
    a("s_load_dwordx2 s[4:5], s[0:1], 0")
    a("s_load_dwordx4 s[8:11], s[0:1], 24")
    a("s_load_dwordx8 s[12:19], s[0:1], 40")
    stamp_at(0)
    a("v_lshrrev_b32 v%d, 6, v0" % vA)
    a("v_and_b32 v%d, 63, v0" % vLane)
    a("v_readfirstlane_b32 %s, v%d" % (sW, vA))
    if wgmap == "xcd":
        a("s_and_b32 %s, s2, 15" % sP)
        a("s_lshr_b32 %s, s2, 4" % sS)
    else:
        a("s_lshr_b32 %s, s2, 4" % sP)
        a("s_and_b32 %s, s2, 15" % sS)
    a("s_mov_b32 s27, 0x00020000")
    a("s_mov_b32 s31, 0x00020000")
    a("s_mov_b32 %s, %s" % (sC, f32(C)))
    a("v_lshrrev_b32 v%d, 4, v%d" % (vA, vLane))
    a("v_lshlrev_b32 v%d, 6, v%d" % (vA, vA))
    a("v_and_b32 v%d, 3, v%d" % (vB, vLane))
    a("v_bfe_u32 v%d, v%d, 2, 2" % (vAl, vLane))
    a("v_lshl_add_u32 v%d, v%d, 4, v%d" % (vNmc, vB, vA))
    a("v_lshl_add_u32 v%d, v%d, 8, v%d" % (vKoff, vAl, vNmc))
    a("v_lshl_add_u32 v%d, v%d, 8, v%d" % (vA, vB, vA))
    a("v_lshl_add_u32 v%d, v%d, 4, v%d" % (vA, vAl, vA))
    a("v_lshlrev_b32 v%d, 4, v%d" % (vVoff, vLane))
    for q in range(1, NO):
        a("v_add_u32 v%d, %d, v%d" % (vKoff + q, q * 4096, vKoff))
        a("v_add_u32 v%d, %d, v%d" % (vVoff + q, q * 4096, vVoff))
    a("s_lshl_b32 %s, %s, 10" % (sT0, sP))
    a("s_lshl_b32 %s, %s, 8" % (sT1, sP))
    a("v_add_u32 v%d, %s, v%d" % (vA, sT0, vA))
    a("v_add_u32 v%d, %s, v%d" % (vNmc, sT1, vNmc))
    a("v_and_b32 v%d, 0xf0, v%d" % (vB, vVoff))
    a("v_add_u32 v%d, %s, v%d" % (vB, sT1, vB))
    a("s_lshl_b32 %s, %s, 23" % (sT0, sP))
    if mapping == "ilv":
        stride = TILE * S * W
        a("s_mul_i32 %s, %s, %d" % (sOff, sS, W))
        a("s_add_u32 %s, %s, %s" % (sOff, sOff, sW))
        a("s_mul_i32 %s, %s, %d" % (sOff, sOff, TILE))
        a("s_add_u32 %s, %s, %s" % (sOff, sOff, sT0))
        a("s_add_u32 s26, %s, %d" % (sT0, PAIR))
    elif mapping == "wg":
        stride = TILE * W
        a("s_mul_i32 %s, %s, %d" % (sT1, sS, PAIR // S))
        a("s_add_u32 %s, %s, %s" % (sT0, sT0, sT1))
        a("s_mul_i32 %s, %s, %d" % (sOff, sW, TILE))
        a("s_add_u32 %s, %s, %s" % (sOff, sOff, sT0))
        a("s_add_u32 s26, %s, %d" % (sT0, PAIR // S))
    elif mapping == "wave":
        stride = TILE
        a("s_mul_i32 %s, %s, %d" % (sOff, sS, W))
        a("s_add_u32 %s, %s, %s" % (sOff, sOff, sW))
        a("s_mul_i32 %s, %s, %d" % (sOff, sOff, TILE * T))
        a("s_add_u32 %s, %s, %s" % (sOff, sOff, sT0))
        a("s_add_u32 s26, %s, %d" % (sOff, TILE * T))
    a("s_mov_b32 s30, s26")
    a("s_waitcnt lgkmcnt(0)")
    a("global_load_dwordx4 %s, v%d, s[4:5]" % (vr(vQ, 4), vA))
    a("global_load_dwordx4 %s, v%d, s[8:9]" % (vr(vD + 4, 4), vNmc))
    a("global_load_dwordx4 %s, v%d, s[10:11]" % (vr(vD + 8, 4), vB))
    a("s_load_dword %s, s[12:13], 0" % sMask)
    for j in range(N):
        kload(j)
    for j in range(N):
        vload(j)
    a("s_add_u32 %s, %s, %d" % (sOff, sOff, stride))
    a("s_mov_b32 %s, %d" % (sCnt, T))
    a("v_and_b32 v%d, 8, v%d" % (vA, vLane))
    a("v_lshlrev_b32 v%d, 1, v%d" % (vA, vA))
    a("v_mov_b32 v%d, 0xffff" % vB)
    a("v_lshlrev_b32 v%d, v%d, v%d" % (vA, vA, vB))
    a("v_bfe_i32 v%d, v%d, 2, 1" % (vB, vLane))
    a("v_and_b32 v%d, v%d, v%d" % (vMY, vA, vB))
    a("v_xor_b32 v%d, v%d, v%d" % (vMX, vA, vMY))
    a("s_or_b32 %s, %s, %s" % (sT0, sS, sW))
    a("s_cmp_eq_u32 %s, 0" % sT0)
    a("s_cselect_b32 %s, 0x3f803f80, 0" % sOwn)
    a("v_mov_b32 v%d, %s" % (vA, sOwn))
    a("v_cmp_gt_u32 vcc, 16, v%d" % vLane)
    a("v_cndmask_b32 v%d, 0, v%d, vcc" % (vA, vA))
    a("v_not_b32 v%d, v%d" % (vB, vB))
    a("v_and_b32 v%d, 0xffff0000, v%d" % (vB, vB))
    a("v_and_b32 v%d, v%d, v%d" % (vL, vA, vB))
    a("v_and_b32 v%d, v%d, v%d" % (vXY, vA, vMX))
    a("v_and_b32 v%d, v%d, v%d" % (vXY + 1, vA, vMY))
    a("s_lshr_b32 %s, %s, 3" % (sT0, sP))
    a("s_lshl_b32 %s, %s, 4" % (sT0, sT0))
    a("s_waitcnt lgkmcnt(0)")
    a("s_lshr_b32 %s, %s, %s" % (sMask, sMask, sT0))
    a("s_lshl_b32 %s, %s, 16" % (sMask, sMask))
    a("v_mov_b32 v%d, %s" % (vA, sMask))
    a("v_sub_f32 v%d, 1.0, v%d" % (vA, vA))
    a("v_mul_f32 v%d, %s, v%d" % (vA, f32(-1e9 * 128 ** 0.5), vA))
    a("s_waitcnt vmcnt(%d)" % (2 * N))
    a("v_mfma_f32_16x16x32_bf16 %s, %s, %s, 0" % (vr(vD, 4), vr(vD + 4, 4), vr(vQ, 4)))
    a("v_mfma_f32_16x16x16_bf16 %s, %s, %s, 0" % (vr(vO, 4), vr(vXY, 2), vr(vD + 8, 2)))
    a("v_mfma_f32_16x16x16_bf16 %s, %s, %s, 0" % (vr(vO + 4, 4), vr(vXY, 2), vr(vD + 10, 2)))
    fold_a(vM, vD)
    fold_b(vM, vD)
    fold_c(vM)
    a("v_add_f32 v%d, v%d, v%d" % (vM, vM, vA))
    stamp_at(1)

    a("L_loop:")
    l0 = a.mark()
    LAG = 2

    def fold(j):
        d = vD + 4 * (j % ND)
        (fold_a if j % 2 == 0 else fold_b)(vT + j // 2, d)

    for j in range(N):
        a("s_waitcnt vmcnt(%d)" % (2 * N - 1))
        a("v_mfma_f32_16x16x32_bf16 %s, %s, %s, 0"
          % (vr(vD + 4 * (j % ND), 4), vr(vK + 4 * j, 4), vr(vQ, 4)))
        kload(j)
        if j >= LAG:
            fold(j - LAG)
        if j >= LAG + 2 and (j - LAG) % 2 == 0:
            fold_c(vT + (j - LAG) // 2 - 1)
    for j in range(N - LAG, N):
        fold(j)
        if j >= 2 and j % 2 == 0:
            fold_c(vT + j // 2 - 1)
    fold_c(vT + N // 2 - 1)
    srcs = [vT + i for i in range(N // 2)]
    cur = vM
    while srcs:
        if len(srcs) >= 2:
            a("v_max3_f32 v%d, v%d, v%d, v%d" % (vA, cur, srcs[0], srcs[1]))
            srcs = srcs[2:]
        else:
            a("v_max_f32 v%d, v%d, v%d" % (vA, cur, srcs[0]))
            srcs = srcs[1:]
        cur = vA
    a("v_max_f32_dpp v%d, v%d, v%d row_ror:4 %s" % (vA, vA, vA, DPPF))
    rows_reduce("v_max_f32", vA, vB)
    a("v_sub_f32 v%d, v%d, v%d" % (vAl, vM, vA))
    a("v_mul_f32 v%d, %s, v%d" % (vNmc, f32(-C), vA))
    a("v_mul_f32 v%d, %s, v%d" % (vAl, sC, vAl))
    a("v_mov_b32 v%d, v%d" % (vM, vA))
    a("v_exp_f32 v%d, v%d" % (vAl, vAl))
    for i in range(N // 2):
        a("v_fma_f32 v%d, v%d, %s, v%d" % (vT + i, vT + i, sC, vNmc))
    for i in range(N // 2):
        a("v_exp_f32 v%d, v%d" % (vT + i, vT + i))
    for r in range(8):
        h = r % 4
        a("v_mul_f32_dpp v%d, v%d, v%d quad_perm:[%d,%d,%d,%d] %s"
          % (vO + r, vAl, vO + r, h, h, h, h, DPPF))
    a("v_fma_f32 v%d, v%d, v%d, v%d" % (vL, vL, vAl, vT))
    for i in range(1, N // 2):
        a("v_add_f32 v%d, v%d, v%d" % (vL, vL, vT + i))
    for i in range(N // 2):
        a("v_cvt_pk_bf16_f32 v%d, v%d, v%d" % (vT + i, vT + i, vT + i))

    def mk_xy(j):
        x = vXY + 2 * (j % NXY)
        p = vT + j // 2
        if j % 2 == 0:
            a("v_and_b32 v%d, v%d, v%d" % (x, p, vMX))
            a("v_and_b32_dpp v%d, v%d, v%d row_ror:4 %s" % (x + 1, p, vMY, DPPF))
        else:
            a("v_and_b32_dpp v%d, v%d, v%d row_ror:4 %s" % (x, p, vMX, DPPF))
            a("v_and_b32 v%d, v%d, v%d" % (x + 1, p, vMY))

    mk_xy(0)
    for j in range(N):
        if j + 1 < N:
            mk_xy(j + 1)
        x = vXY + 2 * (j % NXY)
        a("s_waitcnt vmcnt(%d)" % (2 * N - 1))
        a("v_mfma_f32_16x16x16_bf16 %s, %s, %s, %s"
          % (vr(vO, 4), vr(x, 2), vr(vV + 4 * j, 2), vr(vO, 4)))
        a("v_mfma_f32_16x16x16_bf16 %s, %s, %s, %s"
          % (vr(vO + 4, 4), vr(x, 2), vr(vV + 4 * j + 2, 2), vr(vO + 4, 4)))
        vload(j)
    a("s_add_u32 %s, %s, %d" % (sOff, sOff, stride))
    a("s_sub_u32 %s, %s, 1" % (sCnt, sCnt))
    a("s_cmp_lg_u32 %s, 0" % sCnt)
    a("s_cbranch_scc1 L_loop")
    a.loop_check(l0)
    stamp_at(2)

    vAdr, vAdr2 = vKoff, vNmc
    a("v_and_b32 v%d, 3, v%d" % (vA, vLane))
    a("v_mul_u32_u24 v%d, %d, v%d" % (vAdr2, 4 * W, vA))
    a("s_lshl_b32 %s, %s, 2" % (sT0, sW))
    a("v_add_u32 v%d, %s, v%d" % (vAdr, sT0, vAdr2))
    a("ds_write_b32 v%d, v%d offset:%d" % (vAdr, vM, ldsM))
    a("v_add_f32_dpp v%d, v%d, v%d row_ror:4 %s" % (vL, vL, vL, DPPF))
    rows_reduce("v_add_f32", vL, vB)
    a("s_waitcnt vmcnt(0) lgkmcnt(0)")
    a("s_barrier")
    for q in range(W // 4):
        a("ds_read_b128 %s, v%d offset:%d" % (vr(vBuf + 4 * q, 4), vAdr2, ldsM + 16 * q))
    a("v_bfe_u32 v%d, v%d, 4, 1" % (vA, vLane))
    a("v_bfe_u32 v%d, v%d, 5, 1" % (vB, vLane))
    a("v_lshl_add_u32 v%d, v%d, 1, v%d" % (vA, vA, vB))
    a("v_and_b32 v%d, 15, v%d" % (vB, vLane))
    a("v_lshl_add_u32 v%d, v%d, 2, v%d" % (vA, vB, vA))
    a("s_lshl_b32 %s, %s, 11" % (sT0, sW))
    a("v_lshl_add_u32 v%d, v%d, 2, %s" % (vB, vA, sT0))
    a("s_waitcnt lgkmcnt(0)")
    a("v_max3_f32 v%d, v%d, v%d, v%d" % (vA, vBuf, vBuf + 1, vBuf + 2))
    rest = list(range(vBuf + 3, vBuf + W))
    while rest:
        if len(rest) >= 2:
            a("v_max3_f32 v%d, v%d, v%d, v%d" % (vA, vA, rest[0], rest[1]))
            rest = rest[2:]
        else:
            a("v_max_f32 v%d, v%d, v%d" % (vA, vA, rest[0]))
            rest = rest[1:]
    a("v_sub_f32 v%d, v%d, v%d" % (vAl, vM, vA))
    a("v_mul_f32 v%d, %s, v%d" % (vAl, sC, vAl))
    a("v_exp_f32 v%d, v%d" % (vAl, vAl))
    a("v_mov_b32 v%d, v%d" % (vM, vA))
    a("v_mul_f32 v%d, v%d, v%d" % (vL, vL, vAl))
    for r in range(8):
        h = r % 4
        a("v_mul_f32_dpp v%d, v%d, v%d quad_perm:[%d,%d,%d,%d] %s"
          % (vO + r, vAl, vO + r, h, h, h, h, DPPF))
    a("ds_write_b32 v%d, v%d offset:%d" % (vAdr, vL, ldsL))
    for r in range(8):
        a("ds_write_b32 v%d, v%d offset:%d" % (vB, vO + r, (r // 4) * 1024 + (r % 4) * 256))
    a("s_waitcnt lgkmcnt(0)")
    a("s_barrier")
    a("s_cmp_lg_u32 %s, 0" % sW)
    a("s_cbranch_scc1 L_end")
    vLs = vBuf + 32
    for q in range(W // 4):
        a("ds_read_b128 %s, v%d offset:%d" % (vr(vLs + 4 * q, 4), vAdr2, ldsL + 16 * q))
    for c0 in range(0, W, 4):
        for w in range(4):
            for pl in range(2):
                a("ds_read_b128 %s, v%d offset:%d"
                  % (vr(vBuf + 8 * w + 4 * pl, 4), vVoff, (c0 + w) * 2048 + pl * 1024))
        for w in range(4):
            a("s_waitcnt lgkmcnt(%d)" % (6 - 2 * w))
            if c0 + w == 0:
                continue
            for r in range(8):
                prev = vBuf + r if c0 + w == 1 else vO + r
                a("v_add_f32 v%d, v%d, v%d" % (vO + r, prev, vBuf + 8 * w + r))
    vML = vXY
    a("v_mov_b32 v%d, v%d" % (vML, vM))
    a("v_add_f32 v%d, v%d, v%d" % (vML + 1, vLs, vLs + 1))
    for w in range(2, W):
        a("v_add_f32 v%d, v%d, v%d" % (vML + 1, vML + 1, vLs + w))
    a("s_lshl_b32 %s, %s, 4" % (sT0, sP))
    a("s_add_u32 %s, %s, %s" % (sT0, sT0, sS))
    a("s_lshl_b32 %s, %s, 11" % (sT1, sT0))
    a("v_add_u32 v%d, %s, v%d" % (vA, sT1, vVoff))
    a("s_lshl_b32 %s, %s, 5" % (sT1, sT0))
    a("s_add_u32 %s, %s, 0x100000" % (sT1, sT1))
    a("v_lshl_add_u32 v%d, v%d, 3, %s" % (vB, vLane, sT1))
    a("global_store_dwordx4 v%d, %s, s[18:19] sc1" % (vA, vr(vO, 4)))
    a("global_store_dwordx4 v%d, %s, s[18:19] offset:1024 sc1" % (vA, vr(vO + 4, 4)))
    a("s_lshl_b32 %s, %s, 4" % (sT1, sP))
    a("v_mov_b32 v%d, %s" % (vAl, sT1))
    a("v_mov_b32 v%d, 1" % vNmc)
    a("s_mov_b64 exec, 0xf")
    a("global_store_dwordx2 v%d, %s, s[18:19] sc1" % (vB, vr(vML, 2)))
    a("s_mov_b64 exec, 1")
    a("s_waitcnt vmcnt(0)")
    stamp_at(3)
    a("global_atomic_add v%d, v%d, v%d, s[16:17] sc0" % (vNmc, vAl, vNmc))
    a("s_waitcnt vmcnt(0)")
    a("v_readfirstlane_b32 %s, v%d" % (sT0, vNmc))
    a("s_mov_b64 exec, -1")
    stamp_at(4)
    a("s_nop 3")
    a("s_cmp_lg_u32 %s, %d" % (sT0, S - 1))
    a("s_cbranch_scc1 L_stamp" if stamp else "s_cbranch_scc1 L_end")

    a("s_lshl_b32 %s, %s, 9" % (sT1, sP))
    a("s_add_u32 %s, %s, 0x100000" % (sT1, sT1))
    a("v_and_b32 v%d, 15, v%d" % (vA, vLane))
    a("v_lshrrev_b32 v%d, 4, v%d" % (vB, vLane))
    a("v_lshl_add_u32 v%d, v%d, 2, v%d" % (vA, vA, vB))
    a("v_lshl_add_u32 v%d, v%d, 3, %s" % (vA, vA, sT1))
    a("global_load_dwordx2 %s, v%d, s[18:19] sc1" % (vr(vML, 2), vA))
    CH = 16 if W <= 8 else 8
    a("s_lshl_b32 %s, %s, 15" % (sT1, sP))
    a("v_add_u32 v%d, %s, v%d" % (vB, sT1, vVoff))
    for c0 in range(0, S, CH):
        for s in range(CH):
            for pl in range(2):
                a("global_load_dwordx4 %s, v%d, s[18:19] offset:%d sc1"
                  % (vr(vBuf + 8 * s + 4 * pl, 4), vB, (s % 2) * 2048 + pl * 1024))
            if s % 2 == 1:
                a("v_add_u32 v%d, 4096, v%d" % (vB, vB))
        if c0 == 0:
            a("s_waitcnt vmcnt(%d)" % (2 * CH))
            a("v_max_f32_dpp v%d, v%d, v%d row_ror:8 %s" % (vA, vML, vML, DPPF))
            for sh in (4, 2, 1):
                a("v_max_f32_dpp v%d, v%d, v%d row_ror:%d %s" % (vA, vA, vA, sh, DPPF))
            a("v_sub_f32 v%d, v%d, v%d" % (vAl, vML, vA))
            a("v_mul_f32 v%d, %s, v%d" % (vAl, sC, vAl))
            a("v_exp_f32 v%d, v%d" % (vAl, vAl))
            a("v_mul_f32 v%d, v%d, v%d" % (vA, vAl, vML + 1))
            for sh in (8, 4, 2, 1):
                a("v_add_f32_dpp v%d, v%d, v%d row_ror:%d %s" % (vA, vA, vA, sh, DPPF))
            a("v_rcp_f32 v%d, v%d" % (vA, vA))
            a("v_mul_f32 v%d, v%d, v%d" % (vAl, vAl, vA))
        for s in range(CH):
            a("s_waitcnt vmcnt(%d)" % (2 * (CH - 1 - s)))
            for r in range(8):
                op = "v_mul_f32_dpp" if c0 + s == 0 else "v_fmac_f32_dpp"
                a("%s v%d, v%d, v%d row_newbcast:%d %s"
                  % (op, vO + r, vAl, vBuf + 8 * s + r, c0 + s, DPPF))
    for r in range(4):
        a("v_cvt_pk_bf16_f32 v%d, v%d, v%d" % (vQ + r, vO + 2 * r, vO + 2 * r + 1))
    a("s_lshl_b32 %s, %s, 10" % (sT1, sP))
    a("v_add_u32 v%d, %s, v%d" % (vA, sT1, vVoff))
    a("global_store_dwordx4 v%d, %s, s[14:15]" % (vA, vr(vQ, 4)))
    if stamp:
        a("s_waitcnt vmcnt(0)")
        a("L_stamp:")
        stamp_at(5)
        a("s_getreg_b32 s52, hwreg(HW_REG_XCC_ID)")
        a("s_getreg_b32 s53, hwreg(HW_REG_HW_ID)")
        a("s_lshl_b32 %s, s2, 6" % sT1)
        a("s_add_u32 %s, %s, 0x200000" % (sT1, sT1))
        a("v_mov_b32 v%d, %s" % (vA, sT1))
        a("s_waitcnt lgkmcnt(0)")
        for i in range(8):
            src = "s%d" % (40 + 2 * i) if i < 6 else "s%d" % (46 + i)
            a("v_mov_b32 v%d, %s" % (vO + i, src))
        a("s_mov_b64 exec, 1")
        a("global_store_dwordx4 v%d, %s, s[18:19]" % (vA, vr(vO, 4)))
        a("global_store_dwordx4 v%d, %s, s[18:19] offset:16" % (vA, vr(vO + 4, 4)))
    a("L_end:")
    a("s_endpgm")

    nvg = a.max_v()
    acc = (nvg + 3) // 4 * 4
    assert nvg <= 512 // max(1, W // 4), (nvg, W)
    out = HEADER
    out += "; @launch grid=(%d,1,1) block=(%d,1,1) lds=%d\n" % (NWG, 64 * W, LDS)
    out += '.amdgcn_target "amdgcn-amd-amdhsa--gfx950"\n.text\n'
    out += ".globl %s_kernel\n.p2align 8\n.type %s_kernel,@function\n" % (NAME, NAME)
    out += a.text()
    out += """.section .rodata,"a"
.p2align 6
.amdhsa_kernel %s_kernel
  .amdhsa_next_free_vgpr %d
  .amdhsa_next_free_sgpr 64
  .amdhsa_accum_offset %d
  .amdhsa_group_segment_fixed_size 0
  .amdhsa_kernarg_size 72
  .amdhsa_user_sgpr_count 2
  .amdhsa_user_sgpr_kernarg_segment_ptr 1
  .amdhsa_system_sgpr_workgroup_id_x 1
.end_amdhsa_kernel
""" % (NAME, nvg, acc)
    return out


if __name__ == "__main__":
    kw = {}
    for arg in sys.argv[2:]:
        k, v = arg.split("=")
        kw[k] = int(v) if v.lstrip("-").isdigit() else v
    open(sys.argv[1], "w").write(gen(**kw))
```

```python
import math
import struct
import sys

from asmlib import Asm

NAME = "standalone__tree_speculative_verify_tree_attention_over_candidate_token_tree__decode"
HEADER = open("cdna_kernels/%s.s.ref" % NAME).read().split("; Override launch")[0]


def f32(x):
    return "0x%08x" % struct.unpack("<I", struct.pack("<f", x))[0]


def vr(a, n):
    return "v[%d:%d]" % (a, a + n - 1)


def gen(W=8, N=8, mapping="ilv", wgmap="xcd", pol="nt", polv=None, stamp=0):
    S = 16
    NWG = 16 * S
    PAIR = 1 << 23
    TILE = N * 1024
    T = PAIR // (TILE * S * W)
    assert T >= 1 and N % 2 == 0
    C = 128 ** -0.5 * math.log2(math.e)
    polv = pol if polv is None else polv
    pol = pol.replace("+", " ").replace("none", "")
    polv = polv.replace("+", " ").replace("none", "")
    a = Asm()

    sW, sP, sS, sOff, sCnt, sC, sT0, sT1, sOwn, sMask = (
        "s3", "s6", "s7", "s20", "s21", "s22", "s23", "s32", "s33", "s34")
    nv = [1]

    def alloc(n, al=1):
        nv[0] = (nv[0] + al - 1) // al * al
        r = nv[0]
        nv[0] += n
        return r

    NO = (N + 3) // 4
    vLane = alloc(1)
    vKoff = alloc(NO)
    vVoff = alloc(NO)
    vMX, vMY = alloc(1), alloc(1)
    vM, vL, vAl, vNmc, vA, vB = (alloc(1) for _ in range(6))
    vQ = alloc(4, 4)
    vO = alloc(8, 4)
    vT = alloc(N // 2)
    NXY = 4
    vXY = alloc(2 * NXY, 2)
    ND = 4
    vD = alloc(4 * ND, 4)
    vK = alloc(4 * N, 4)
    vV = alloc(4 * N, 4)
    vBuf = vD

    ldsM = W * 2048
    ldsL = ldsM + 16 * W
    LDS = ldsL + 16 * W

    def kload(j):
        a("buffer_load_dwordx4 %s, v%d, s[24:27], %s offen offset:%d %s"
          % (vr(vK + 4 * j, 4), vKoff + j // 4, sOff, (j % 4) * 1024, pol))

    def vload(j):
        a("buffer_load_dwordx4 %s, v%d, s[28:31], %s offen offset:%d %s"
          % (vr(vV + 4 * j, 4), vVoff + j // 4, sOff, (j % 4) * 1024, polv))

    DPPF = "row_mask:0xf bank_mask:0xf"

    def fold_a(t, d):
        a("v_add_f32_dpp v%d, v%d, v%d row_ror:12 row_mask:0xf bank_mask:0x1" % (t, d + 1, d))
        a("v_add_f32_dpp v%d, v%d, v%d row_ror:12 row_mask:0xf bank_mask:0x4" % (t, d + 3, d + 2))

    def fold_b(t, d):
        a("v_add_f32_dpp v%d, v%d, v%d row_ror:4 row_mask:0xf bank_mask:0x2" % (t, d, d + 1))
        a("v_add_f32_dpp v%d, v%d, v%d row_ror:4 row_mask:0xf bank_mask:0x8" % (t, d + 2, d + 3))

    def fold_c(t):
        a("v_add_f32_dpp v%d, v%d, v%d row_ror:8 %s" % (t, t, t, DPPF))

    def rows_reduce(op, x, tmp, dst=None):
        dst = x if dst is None else dst
        a("v_mov_b32 v%d, v%d" % (tmp, x))
        a("v_permlane16_swap_b32 v%d, v%d" % (x, tmp))
        a("%s v%d, v%d, v%d" % (op, x, x, tmp))
        a("v_mov_b32 v%d, v%d" % (tmp, x))
        a("v_permlane32_swap_b32 v%d, v%d" % (x, tmp))
        a("%s v%d, v%d, v%d" % (op, dst, x, tmp))

    def stamp_at(i):
        if stamp:
            a("s_memrealtime s[%d:%d]" % (40 + 2 * i, 41 + 2 * i))

    a("%s_kernel:" % NAME)
    a("s_cmp_ge_u32 s2, %d" % NWG)
    a("s_cbranch_scc1 L_end")
    a("s_load_dwordx2 s[24:25], s[0:1], 8")
    a("s_load_dwordx2 s[28:29], s[0:1], 16")
    a("s_load_dwordx2 s[4:5], s[0:1], 0")
    a("s_load_dwordx4 s[8:11], s[0:1], 24")
    a("s_load_dwordx8 s[12:19], s[0:1], 40")
    stamp_at(0)
    a("v_lshrrev_b32 v%d, 6, v0" % vA)
    a("v_and_b32 v%d, 63, v0" % vLane)
    a("v_readfirstlane_b32 %s, v%d" % (sW, vA))
    if wgmap == "xcd":
        a("s_and_b32 %s, s2, 15" % sP)
        a("s_lshr_b32 %s, s2, 4" % sS)
    else:
        a("s_lshr_b32 %s, s2, 4" % sP)
        a("s_and_b32 %s, s2, 15" % sS)
    a("s_mov_b32 s27, 0x00020000")
    a("s_mov_b32 s31, 0x00020000")
    a("s_mov_b32 %s, %s" % (sC, f32(C)))
    a("v_lshrrev_b32 v%d, 4, v%d" % (vA, vLane))
    a("v_lshlrev_b32 v%d, 6, v%d" % (vA, vA))
    a("v_and_b32 v%d, 3, v%d" % (vB, vLane))
    a("v_bfe_u32 v%d, v%d, 2, 2" % (vAl, vLane))
    a("v_lshl_add_u32 v%d, v%d, 4, v%d" % (vNmc, vB, vA))
    a("v_lshl_add_u32 v%d, v%d, 8, v%d" % (vKoff, vAl, vNmc))
    a("v_lshl_add_u32 v%d, v%d, 8, v%d" % (vA, vB, vA))
    a("v_lshl_add_u32 v%d, v%d, 4, v%d" % (vA, vAl, vA))
    a("v_lshlrev_b32 v%d, 4, v%d" % (vVoff, vLane))
    for q in range(1, NO):
        a("v_add_u32 v%d, %d, v%d" % (vKoff + q, q * 4096, vKoff))
        a("v_add_u32 v%d, %d, v%d" % (vVoff + q, q * 4096, vVoff))
    a("s_lshl_b32 %s, %s, 10" % (sT0, sP))
    a("s_lshl_b32 %s, %s, 8" % (sT1, sP))
    a("v_add_u32 v%d, %s, v%d" % (vA, sT0, vA))
    a("v_add_u32 v%d, %s, v%d" % (vNmc, sT1, vNmc))
    a("v_and_b32 v%d, 0xf0, v%d" % (vB, vVoff))
    a("v_add_u32 v%d, %s, v%d" % (vB, sT1, vB))
    a("s_lshl_b32 %s, %s, 23" % (sT0, sP))
    if mapping == "ilv":
        stride = TILE * S * W
        a("s_mul_i32 %s, %s, %d" % (sOff, sS, W))
        a("s_add_u32 %s, %s, %s" % (sOff, sOff, sW))
        a("s_mul_i32 %s, %s, %d" % (sOff, sOff, TILE))
        a("s_add_u32 %s, %s, %s" % (sOff, sOff, sT0))
        a("s_add_u32 s26, %s, %d" % (sT0, PAIR))
    elif mapping == "wg":
        stride = TILE * W
        a("s_mul_i32 %s, %s, %d" % (sT1, sS, PAIR // S))
        a("s_add_u32 %s, %s, %s" % (sT0, sT0, sT1))
        a("s_mul_i32 %s, %s, %d" % (sOff, sW, TILE))
        a("s_add_u32 %s, %s, %s" % (sOff, sOff, sT0))
        a("s_add_u32 s26, %s, %d" % (sT0, PAIR // S))
    elif mapping == "wave":
        stride = TILE
        a("s_mul_i32 %s, %s, %d" % (sOff, sS, W))
        a("s_add_u32 %s, %s, %s" % (sOff, sOff, sW))
        a("s_mul_i32 %s, %s, %d" % (sOff, sOff, TILE * T))
        a("s_add_u32 %s, %s, %s" % (sOff, sOff, sT0))
        a("s_add_u32 s26, %s, %d" % (sOff, TILE * T))
    a("s_mov_b32 s30, s26")
    a("s_waitcnt lgkmcnt(0)")
    a("global_load_dwordx4 %s, v%d, s[4:5]" % (vr(vQ, 4), vA))
    a("global_load_dwordx4 %s, v%d, s[8:9]" % (vr(vD + 4, 4), vNmc))
    a("global_load_dwordx4 %s, v%d, s[10:11]" % (vr(vD + 8, 4), vB))
    a("s_load_dword %s, s[12:13], 0" % sMask)
    for j in range(N):
        kload(j)
    for j in range(N):
        vload(j)
    a("s_add_u32 %s, %s, %d" % (sOff, sOff, stride))
    a("s_mov_b32 %s, %d" % (sCnt, T))
    a("v_and_b32 v%d, 8, v%d" % (vA, vLane))
    a("v_lshlrev_b32 v%d, 1, v%d" % (vA, vA))
    a("v_mov_b32 v%d, 0xffff" % vB)
    a("v_lshlrev_b32 v%d, v%d, v%d" % (vA, vA, vB))
    a("v_bfe_i32 v%d, v%d, 2, 1" % (vB, vLane))
    a("v_and_b32 v%d, v%d, v%d" % (vMY, vA, vB))
    a("v_xor_b32 v%d, v%d, v%d" % (vMX, vA, vMY))
    a("s_or_b32 %s, %s, %s" % (sT0, sS, sW))
    a("s_cmp_eq_u32 %s, 0" % sT0)
    a("s_cselect_b32 %s, 0x3f803f80, 0" % sOwn)
    a("v_mov_b32 v%d, %s" % (vA, sOwn))
    a("v_cmp_gt_u32 vcc, 16, v%d" % vLane)
    a("v_cndmask_b32 v%d, 0, v%d, vcc" % (vA, vA))
    a("v_not_b32 v%d, v%d" % (vB, vB))
    a("v_and_b32 v%d, 0xffff0000, v%d" % (vB, vB))
    a("v_and_b32 v%d, v%d, v%d" % (vL, vA, vB))
    a("v_and_b32 v%d, v%d, v%d" % (vXY, vA, vMX))
    a("v_and_b32 v%d, v%d, v%d" % (vXY + 1, vA, vMY))
    a("s_lshr_b32 %s, %s, 3" % (sT0, sP))
    a("s_lshl_b32 %s, %s, 4" % (sT0, sT0))
    a("s_waitcnt lgkmcnt(0)")
    a("s_lshr_b32 %s, %s, %s" % (sMask, sMask, sT0))
    a("s_lshl_b32 %s, %s, 16" % (sMask, sMask))
    a("v_mov_b32 v%d, %s" % (vA, sMask))
    a("v_sub_f32 v%d, 1.0, v%d" % (vA, vA))
    a("v_mul_f32 v%d, %s, v%d" % (vA, f32(-1e9 * 128 ** 0.5), vA))
    a("s_waitcnt vmcnt(%d)" % (2 * N))
    a("v_mfma_f32_16x16x32_bf16 %s, %s, %s, 0" % (vr(vD, 4), vr(vD + 4, 4), vr(vQ, 4)))
    a("v_mfma_f32_16x16x16_bf16 %s, %s, %s, 0" % (vr(vO, 4), vr(vXY, 2), vr(vD + 8, 2)))
    a("v_mfma_f32_16x16x16_bf16 %s, %s, %s, 0" % (vr(vO + 4, 4), vr(vXY, 2), vr(vD + 10, 2)))
    fold_a(vM, vD)
    fold_b(vM, vD)
    fold_c(vM)
    a("v_add_f32 v%d, v%d, v%d" % (vM, vM, vA))
    stamp_at(1)

    a("L_loop:")
    l0 = a.mark()
    LAG = 2

    def fold(j):
        d = vD + 4 * (j % ND)
        (fold_a if j % 2 == 0 else fold_b)(vT + j // 2, d)

    for j in range(N):
        a("s_waitcnt vmcnt(%d)" % (2 * N - 1))
        a("v_mfma_f32_16x16x32_bf16 %s, %s, %s, 0"
          % (vr(vD + 4 * (j % ND), 4), vr(vK + 4 * j, 4), vr(vQ, 4)))
        kload(j)
        if j >= LAG:
            fold(j - LAG)
        if j >= LAG + 2 and (j - LAG) % 2 == 0:
            fold_c(vT + (j - LAG) // 2 - 1)
    for j in range(N - LAG, N):
        fold(j)
        if j >= 2 and j % 2 == 0:
            fold_c(vT + j // 2 - 1)
    fold_c(vT + N // 2 - 1)
    srcs = [vT + i for i in range(N // 2)]
    cur = vM
    while srcs:
        if len(srcs) >= 2:
            a("v_max3_f32 v%d, v%d, v%d, v%d" % (vA, cur, srcs[0], srcs[1]))
            srcs = srcs[2:]
        else:
            a("v_max_f32 v%d, v%d, v%d" % (vA, cur, srcs[0]))
            srcs = srcs[1:]
        cur = vA
    a("v_max_f32_dpp v%d, v%d, v%d row_ror:4 %s" % (vA, vA, vA, DPPF))
    rows_reduce("v_max_f32", vA, vB)
    a("v_sub_f32 v%d, v%d, v%d" % (vAl, vM, vA))
    a("v_mul_f32 v%d, %s, v%d" % (vNmc, f32(-C), vA))
    a("v_mul_f32 v%d, %s, v%d" % (vAl, sC, vAl))
    a("v_mov_b32 v%d, v%d" % (vM, vA))
    a("v_exp_f32 v%d, v%d" % (vAl, vAl))
    for i in range(N // 2):
        a("v_fma_f32 v%d, v%d, %s, v%d" % (vT + i, vT + i, sC, vNmc))
    for i in range(N // 2):
        a("v_exp_f32 v%d, v%d" % (vT + i, vT + i))
    for r in range(8):
        h = r % 4
        a("v_mul_f32_dpp v%d, v%d, v%d quad_perm:[%d,%d,%d,%d] %s"
          % (vO + r, vAl, vO + r, h, h, h, h, DPPF))
    a("v_fma_f32 v%d, v%d, v%d, v%d" % (vL, vL, vAl, vT))
    for i in range(1, N // 2):
        a("v_add_f32 v%d, v%d, v%d" % (vL, vL, vT + i))
    for i in range(N // 2):
        a("v_cvt_pk_bf16_f32 v%d, v%d, v%d" % (vT + i, vT + i, vT + i))

    def mk_xy(j):
        x = vXY + 2 * (j % NXY)
        p = vT + j // 2
        if j % 2 == 0:
            a("v_and_b32 v%d, v%d, v%d" % (x, p, vMX))
            a("v_and_b32_dpp v%d, v%d, v%d row_ror:4 %s" % (x + 1, p, vMY, DPPF))
        else:
            a("v_and_b32_dpp v%d, v%d, v%d row_ror:4 %s" % (x, p, vMX, DPPF))
            a("v_and_b32 v%d, v%d, v%d" % (x + 1, p, vMY))

    mk_xy(0)
    for j in range(N):
        if j + 1 < N:
            mk_xy(j + 1)
        x = vXY + 2 * (j % NXY)
        a("s_waitcnt vmcnt(%d)" % (2 * N - 1))
        a("v_mfma_f32_16x16x16_bf16 %s, %s, %s, %s"
          % (vr(vO, 4), vr(x, 2), vr(vV + 4 * j, 2), vr(vO, 4)))
        a("v_mfma_f32_16x16x16_bf16 %s, %s, %s, %s"
          % (vr(vO + 4, 4), vr(x, 2), vr(vV + 4 * j + 2, 2), vr(vO + 4, 4)))
        vload(j)
    a("s_add_u32 %s, %s, %d" % (sOff, sOff, stride))
    a("s_sub_u32 %s, %s, 1" % (sCnt, sCnt))
    a("s_cmp_lg_u32 %s, 0" % sCnt)
    a("s_cbranch_scc1 L_loop")
    a.loop_check(l0)
    stamp_at(2)

    vAdr, vAdr2 = vKoff, vNmc
    a("v_and_b32 v%d, 3, v%d" % (vA, vLane))
    a("v_mul_u32_u24 v%d, %d, v%d" % (vAdr2, 4 * W, vA))
    a("s_lshl_b32 %s, %s, 2" % (sT0, sW))
    a("v_add_u32 v%d, %s, v%d" % (vAdr, sT0, vAdr2))
    a("ds_write_b32 v%d, v%d offset:%d" % (vAdr, vM, ldsM))
    a("v_add_f32_dpp v%d, v%d, v%d row_ror:4 %s" % (vL, vL, vL, DPPF))
    rows_reduce("v_add_f32", vL, vB)
    a("s_waitcnt vmcnt(0) lgkmcnt(0)")
    a("s_barrier")
    for q in range(W // 4):
        a("ds_read_b128 %s, v%d offset:%d" % (vr(vBuf + 4 * q, 4), vAdr2, ldsM + 16 * q))
    a("v_bfe_u32 v%d, v%d, 4, 1" % (vA, vLane))
    a("v_bfe_u32 v%d, v%d, 5, 1" % (vB, vLane))
    a("v_lshl_add_u32 v%d, v%d, 1, v%d" % (vA, vA, vB))
    a("v_and_b32 v%d, 15, v%d" % (vB, vLane))
    a("v_lshl_add_u32 v%d, v%d, 2, v%d" % (vA, vB, vA))
    a("s_lshl_b32 %s, %s, 11" % (sT0, sW))
    a("v_lshl_add_u32 v%d, v%d, 2, %s" % (vB, vA, sT0))
    a("s_waitcnt lgkmcnt(0)")
    a("v_max3_f32 v%d, v%d, v%d, v%d" % (vA, vBuf, vBuf + 1, vBuf + 2))
    rest = list(range(vBuf + 3, vBuf + W))
    while rest:
        if len(rest) >= 2:
            a("v_max3_f32 v%d, v%d, v%d, v%d" % (vA, vA, rest[0], rest[1]))
            rest = rest[2:]
        else:
            a("v_max_f32 v%d, v%d, v%d" % (vA, vA, rest[0]))
            rest = rest[1:]
    a("v_sub_f32 v%d, v%d, v%d" % (vAl, vM, vA))
    a("v_mul_f32 v%d, %s, v%d" % (vAl, sC, vAl))
    a("v_exp_f32 v%d, v%d" % (vAl, vAl))
    a("v_mov_b32 v%d, v%d" % (vM, vA))
    a("v_mul_f32 v%d, v%d, v%d" % (vL, vL, vAl))
    for r in range(8):
        h = r % 4
        a("v_mul_f32_dpp v%d, v%d, v%d quad_perm:[%d,%d,%d,%d] %s"
          % (vO + r, vAl, vO + r, h, h, h, h, DPPF))
    a("ds_write_b32 v%d, v%d offset:%d" % (vAdr, vL, ldsL))
    for r in range(8):
        a("ds_write_b32 v%d, v%d offset:%d" % (vB, vO + r, (r // 4) * 1024 + (r % 4) * 256))
    a("s_waitcnt lgkmcnt(0)")
    a("s_barrier")
    a("s_cmp_lg_u32 %s, 0" % sW)
    a("s_cbranch_scc1 L_end")
    vLs = vBuf + 32
    for q in range(W // 4):
        a("ds_read_b128 %s, v%d offset:%d" % (vr(vLs + 4 * q, 4), vAdr2, ldsL + 16 * q))
    for c0 in range(0, W, 4):
        for w in range(4):
            for pl in range(2):
                a("ds_read_b128 %s, v%d offset:%d"
                  % (vr(vBuf + 8 * w + 4 * pl, 4), vVoff, (c0 + w) * 2048 + pl * 1024))
        for w in range(4):
            a("s_waitcnt lgkmcnt(%d)" % (6 - 2 * w))
            if c0 + w == 0:
                continue
            for r in range(8):
                prev = vBuf + r if c0 + w == 1 else vO + r
                a("v_add_f32 v%d, v%d, v%d" % (vO + r, prev, vBuf + 8 * w + r))
    vML = vXY
    a("v_mov_b32 v%d, v%d" % (vML, vM))
    a("v_add_f32 v%d, v%d, v%d" % (vML + 1, vLs, vLs + 1))
    for w in range(2, W):
        a("v_add_f32 v%d, v%d, v%d" % (vML + 1, vML + 1, vLs + w))
    a("s_lshl_b32 %s, %s, 4" % (sT0, sP))
    a("s_add_u32 %s, %s, %s" % (sT0, sT0, sS))
    a("s_lshl_b32 %s, %s, 11" % (sT1, sT0))
    a("v_add_u32 v%d, %s, v%d" % (vA, sT1, vVoff))
    a("s_lshl_b32 %s, %s, 5" % (sT1, sT0))
    a("s_add_u32 %s, %s, 0x100000" % (sT1, sT1))
    a("v_lshl_add_u32 v%d, v%d, 3, %s" % (vB, vLane, sT1))
    a("global_store_dwordx4 v%d, %s, s[18:19] sc1" % (vA, vr(vO, 4)))
    a("global_store_dwordx4 v%d, %s, s[18:19] offset:1024 sc1" % (vA, vr(vO + 4, 4)))
    a("s_lshl_b32 %s, %s, 4" % (sT1, sP))
    a("v_mov_b32 v%d, %s" % (vAl, sT1))
    a("v_mov_b32 v%d, 1" % vNmc)
    a("s_mov_b64 exec, 0xf")
    a("global_store_dwordx2 v%d, %s, s[18:19] sc1" % (vB, vr(vML, 2)))
    a("s_mov_b64 exec, 1")
    a("s_waitcnt vmcnt(0)")
    stamp_at(3)
    a("global_atomic_add v%d, v%d, v%d, s[16:17] sc0" % (vNmc, vAl, vNmc))
    a("s_waitcnt vmcnt(0)")
    a("v_readfirstlane_b32 %s, v%d" % (sT0, vNmc))
    a("s_mov_b64 exec, -1")
    stamp_at(4)
    a("s_nop 3")
    a("s_cmp_lg_u32 %s, %d" % (sT0, S - 1))
    a("s_cbranch_scc1 L_stamp" if stamp else "s_cbranch_scc1 L_end")

    a("s_lshl_b32 %s, %s, 9" % (sT1, sP))
    a("s_add_u32 %s, %s, 0x100000" % (sT1, sT1))
    a("v_and_b32 v%d, 15, v%d" % (vA, vLane))
    a("v_lshrrev_b32 v%d, 4, v%d" % (vB, vLane))
    a("v_lshl_add_u32 v%d, v%d, 2, v%d" % (vA, vA, vB))
    a("v_lshl_add_u32 v%d, v%d, 3, %s" % (vA, vA, sT1))
    a("global_load_dwordx2 %s, v%d, s[18:19] sc1" % (vr(vML, 2), vA))
    CH = 16 if W <= 8 else 8
    a("s_lshl_b32 %s, %s, 15" % (sT1, sP))
    a("v_add_u32 v%d, %s, v%d" % (vB, sT1, vVoff))
    for c0 in range(0, S, CH):
        for s in range(CH):
            for pl in range(2):
                a("global_load_dwordx4 %s, v%d, s[18:19] offset:%d sc1"
                  % (vr(vBuf + 8 * s + 4 * pl, 4), vB, (s % 2) * 2048 + pl * 1024))
            if s % 2 == 1:
                a("v_add_u32 v%d, 4096, v%d" % (vB, vB))
        if c0 == 0:
            a("s_waitcnt vmcnt(%d)" % (2 * CH))
            a("v_max_f32_dpp v%d, v%d, v%d row_ror:8 %s" % (vA, vML, vML, DPPF))
            for sh in (4, 2, 1):
                a("v_max_f32_dpp v%d, v%d, v%d row_ror:%d %s" % (vA, vA, vA, sh, DPPF))
            a("v_sub_f32 v%d, v%d, v%d" % (vAl, vML, vA))
            a("v_mul_f32 v%d, %s, v%d" % (vAl, sC, vAl))
            a("v_exp_f32 v%d, v%d" % (vAl, vAl))
            a("v_mul_f32 v%d, v%d, v%d" % (vA, vAl, vML + 1))
            for sh in (8, 4, 2, 1):
                a("v_add_f32_dpp v%d, v%d, v%d row_ror:%d %s" % (vA, vA, vA, sh, DPPF))
            a("v_rcp_f32 v%d, v%d" % (vA, vA))
            a("v_mul_f32 v%d, v%d, v%d" % (vAl, vAl, vA))
        for s in range(CH):
            a("s_waitcnt vmcnt(%d)" % (2 * (CH - 1 - s)))
            for r in range(8):
                op = "v_mul_f32_dpp" if c0 + s == 0 else "v_fmac_f32_dpp"
                a("%s v%d, v%d, v%d row_newbcast:%d %s"
                  % (op, vO + r, vAl, vBuf + 8 * s + r, c0 + s, DPPF))
    for r in range(4):
        a("v_cvt_pk_bf16_f32 v%d, v%d, v%d" % (vQ + r, vO + 2 * r, vO + 2 * r + 1))
    a("s_lshl_b32 %s, %s, 10" % (sT1, sP))
    a("v_add_u32 v%d, %s, v%d" % (vA, sT1, vVoff))
    a("global_store_dwordx4 v%d, %s, s[14:15]" % (vA, vr(vQ, 4)))
    if stamp:
        a("s_waitcnt vmcnt(0)")
        a("L_stamp:")
        stamp_at(5)
        a("s_getreg_b32 s52, hwreg(HW_REG_XCC_ID)")
        a("s_getreg_b32 s53, hwreg(HW_REG_HW_ID)")
        a("s_lshl_b32 %s, s2, 6" % sT1)
        a("s_add_u32 %s, %s, 0x200000" % (sT1, sT1))
        a("v_mov_b32 v%d, %s" % (vA, sT1))
        a("s_waitcnt lgkmcnt(0)")
        for i in range(8):
            src = "s%d" % (40 + 2 * i) if i < 6 else "s%d" % (46 + i)
            a("v_mov_b32 v%d, %s" % (vO + i, src))
        a("s_mov_b64 exec, 1")
        a("global_store_dwordx4 v%d, %s, s[18:19]" % (vA, vr(vO, 4)))
        a("global_store_dwordx4 v%d, %s, s[18:19] offset:16" % (vA, vr(vO + 4, 4)))
    a("L_end:")
    a("s_endpgm")

    nvg = a.max_v()
    acc = (nvg + 3) // 4 * 4
    assert nvg <= 512 // max(1, W // 4), (nvg, W)
    out = HEADER
    out += "; @launch grid=(%d,1,1) block=(%d,1,1) lds=%d\n" % (NWG, 64 * W, LDS)
    out += '.amdgcn_target "amdgcn-amd-amdhsa--gfx950"\n.text\n'
    out += ".globl %s_kernel\n.p2align 8\n.type %s_kernel,@function\n" % (NAME, NAME)
    out += a.text()
    out += """.section .rodata,"a"
.p2align 6
.amdhsa_kernel %s_kernel
  .amdhsa_next_free_vgpr %d
  .amdhsa_next_free_sgpr 64
  .amdhsa_accum_offset %d
  .amdhsa_group_segment_fixed_size 0
  .amdhsa_kernarg_size 72
  .amdhsa_user_sgpr_count 2
  .amdhsa_user_sgpr_kernarg_segment_ptr 1
  .amdhsa_system_sgpr_workgroup_id_x 1
.end_amdhsa_kernel
""" % (NAME, nvg, acc)
    return out


if __name__ == "__main__":
    kw = {}
    for arg in sys.argv[2:]:
        k, v = arg.split("=")
        kw[k] = int(v) if v.lstrip("-").isdigit() else v
    open(sys.argv[1], "w").write(gen(**kw))
```

```python
import math
import struct
import sys

from asmlib import Asm

NAME = "standalone__tree_speculative_verify_tree_attention_over_candidate_token_tree__decode"
HEADER = open("cdna_kernels/%s.s.ref" % NAME).read().split("; Override launch")[0]


def f32(x):
    return "0x%08x" % struct.unpack("<I", struct.pack("<f", x))[0]


def vr(a, n):
    return "v[%d:%d]" % (a, a + n - 1)


def gen(W=8, N=8, mapping="ilv", wgmap="xcd", pol="nt", polv=None, stamp=0, diagpad=0):
    S = 16
    NWG = 16 * S
    PAIR = 1 << 23
    TILE = N * 1024
    T = PAIR // (TILE * S * W)
    assert T >= 1 and N % 2 == 0
    C = 128 ** -0.5 * math.log2(math.e)
    polv = pol if polv is None else polv
    pol = pol.replace("+", " ").replace("none", "")
    polv = polv.replace("+", " ").replace("none", "")
    a = Asm()

    sW, sP, sS, sOff, sCnt, sC, sT0, sT1, sOwn, sMask = (
        "s3", "s6", "s7", "s20", "s21", "s22", "s23", "s32", "s33", "s34")
    nv = [1]

    def alloc(n, al=1):
        nv[0] = (nv[0] + al - 1) // al * al
        r = nv[0]
        nv[0] += n
        return r

    NO = (N + 3) // 4
    vLane = alloc(1)
    vKoff = alloc(NO)
    vVoff = alloc(NO)
    vMX, vMY = alloc(1), alloc(1)
    vM, vL, vAl, vNmc, vA, vB = (alloc(1) for _ in range(6))
    vQ = alloc(4, 4)
    vO = alloc(8, 4)
    vT = alloc(N // 2)
    NXY = 4
    vXY = alloc(2 * NXY, 2)
    ND = 4
    vD = alloc(4 * ND, 4)
    vK = alloc(4 * N, 4)
    vV = alloc(4 * N, 4)
    vBuf = vD

    ldsM = W * 2048
    ldsL = ldsM + 16 * W
    LDS = ldsL + 16 * W

    def kload(j):
        a("buffer_load_dwordx4 %s, v%d, s[24:27], %s offen offset:%d %s"
          % (vr(vK + 4 * j, 4), vKoff + j // 4, sOff, (j % 4) * 1024, pol))

    def vload(j):
        a("buffer_load_dwordx4 %s, v%d, s[28:31], %s offen offset:%d %s"
          % (vr(vV + 4 * j, 4), vVoff + j // 4, sOff, (j % 4) * 1024, polv))

    DPPF = "row_mask:0xf bank_mask:0xf"

    def fold_a(t, d):
        a("v_add_f32_dpp v%d, v%d, v%d row_ror:12 row_mask:0xf bank_mask:0x1" % (t, d + 1, d))
        a("v_add_f32_dpp v%d, v%d, v%d row_ror:12 row_mask:0xf bank_mask:0x4" % (t, d + 3, d + 2))

    def fold_b(t, d):
        a("v_add_f32_dpp v%d, v%d, v%d row_ror:4 row_mask:0xf bank_mask:0x2" % (t, d, d + 1))
        a("v_add_f32_dpp v%d, v%d, v%d row_ror:4 row_mask:0xf bank_mask:0x8" % (t, d + 2, d + 3))

    def fold_c(t):
        a("v_add_f32_dpp v%d, v%d, v%d row_ror:8 %s" % (t, t, t, DPPF))

    def rows_reduce(op, x, tmp, dst=None):
        dst = x if dst is None else dst
        a("v_mov_b32 v%d, v%d" % (tmp, x))
        a("v_permlane16_swap_b32 v%d, v%d" % (x, tmp))
        a("%s v%d, v%d, v%d" % (op, x, x, tmp))
        a("v_mov_b32 v%d, v%d" % (tmp, x))
        a("v_permlane32_swap_b32 v%d, v%d" % (x, tmp))
        a("%s v%d, v%d, v%d" % (op, dst, x, tmp))

    def stamp_at(i):
        if stamp:
            a("s_memrealtime s[%d:%d]" % (40 + 2 * i, 41 + 2 * i))

    a("%s_kernel:" % NAME)
    a("s_cmp_ge_u32 s2, %d" % NWG)
    a("s_cbranch_scc1 L_end")
    a("s_load_dwordx2 s[24:25], s[0:1], 8")
    a("s_load_dwordx2 s[28:29], s[0:1], 16")
    a("s_load_dwordx2 s[4:5], s[0:1], 0")
    a("s_load_dwordx4 s[8:11], s[0:1], 24")
    a("s_load_dwordx8 s[12:19], s[0:1], 40")
    stamp_at(0)
    if diagpad:
        a("s_memrealtime s[56:57]")
    a("v_lshrrev_b32 v%d, 6, v0" % vA)
    a("v_and_b32 v%d, 63, v0" % vLane)
    a("v_readfirstlane_b32 %s, v%d" % (sW, vA))
    if wgmap == "xcd":
        a("s_and_b32 %s, s2, 15" % sP)
        a("s_lshr_b32 %s, s2, 4" % sS)
    else:
        a("s_lshr_b32 %s, s2, 4" % sP)
        a("s_and_b32 %s, s2, 15" % sS)
    a("s_mov_b32 s27, 0x00020000")
    a("s_mov_b32 s31, 0x00020000")
    a("s_mov_b32 %s, %s" % (sC, f32(C)))
    a("v_lshrrev_b32 v%d, 4, v%d" % (vA, vLane))
    a("v_lshlrev_b32 v%d, 6, v%d" % (vA, vA))
    a("v_and_b32 v%d, 3, v%d" % (vB, vLane))
    a("v_bfe_u32 v%d, v%d, 2, 2" % (vAl, vLane))
    a("v_lshl_add_u32 v%d, v%d, 4, v%d" % (vNmc, vB, vA))
    a("v_lshl_add_u32 v%d, v%d, 8, v%d" % (vKoff, vAl, vNmc))
    a("v_lshl_add_u32 v%d, v%d, 8, v%d" % (vA, vB, vA))
    a("v_lshl_add_u32 v%d, v%d, 4, v%d" % (vA, vAl, vA))
    a("v_lshlrev_b32 v%d, 4, v%d" % (vVoff, vLane))
    for q in range(1, NO):
        a("v_add_u32 v%d, %d, v%d" % (vKoff + q, q * 4096, vKoff))
        a("v_add_u32 v%d, %d, v%d" % (vVoff + q, q * 4096, vVoff))
    a("s_lshl_b32 %s, %s, 10" % (sT0, sP))
    a("s_lshl_b32 %s, %s, 8" % (sT1, sP))
    a("v_add_u32 v%d, %s, v%d" % (vA, sT0, vA))
    a("v_add_u32 v%d, %s, v%d" % (vNmc, sT1, vNmc))
    a("v_and_b32 v%d, 0xf0, v%d" % (vB, vVoff))
    a("v_add_u32 v%d, %s, v%d" % (vB, sT1, vB))
    a("s_lshl_b32 %s, %s, 23" % (sT0, sP))
    if mapping == "ilv":
        stride = TILE * S * W
        a("s_mul_i32 %s, %s, %d" % (sOff, sS, W))
        a("s_add_u32 %s, %s, %s" % (sOff, sOff, sW))
        a("s_mul_i32 %s, %s, %d" % (sOff, sOff, TILE))
        a("s_add_u32 %s, %s, %s" % (sOff, sOff, sT0))
        a("s_add_u32 s26, %s, %d" % (sT0, PAIR))
    elif mapping == "wg":
        stride = TILE * W
        a("s_mul_i32 %s, %s, %d" % (sT1, sS, PAIR // S))
        a("s_add_u32 %s, %s, %s" % (sT0, sT0, sT1))
        a("s_mul_i32 %s, %s, %d" % (sOff, sW, TILE))
        a("s_add_u32 %s, %s, %s" % (sOff, sOff, sT0))
        a("s_add_u32 s26, %s, %d" % (sT0, PAIR // S))
    elif mapping == "wave":
        stride = TILE
        a("s_mul_i32 %s, %s, %d" % (sOff, sS, W))
        a("s_add_u32 %s, %s, %s" % (sOff, sOff, sW))
        a("s_mul_i32 %s, %s, %d" % (sOff, sOff, TILE * T))
        a("s_add_u32 %s, %s, %s" % (sOff, sOff, sT0))
        a("s_add_u32 s26, %s, %d" % (sOff, TILE * T))
    a("s_mov_b32 s30, s26")
    a("s_waitcnt lgkmcnt(0)")
    a("global_load_dwordx4 %s, v%d, s[4:5]" % (vr(vQ, 4), vA))
    a("global_load_dwordx4 %s, v%d, s[8:9]" % (vr(vD + 4, 4), vNmc))
    a("global_load_dwordx4 %s, v%d, s[10:11]" % (vr(vD + 8, 4), vB))
    a("s_load_dword %s, s[12:13], 0" % sMask)
    for j in range(N):
        kload(j)
    for j in range(N):
        vload(j)
    a("s_add_u32 %s, %s, %d" % (sOff, sOff, stride))
    a("s_mov_b32 %s, %d" % (sCnt, T))
    a("v_and_b32 v%d, 8, v%d" % (vA, vLane))
    a("v_lshlrev_b32 v%d, 1, v%d" % (vA, vA))
    a("v_mov_b32 v%d, 0xffff" % vB)
    a("v_lshlrev_b32 v%d, v%d, v%d" % (vA, vA, vB))
    a("v_bfe_i32 v%d, v%d, 2, 1" % (vB, vLane))
    a("v_and_b32 v%d, v%d, v%d" % (vMY, vA, vB))
    a("v_xor_b32 v%d, v%d, v%d" % (vMX, vA, vMY))
    a("s_or_b32 %s, %s, %s" % (sT0, sS, sW))
    a("s_cmp_eq_u32 %s, 0" % sT0)
    a("s_cselect_b32 %s, 0x3f803f80, 0" % sOwn)
    a("v_mov_b32 v%d, %s" % (vA, sOwn))
    a("v_cmp_gt_u32 vcc, 16, v%d" % vLane)
    a("v_cndmask_b32 v%d, 0, v%d, vcc" % (vA, vA))
    a("v_not_b32 v%d, v%d" % (vB, vB))
    a("v_and_b32 v%d, 0xffff0000, v%d" % (vB, vB))
    a("v_and_b32 v%d, v%d, v%d" % (vL, vA, vB))
    a("v_and_b32 v%d, v%d, v%d" % (vXY, vA, vMX))
    a("v_and_b32 v%d, v%d, v%d" % (vXY + 1, vA, vMY))
    a("s_lshr_b32 %s, %s, 3" % (sT0, sP))
    a("s_lshl_b32 %s, %s, 4" % (sT0, sT0))
    a("s_waitcnt lgkmcnt(0)")
    a("s_lshr_b32 %s, %s, %s" % (sMask, sMask, sT0))
    a("s_lshl_b32 %s, %s, 16" % (sMask, sMask))
    a("v_mov_b32 v%d, %s" % (vA, sMask))
    a("v_sub_f32 v%d, 1.0, v%d" % (vA, vA))
    a("v_mul_f32 v%d, %s, v%d" % (vA, f32(-1e9 * 128 ** 0.5), vA))
    a("s_waitcnt vmcnt(%d)" % (2 * N))
    a("v_mfma_f32_16x16x32_bf16 %s, %s, %s, 0" % (vr(vD, 4), vr(vD + 4, 4), vr(vQ, 4)))
    a("v_mfma_f32_16x16x16_bf16 %s, %s, %s, 0" % (vr(vO, 4), vr(vXY, 2), vr(vD + 8, 2)))
    a("v_mfma_f32_16x16x16_bf16 %s, %s, %s, 0" % (vr(vO + 4, 4), vr(vXY, 2), vr(vD + 10, 2)))
    fold_a(vM, vD)
    fold_b(vM, vD)
    fold_c(vM)
    a("v_add_f32 v%d, v%d, v%d" % (vM, vM, vA))
    stamp_at(1)

    a("L_loop:")
    l0 = a.mark()
    LAG = 2

    def fold(j):
        d = vD + 4 * (j % ND)
        (fold_a if j % 2 == 0 else fold_b)(vT + j // 2, d)

    for j in range(N):
        a("s_waitcnt vmcnt(%d)" % (2 * N - 1))
        a("v_mfma_f32_16x16x32_bf16 %s, %s, %s, 0"
          % (vr(vD + 4 * (j % ND), 4), vr(vK + 4 * j, 4), vr(vQ, 4)))
        kload(j)
        if j >= LAG:
            fold(j - LAG)
        if j >= LAG + 2 and (j - LAG) % 2 == 0:
            fold_c(vT + (j - LAG) // 2 - 1)
    for j in range(N - LAG, N):
        fold(j)
        if j >= 2 and j % 2 == 0:
            fold_c(vT + j // 2 - 1)
    fold_c(vT + N // 2 - 1)
    srcs = [vT + i for i in range(N // 2)]
    cur = vM
    while srcs:
        if len(srcs) >= 2:
            a("v_max3_f32 v%d, v%d, v%d, v%d" % (vA, cur, srcs[0], srcs[1]))
            srcs = srcs[2:]
        else:
            a("v_max_f32 v%d, v%d, v%d" % (vA, cur, srcs[0]))
            srcs = srcs[1:]
        cur = vA
    a("v_max_f32_dpp v%d, v%d, v%d row_ror:4 %s" % (vA, vA, vA, DPPF))
    rows_reduce("v_max_f32", vA, vB)
    a("v_sub_f32 v%d, v%d, v%d" % (vAl, vM, vA))
    a("v_mul_f32 v%d, %s, v%d" % (vNmc, f32(-C), vA))
    a("v_mul_f32 v%d, %s, v%d" % (vAl, sC, vAl))
    a("v_mov_b32 v%d, v%d" % (vM, vA))
    a("v_exp_f32 v%d, v%d" % (vAl, vAl))
    for i in range(N // 2):
        a("v_fma_f32 v%d, v%d, %s, v%d" % (vT + i, vT + i, sC, vNmc))
    for i in range(N // 2):
        a("v_exp_f32 v%d, v%d" % (vT + i, vT + i))
    for r in range(8):
        h = r % 4
        a("v_mul_f32_dpp v%d, v%d, v%d quad_perm:[%d,%d,%d,%d] %s"
          % (vO + r, vAl, vO + r, h, h, h, h, DPPF))
    a("v_fma_f32 v%d, v%d, v%d, v%d" % (vL, vL, vAl, vT))
    for i in range(1, N // 2):
        a("v_add_f32 v%d, v%d, v%d" % (vL, vL, vT + i))
    for i in range(N // 2):
        a("v_cvt_pk_bf16_f32 v%d, v%d, v%d" % (vT + i, vT + i, vT + i))

    def mk_xy(j):
        x = vXY + 2 * (j % NXY)
        p = vT + j // 2
        if j % 2 == 0:
            a("v_and_b32 v%d, v%d, v%d" % (x, p, vMX))
            a("v_and_b32_dpp v%d, v%d, v%d row_ror:4 %s" % (x + 1, p, vMY, DPPF))
        else:
            a("v_and_b32_dpp v%d, v%d, v%d row_ror:4 %s" % (x, p, vMX, DPPF))
            a("v_and_b32 v%d, v%d, v%d" % (x + 1, p, vMY))

    mk_xy(0)
    for j in range(N):
        if j + 1 < N:
            mk_xy(j + 1)
        x = vXY + 2 * (j % NXY)
        a("s_waitcnt vmcnt(%d)" % (2 * N - 1))
        a("v_mfma_f32_16x16x16_bf16 %s, %s, %s, %s"
          % (vr(vO, 4), vr(x, 2), vr(vV + 4 * j, 2), vr(vO, 4)))
        a("v_mfma_f32_16x16x16_bf16 %s, %s, %s, %s"
          % (vr(vO + 4, 4), vr(x, 2), vr(vV + 4 * j + 2, 2), vr(vO + 4, 4)))
        vload(j)
    a("s_add_u32 %s, %s, %d" % (sOff, sOff, stride))
    a("s_sub_u32 %s, %s, 1" % (sCnt, sCnt))
    a("s_cmp_lg_u32 %s, 0" % sCnt)
    a("s_cbranch_scc1 L_loop")
    a.loop_check(l0)
    stamp_at(2)

    vAdr, vAdr2 = vKoff, vNmc
    a("v_and_b32 v%d, 3, v%d" % (vA, vLane))
    a("v_mul_u32_u24 v%d, %d, v%d" % (vAdr2, 4 * W, vA))
    a("s_lshl_b32 %s, %s, 2" % (sT0, sW))
    a("v_add_u32 v%d, %s, v%d" % (vAdr, sT0, vAdr2))
    a("ds_write_b32 v%d, v%d offset:%d" % (vAdr, vM, ldsM))
    a("v_add_f32_dpp v%d, v%d, v%d row_ror:4 %s" % (vL, vL, vL, DPPF))
    rows_reduce("v_add_f32", vL, vB)
    a("s_waitcnt vmcnt(0) lgkmcnt(0)")
    a("s_barrier")
    for q in range(W // 4):
        a("ds_read_b128 %s, v%d offset:%d" % (vr(vBuf + 4 * q, 4), vAdr2, ldsM + 16 * q))
    a("v_bfe_u32 v%d, v%d, 4, 1" % (vA, vLane))
    a("v_bfe_u32 v%d, v%d, 5, 1" % (vB, vLane))
    a("v_lshl_add_u32 v%d, v%d, 1, v%d" % (vA, vA, vB))
    a("v_and_b32 v%d, 15, v%d" % (vB, vLane))
    a("v_lshl_add_u32 v%d, v%d, 2, v%d" % (vA, vB, vA))
    a("s_lshl_b32 %s, %s, 11" % (sT0, sW))
    a("v_lshl_add_u32 v%d, v%d, 2, %s" % (vB, vA, sT0))
    a("s_waitcnt lgkmcnt(0)")
    a("v_max3_f32 v%d, v%d, v%d, v%d" % (vA, vBuf, vBuf + 1, vBuf + 2))
    rest = list(range(vBuf + 3, vBuf + W))
    while rest:
        if len(rest) >= 2:
            a("v_max3_f32 v%d, v%d, v%d, v%d" % (vA, vA, rest[0], rest[1]))
            rest = rest[2:]
        else:
            a("v_max_f32 v%d, v%d, v%d" % (vA, vA, rest[0]))
            rest = rest[1:]
    a("v_sub_f32 v%d, v%d, v%d" % (vAl, vM, vA))
    a("v_mul_f32 v%d, %s, v%d" % (vAl, sC, vAl))
    a("v_exp_f32 v%d, v%d" % (vAl, vAl))
    a("v_mov_b32 v%d, v%d" % (vM, vA))
    a("v_mul_f32 v%d, v%d, v%d" % (vL, vL, vAl))
    for r in range(8):
        h = r % 4
        a("v_mul_f32_dpp v%d, v%d, v%d quad_perm:[%d,%d,%d,%d] %s"
          % (vO + r, vAl, vO + r, h, h, h, h, DPPF))
    a("ds_write_b32 v%d, v%d offset:%d" % (vAdr, vL, ldsL))
    for r in range(8):
        a("ds_write_b32 v%d, v%d offset:%d" % (vB, vO + r, (r // 4) * 1024 + (r % 4) * 256))
    a("s_waitcnt lgkmcnt(0)")
    a("s_barrier")
    a("s_cmp_lg_u32 %s, 0" % sW)
    a("s_cbranch_scc1 L_end")
    vLs = vBuf + 32
    for q in range(W // 4):
        a("ds_read_b128 %s, v%d offset:%d" % (vr(vLs + 4 * q, 4), vAdr2, ldsL + 16 * q))
    for c0 in range(0, W, 4):
        for w in range(4):
            for pl in range(2):
                a("ds_read_b128 %s, v%d offset:%d"
                  % (vr(vBuf + 8 * w + 4 * pl, 4), vVoff, (c0 + w) * 2048 + pl * 1024))
        for w in range(4):
            a("s_waitcnt lgkmcnt(%d)" % (6 - 2 * w))
            if c0 + w == 0:
                continue
            for r in range(8):
                prev = vBuf + r if c0 + w == 1 else vO + r
                a("v_add_f32 v%d, v%d, v%d" % (vO + r, prev, vBuf + 8 * w + r))
    vML = vXY
    a("v_mov_b32 v%d, v%d" % (vML, vM))
    a("v_add_f32 v%d, v%d, v%d" % (vML + 1, vLs, vLs + 1))
    for w in range(2, W):
        a("v_add_f32 v%d, v%d, v%d" % (vML + 1, vML + 1, vLs + w))
    a("s_lshl_b32 %s, %s, 4" % (sT0, sP))
    a("s_add_u32 %s, %s, %s" % (sT0, sT0, sS))
    a("s_lshl_b32 %s, %s, 11" % (sT1, sT0))
    a("v_add_u32 v%d, %s, v%d" % (vA, sT1, vVoff))
    a("s_lshl_b32 %s, %s, 5" % (sT1, sT0))
    a("s_add_u32 %s, %s, 0x100000" % (sT1, sT1))
    a("v_lshl_add_u32 v%d, v%d, 3, %s" % (vB, vLane, sT1))
    a("global_store_dwordx4 v%d, %s, s[18:19] sc1" % (vA, vr(vO, 4)))
    a("global_store_dwordx4 v%d, %s, s[18:19] offset:1024 sc1" % (vA, vr(vO + 4, 4)))
    a("s_lshl_b32 %s, %s, 4" % (sT1, sP))
    a("v_mov_b32 v%d, %s" % (vAl, sT1))
    a("v_mov_b32 v%d, 1" % vNmc)
    a("s_mov_b64 exec, 0xf")
    a("global_store_dwordx2 v%d, %s, s[18:19] sc1" % (vB, vr(vML, 2)))
    a("s_mov_b64 exec, 1")
    a("s_waitcnt vmcnt(0)")
    stamp_at(3)
    a("global_atomic_add v%d, v%d, v%d, s[16:17] sc0" % (vNmc, vAl, vNmc))
    a("s_waitcnt vmcnt(0)")
    a("v_readfirstlane_b32 %s, v%d" % (sT0, vNmc))
    a("s_mov_b64 exec, -1")
    stamp_at(4)
    a("s_nop 3")
    a("s_cmp_lg_u32 %s, %d" % (sT0, S - 1))
    a("s_cbranch_scc1 L_stamp" if (stamp or diagpad) else "s_cbranch_scc1 L_end")

    a("s_lshl_b32 %s, %s, 9" % (sT1, sP))
    a("s_add_u32 %s, %s, 0x100000" % (sT1, sT1))
    a("v_and_b32 v%d, 15, v%d" % (vA, vLane))
    a("v_lshrrev_b32 v%d, 4, v%d" % (vB, vLane))
    a("v_lshl_add_u32 v%d, v%d, 2, v%d" % (vA, vA, vB))
    a("v_lshl_add_u32 v%d, v%d, 3, %s" % (vA, vA, sT1))
    a("global_load_dwordx2 %s, v%d, s[18:19] sc1" % (vr(vML, 2), vA))
    CH = 16 if W <= 8 else 8
    a("s_lshl_b32 %s, %s, 15" % (sT1, sP))
    a("v_add_u32 v%d, %s, v%d" % (vB, sT1, vVoff))
    for c0 in range(0, S, CH):
        for s in range(CH):
            for pl in range(2):
                a("global_load_dwordx4 %s, v%d, s[18:19] offset:%d sc1"
                  % (vr(vBuf + 8 * s + 4 * pl, 4), vB, (s % 2) * 2048 + pl * 1024))
            if s % 2 == 1:
                a("v_add_u32 v%d, 4096, v%d" % (vB, vB))
        if c0 == 0:
            a("s_waitcnt vmcnt(%d)" % (2 * CH))
            a("v_max_f32_dpp v%d, v%d, v%d row_ror:8 %s" % (vA, vML, vML, DPPF))
            for sh in (4, 2, 1):
                a("v_max_f32_dpp v%d, v%d, v%d row_ror:%d %s" % (vA, vA, vA, sh, DPPF))
            a("v_sub_f32 v%d, v%d, v%d" % (vAl, vML, vA))
            a("v_mul_f32 v%d, %s, v%d" % (vAl, sC, vAl))
            a("v_exp_f32 v%d, v%d" % (vAl, vAl))
            a("v_mul_f32 v%d, v%d, v%d" % (vA, vAl, vML + 1))
            for sh in (8, 4, 2, 1):
                a("v_add_f32_dpp v%d, v%d, v%d row_ror:%d %s" % (vA, vA, vA, sh, DPPF))
            a("v_rcp_f32 v%d, v%d" % (vA, vA))
            a("v_mul_f32 v%d, v%d, v%d" % (vAl, vAl, vA))
        for s in range(CH):
            a("s_waitcnt vmcnt(%d)" % (2 * (CH - 1 - s)))
            for r in range(8):
                op = "v_mul_f32_dpp" if c0 + s == 0 else "v_fmac_f32_dpp"
                a("%s v%d, v%d, v%d row_newbcast:%d %s"
                  % (op, vO + r, vAl, vBuf + 8 * s + r, c0 + s, DPPF))
    for r in range(4):
        a("v_cvt_pk_bf16_f32 v%d, v%d, v%d" % (vQ + r, vO + 2 * r, vO + 2 * r + 1))
    a("s_lshl_b32 %s, %s, 10" % (sT1, sP))
    a("v_add_u32 v%d, %s, v%d" % (vA, sT1, vVoff))
    a("global_store_dwordx4 v%d, %s, s[14:15]" % (vA, vr(vQ, 4)))
    if stamp:
        a("s_waitcnt vmcnt(0)")
        a("L_stamp:")
        stamp_at(5)
        a("s_getreg_b32 s52, hwreg(HW_REG_XCC_ID)")
        a("s_getreg_b32 s53, hwreg(HW_REG_HW_ID)")
        a("s_lshl_b32 %s, s2, 6" % sT1)
        a("s_add_u32 %s, %s, 0x200000" % (sT1, sT1))
        a("v_mov_b32 v%d, %s" % (vA, sT1))
        a("s_waitcnt lgkmcnt(0)")
        for i in range(8):
            src = "s%d" % (40 + 2 * i) if i < 6 else "s%d" % (46 + i)
            a("v_mov_b32 v%d, %s" % (vO + i, src))
        a("s_mov_b64 exec, 1")
        a("global_store_dwordx4 v%d, %s, s[18:19]" % (vA, vr(vO, 4)))
        a("global_store_dwordx4 v%d, %s, s[18:19] offset:16" % (vA, vr(vO + 4, 4)))
    if diagpad:
        a("L_stamp:")
        a("s_memrealtime s[58:59]")
        a("s_waitcnt lgkmcnt(0)")
        a("s_sub_u32 s58, s58, s56")
        a("s_cmp_lt_u32 s58, %d" % (diagpad * 100))
        a("s_cbranch_scc1 L_stamp")
    a("L_end:")
    a("s_endpgm")

    nvg = a.max_v()
    acc = (nvg + 3) // 4 * 4
    assert nvg <= 512 // max(1, W // 4), (nvg, W)
    out = HEADER
    out += "; @launch grid=(%d,1,1) block=(%d,1,1) lds=%d\n" % (NWG, 64 * W, LDS)
    out += '.amdgcn_target "amdgcn-amd-amdhsa--gfx950"\n.text\n'
    out += ".globl %s_kernel\n.p2align 8\n.type %s_kernel,@function\n" % (NAME, NAME)
    out += a.text()
    out += """.section .rodata,"a"
.p2align 6
.amdhsa_kernel %s_kernel
  .amdhsa_next_free_vgpr %d
  .amdhsa_next_free_sgpr 64
  .amdhsa_accum_offset %d
  .amdhsa_group_segment_fixed_size 0
  .amdhsa_kernarg_size 72
  .amdhsa_user_sgpr_count 2
  .amdhsa_user_sgpr_kernarg_segment_ptr 1
  .amdhsa_system_sgpr_workgroup_id_x 1
.end_amdhsa_kernel
""" % (NAME, nvg, acc)
    return out


if __name__ == "__main__":
    kw = {}
    for arg in sys.argv[2:]:
        k, v = arg.split("=")
        kw[k] = int(v) if v.lstrip("-").isdigit() else v
    open(sys.argv[1], "w").write(gen(**kw))
```

```python
import math
import struct
import sys

from asmlib import Asm

NAME = "standalone__tree_speculative_verify_tree_attention_over_candidate_token_tree__decode"
HEADER = open("cdna_kernels/%s.s.ref" % NAME).read().split("; Override launch")[0]
DPPF = "row_mask:0xf bank_mask:0xf"


def f32(x):
    return "0x%08x" % struct.unpack("<I", struct.pack("<f", x))[0]


def vr(a, n):
    return "v[%d:%d]" % (a, a + n - 1)


def gen(N=16, D=18, R=4, wgmap="xcd", pol="nt", kpat="quad", pre=1, barfirst=0,
        stamp=0, diagpad=0, diagx=-1):
    C = 4
    G = N // C
    S = 16
    NWG = 16 * S
    SL = 1 << 19
    T = SL // (N * 1024)
    RING = R * N * 1024
    assert G >= 2 and G % 2 == 0 and R % 2 == 0 and RING & (RING - 1) == 0
    assert (R - 2) * N > D - 1 and D <= 2 * N * (T - 1)
    CS = 128 ** -0.5 * math.log2(math.e)
    pol = pol.replace("+", " ").replace("none", "")
    timed = stamp or diagpad
    a = Asm()

    ldsO = RING
    ldsML = ldsO + C * 2048
    LDS = ldsML + C * 512
    WS_ML = 0x100000

    sW, sP, sS, sK, sV, sCnt, sC, sT0, sT1, sIdx, sMask = (
        "s3", "s6", "s7", "s20", "s21", "s22", "s23", "s32", "s33", "s34", "s35")

    def stamp_at(i):
        if timed:
            a("s_memrealtime s[%d:%d]" % (40 + 2 * i, 41 + 2 * i))

    def swap_add(op, swap, x, y, dst):
        a("%s v%d, v%d" % (swap, x, y))
        a("%s v%d, v%d, v%d" % (op, dst, x, y))

    def rows_reduce(op, x, tmp):
        for swap in ("v_permlane16_swap_b32", "v_permlane32_swap_b32"):
            a("v_mov_b32 v%d, v%d" % (tmp, x))
            swap_add(op, swap, x, tmp, x)

    a("%s_kernel:" % NAME)
    a("s_load_dwordx2 s[24:25], s[0:1], 8")
    a("s_load_dwordx2 s[28:29], s[0:1], 16")
    a("s_load_dwordx8 s[12:19], s[0:1], 40")
    stamp_at(0)
    a("v_readfirstlane_b32 %s, v0" % sW)
    a("s_cmp_ge_u32 s2, %d" % NWG)
    a("s_cbranch_scc1 L_end")
    if wgmap == "xcd":
        a("s_and_b32 %s, s2, 15" % sP)
        a("s_lshr_b32 %s, s2, 4" % sS)
    else:
        a("s_lshr_b32 %s, s2, 4" % sP)
        a("s_and_b32 %s, s2, 15" % sS)
    a("s_lshl_b32 %s, %s, 4" % (sIdx, sP))
    a("s_add_u32 %s, %s, %s" % (sIdx, sIdx, sS))
    a("s_mov_b32 %s, %s" % (sC, f32(CS)))
    a("s_cmp_lg_u32 %s, 0" % sW)
    a("s_cbranch_scc1 L_cons")

    vKoff, vVoff, vA, vB = 1, 2, 3, 4
    vCntA, vCnt, vMLrd, vOrd0, vOrd1, vPubO, vPubML, vInO, vInML, vOut, vF = range(5, 16)
    vML, vX, vAcc, vBuf = 16, 20, 28, 36
    a("s_setprio 3")
    a("s_lshl_b32 %s, %s, 19" % (sK, sIdx))
    a("s_mov_b32 %s, %s" % (sV, sK))
    a("s_add_u32 s26, %s, %d" % (sK, SL))
    a("s_mov_b32 s30, s26")
    a("s_mov_b32 s27, 0x00020000")
    a("s_mov_b32 s31, 0x00020000")
    a("s_mov_b32 m0, 0")
    a("v_lshlrev_b32 v%d, 4, v0" % vVoff)
    if kpat == "quad":
        a("v_lshrrev_b32 v%d, 4, v0" % vA)
        a("v_and_b32 v%d, 0x30, v%d" % (vB, vVoff))
        a("v_lshl_add_u32 v%d, v%d, 6, v%d" % (vA, vA, vB))
        a("v_bfe_u32 v%d, v0, 2, 2" % vB)
        a("v_lshl_add_u32 v%d, v%d, 8, v%d" % (vKoff, vB, vA))
    else:
        vKoff = vVoff

    def load(i):
        isv = (i // N) % 2
        srd, so, vo = ("s[28:31]", sV, vVoff) if isv else ("s[24:27]", sK, vKoff)
        a("buffer_load_dwordx4 v%d, %s, %s offen offset:%d %s lds"
          % (vo, srd, so, (i % 4) * 1024, pol))
        if i % 4 == 3:
            a("s_add_u32 m0, m0, 4096")
            if (i + 1) % (2 * N) == 0:
                a("s_and_b32 m0, m0, %d" % (RING - 1))
            a("s_add_u32 %s, %s, 4096" % (so, so))

    a("s_waitcnt lgkmcnt(0)")
    stamp_at(1)
    for i in range(D):
        load(i)
    a("s_lshl_b32 %s, %s, 4" % (sT0, sP))
    a("v_mov_b32 v%d, %s" % (vCntA, sT0))
    a("v_lshrrev_b32 v%d, 4, v0" % vA)
    a("v_and_b32 v%d, 15, v0" % vB)
    a("v_lshlrev_b32 v%d, 7, v%d" % (vMLrd, vB))
    a("v_lshl_add_u32 v%d, v%d, 3, v%d" % (vMLrd, vA, vMLrd))
    a("v_add_u32 v%d, %d, v%d" % (vMLrd, ldsML, vMLrd))
    a("v_and_b32 v%d, 1, v0" % vOrd0)
    a("v_mul_u32_u24 v%d, 24, v%d" % (vOrd0, vOrd0))
    a("v_bfe_u32 v%d, v0, 1, 3" % vOrd1)
    a("v_add_u32 v%d, v%d, v%d" % (vOrd0, vOrd0, vOrd1))
    a("v_lshl_add_u32 v%d, v%d, 5, v%d" % (vOrd0, vA, vOrd0))
    a("v_lshlrev_b32 v%d, 4, v%d" % (vOrd0, vOrd0))
    a("v_add_u32 v%d, %d, v%d" % (vOrd0, ldsO, vOrd0))
    a("v_xor_b32 v%d, 0x80, v%d" % (vOrd1, vOrd0))
    a("s_lshl_b32 %s, %s, 11" % (sT0, sIdx))
    a("v_lshl_add_u32 v%d, v%d, 5, v%d" % (vPubO, vA, vB))
    a("v_lshl_add_u32 v%d, v%d, 4, %s" % (vPubO, vPubO, sT0))
    a("s_lshl_b32 %s, %s, 7" % (sT0, sIdx))
    a("s_add_u32 %s, %s, %d" % (sT0, sT0, WS_ML))
    a("v_lshl_add_u32 v%d, v%d, 3, %s" % (vPubML, vA, sT0))
    a("v_lshrrev_b32 v%d, 2, v0" % vA)
    a("v_and_b32 v%d, 3, v0" % vB)
    a("s_lshl_b32 %s, %s, 8" % (sT0, sP))
    a("s_add_u32 %s, %s, %s" % (sT0, sT0, sS))
    a("s_lshl_b32 %s, %s, 7" % (sT0, sT0))
    a("v_lshl_add_u32 v%d, v%d, 7, v%d" % (vInO, vA, vB))
    a("v_lshl_add_u32 v%d, v%d, 4, %s" % (vInO, vInO, sT0))
    a("s_lshl_b32 %s, %s, 11" % (sT0, sP))
    a("s_lshr_b32 %s, %s, 2" % (sT1, sS))
    a("s_lshl_b32 %s, %s, 3" % (sT1, sT1))
    a("s_add_u32 %s, %s, %s" % (sT0, sT0, sT1))
    a("s_add_u32 %s, %s, %d" % (sT0, sT0, WS_ML))
    a("v_lshl_add_u32 v%d, v%d, 7, %s" % (vInML, vA, sT0))
    a("v_lshrrev_b32 v%d, 5, v0" % vA)
    a("v_lshl_add_u32 v%d, v%d, 2, v%d" % (vA, vA, vB))
    a("v_bfe_u32 v%d, v0, 4, 1" % vB)
    a("v_lshl_add_u32 v%d, v%d, 1, v%d" % (vA, vA, vB))
    a("s_lshl_b32 %s, %s, 6" % (sT0, sIdx))
    a("v_lshl_add_u32 v%d, v%d, 2, %s" % (vOut, vA, sT0))
    body_iters = (2 * N * T - D) // (2 * N)
    a("s_mov_b32 %s, %d" % (sCnt, body_iters))
    if timed:
        a("s_waitcnt vmcnt(%d)" % (D - 1))
        stamp_at(2)

    def step(i):
        bar = (i + 1 - D) % N == 0
        a("s_waitcnt vmcnt(%d)" % (D - 1))
        if bar and barfirst:
            a("s_barrier")
        load(i)
        if bar and not barfirst:
            a("s_barrier")

    a(".p2align 3")
    a("L_load:")
    for i in range(D, D + 2 * N):
        step(i)
    a("s_sub_u32 %s, %s, 1" % (sCnt, sCnt))
    a("s_cmp_lg_u32 %s, 0" % sCnt)
    a("s_cbranch_scc1 L_load")
    first = D + 2 * N * body_iters
    for i in range(first, 2 * N * T):
        step(i)
    a("s_mov_b64 exec, 1")
    a("global_load_dword v%d, v%d, s[16:17] sc1" % (vCnt, vCntA))
    a("s_mov_b64 exec, -1")
    a("s_mov_b32 %s, 0x200000" % sCnt)
    done = (2 * N * T - D) // N
    for h in range(done, 2 * T):
        a("s_waitcnt vmcnt(%d)" % ((2 * T - 1 - h) * N + 1))
        a("s_barrier")
    stamp_at(3)

    a("ds_read2_b64 %s, v%d offset0:0 offset1:4" % (vr(vX, 4), vMLrd))
    a("s_waitcnt lgkmcnt(0)")
    a("v_max_f32_dpp v%d, v%d, v%d row_ror:4 %s" % (vML, vX, vX, DPPF))
    a("v_add_f32 v%d, v%d, v%d" % (vML + 1, vX + 1, vX + 3))
    a("v_max_f32_dpp v%d, v%d, v%d row_ror:8 %s" % (vML, vML, vML, DPPF))
    a("v_sub_f32 v%d, v%d, v%d" % (vF, vX, vML))
    a("v_mul_f32 v%d, %s, v%d" % (vF, sC, vF))
    a("v_exp_f32 v%d, v%d" % (vF, vF))
    a("v_min_u32 v%d, -2, v%d" % (vML, vML))
    a("v_mul_f32 v%d, v%d, v%d" % (vML + 1, vML + 1, vF))
    for sh in (8, 4, 2, 1):
        a("v_add_f32_dpp v%d, v%d, v%d row_ror:%d %s" % (vML + 1, vML + 1, vML + 1, sh, DPPF))
    a("v_min_u32 v%d, -2, v%d" % (vML + 1, vML + 1))
    a("s_mov_b32 exec_lo, 0x00010001")
    a("s_mov_b32 exec_hi, 0x00010001")
    a("global_store_dwordx2 v%d, %s, s[18:19] sc1" % (vPubML, vr(vML, 2)))
    a("s_mov_b64 exec, -1")
    a("s_waitcnt vmcnt(1)")
    a("L_cnt:")
    a("v_readfirstlane_b32 %s, v%d" % (sT0, vCnt))
    a("s_nop 1")
    a("s_cmp_ge_u32 %s, %d" % (sT0, S))
    a("s_cbranch_scc0 L_cnt_again")
    a("s_barrier")
    for k in range(2):
        for c in range(C):
            a("ds_read_b128 %s, v%d offset:%d"
              % (vr(vBuf + 16 * k + 4 * c, 4), vOrd1 if k else vOrd0, c * 2048))
    for k in range(2):
        for c in range(C):
            a("s_waitcnt lgkmcnt(%d)" % (7 - 4 * k - c))
            for r in range(4):
                a("%s v%d, v%d, v%d row_newbcast:%d %s"
                  % ("v_fmac_f32_dpp" if c else "v_mul_f32_dpp", vAcc + 4 * k + r, vF,
                     vBuf + 16 * k + 4 * c + r, 4 * c, DPPF))
        for r in range(4):
            a("v_min_u32 v%d, -2, v%d" % (vAcc + 4 * k + r, vAcc + 4 * k + r))
        a("global_store_dwordx4 v%d, %s, s[18:19] offset:%d sc1"
          % (vPubO, vr(vAcc + 4 * k, 4), 256 * k))
    stamp_at(4)
    a("L_poll:")
    a("global_load_dwordx2 %s, v%d, s[18:19] sc1" % (vr(vML, 2), vInML))
    a("global_load_dwordx4 %s, v%d, s[18:19] sc1" % (vr(vX, 4), vInO))
    a("global_load_dwordx4 %s, v%d, s[18:19] offset:64 sc1" % (vr(vX + 4, 4), vInO))
    a("s_sub_u32 %s, %s, 1" % (sCnt, sCnt))
    a("s_cbranch_scc1 L_end")
    a("s_waitcnt vmcnt(1)")
    a("v_max3_u32 v%d, v%d, v%d, v%d" % (vA, vML, vML + 1, vX))
    a("v_max3_u32 v%d, v%d, v%d, v%d" % (vB, vX + 1, vX + 2, vX + 3))
    a("s_waitcnt vmcnt(0)")
    a("v_max3_u32 v%d, v%d, v%d, v%d" % (vA, vA, vX + 4, vX + 5))
    a("v_max3_u32 v%d, v%d, v%d, v%d" % (vB, vB, vX + 6, vX + 7))
    a("v_max_u32 v%d, v%d, v%d" % (vA, vA, vB))
    a("v_cmp_eq_u32 vcc, -1, v%d" % vA)
    a("s_nop 1")
    a("s_and_b64 exec, exec, vcc")
    a("s_cbranch_scc1 L_poll")
    a("s_mov_b64 exec, -1")
    stamp_at(5)
    a("v_max_f32_dpp v%d, v%d, v%d row_ror:4 %s" % (vA, vML, vML, DPPF))
    a("v_max_f32_dpp v%d, v%d, v%d row_ror:8 %s" % (vA, vA, vA, DPPF))
    rows_reduce("v_max_f32", vA, vB)
    a("v_sub_f32 v%d, v%d, v%d" % (vF, vML, vA))
    a("v_mul_f32 v%d, %s, v%d" % (vF, sC, vF))
    a("v_exp_f32 v%d, v%d" % (vF, vF))
    a("v_mul_f32 v%d, v%d, v%d" % (vA, vF, vML + 1))
    a("v_mul_f32 v%d, v%d, v%d" % (vB, vF, vML + 1))
    for r in range(8):
        a("v_mul_f32 v%d, v%d, v%d" % (vX + r, vF, vX + r))
    swap_add("v_add_f32", "v_permlane32_swap_b32", vA, vB, vA)
    for e in range(4):
        a("v_permlane32_swap_b32 v%d, v%d" % (vX + e, vX + 4 + e))
    a("v_mov_b32 v%d, v%d" % (vB, vA))
    for e in range(4):
        a("v_add_f32 v%d, v%d, v%d" % (vX + e, vX + e, vX + 4 + e))
    swap_add("v_add_f32", "v_permlane16_swap_b32", vA, vB, vA)
    for e in range(2):
        a("v_permlane16_swap_b32 v%d, v%d" % (vX + e, vX + 2 + e))
    for e in range(2):
        a("v_add_f32 v%d, v%d, v%d" % (vX + e, vX + e, vX + 2 + e))
    for sh in (4, 8):
        for x in (vA, vX, vX + 1):
            a("v_add_f32_dpp v%d, v%d, v%d row_ror:%d %s" % (x, x, x, sh, DPPF))
    a("v_rcp_f32 v%d, v%d" % (vA, vA))
    a("s_mov_b32 exec_lo, 0x000f000f")
    a("s_mov_b32 exec_hi, 0x000f000f")
    a("v_mul_f32 v%d, v%d, v%d" % (vX, vX, vA))
    a("v_mul_f32 v%d, v%d, v%d" % (vX + 1, vX + 1, vA))
    a("v_cvt_pk_bf16_f32 v%d, v%d, v%d" % (vX, vX, vX + 1))
    a("global_store_dword v%d, v%d, s[14:15]" % (vOut, vX))
    if timed:
        a("s_waitcnt vmcnt(0)")
        stamp_at(6)
        a("s_waitcnt lgkmcnt(0)")
    if stamp:
        a("s_getreg_b32 s54, hwreg(HW_REG_XCC_ID)")
        a("s_lshl_b32 %s, s2, 6" % sT1)
        a("s_add_u32 %s, %s, 0x200000" % (sT1, sT1))
        a("v_mov_b32 v%d, %s" % (vA, sT1))
        for i in range(8):
            a("v_mov_b32 v%d, s%d" % (vBuf + i, 40 + 2 * i))
        a("s_mov_b64 exec, 1")
        a("global_store_dwordx4 v%d, %s, s[18:19]" % (vA, vr(vBuf, 4)))
        a("global_store_dwordx4 v%d, %s, s[18:19] offset:16" % (vA, vr(vBuf + 4, 4)))
    if diagpad:
        if diagx >= 0:
            lo, hi = diagx // 10, diagx % 10
            a("s_sub_u32 s56, s%d, s%d" % (40 + 2 * hi, 40 + 2 * lo))
            a("s_mul_i32 s56, s56, 10")
            a("s_add_u32 s56, s56, %d" % (diagpad * 100))
        else:
            a("s_mov_b32 s56, %d" % (diagpad * 100))
        a("L_pad:")
        a("s_memrealtime s[58:59]")
        a("s_waitcnt lgkmcnt(0)")
        a("s_sub_u32 s58, s58, s40")
        a("s_cmp_lt_u32 s58, s56")
        a("s_cbranch_scc1 L_pad")
    a("L_end:")
    a("s_endpgm")
    a("L_cnt_again:")
    a("s_sub_u32 %s, %s, 1" % (sCnt, sCnt))
    a("s_cbranch_scc1 L_end")
    a("s_mov_b64 exec, 1")
    a("global_load_dword v%d, v%d, s[16:17] sc1" % (vCnt, vCntA))
    a("s_mov_b64 exec, -1")
    a("s_waitcnt vmcnt(0)")
    a("s_branch L_cnt")

    vLane, vRd, vRdK, vMX, vMY, vAl, vNmc, vA, vB, vWO0, vWO1, vWML = range(1, 13)
    vM, vL = 14, 15
    vQ, vO, vT = 16, 20, 28
    vXY = vT + G // 2 + (G // 2) % 2
    vD = (vXY + 2 * G + 3) // 4 * 4
    vK = vD + 4 * G
    vPre = vK + max(4 * G, 12)

    def fold_a(t, d):
        a("v_add_f32_dpp v%d, v%d, v%d row_ror:12 row_mask:0xf bank_mask:0x1" % (t, d + 1, d))
        a("v_add_f32_dpp v%d, v%d, v%d row_ror:12 row_mask:0xf bank_mask:0x4" % (t, d + 3, d + 2))

    def fold_b(t, d):
        a("v_add_f32_dpp v%d, v%d, v%d row_ror:4 row_mask:0xf bank_mask:0x2" % (t, d, d + 1))
        a("v_add_f32_dpp v%d, v%d, v%d row_ror:4 row_mask:0xf bank_mask:0x8" % (t, d + 2, d + 3))

    def fold_c(t):
        a("v_add_f32_dpp v%d, v%d, v%d row_ror:8 %s" % (t, t, t, DPPF))

    a("L_cons:")
    a("s_load_dwordx2 s[4:5], s[0:1], 0")
    a("s_load_dwordx4 s[8:11], s[0:1], 24")
    a("v_and_b32 v%d, 63, v0" % vLane)
    if pre:
        a("s_getpc_b64 s[36:37]")
        a("L_pc:")
        a("s_sub_u32 s36, s36, L_pc-%s_kernel" % NAME)
        a("s_subb_u32 s37, s37, 0")
        a("v_lshlrev_b32 v%d, 6, v%d" % (vA, vLane))
        a("v_min_u32 v%d, L_last-%s_kernel, v%d" % (vA, NAME, vA))
        a("global_load_dword v%d, v%d, s[36:37]" % (vPre, vA))
    a("s_lshr_b32 %s, %s, 6" % (sW, sW))
    a("s_sub_u32 %s, %s, 1" % (sW, sW))
    a("v_lshrrev_b32 v%d, 4, v%d" % (vA, vLane))
    a("v_lshlrev_b32 v%d, 6, v%d" % (vA, vA))
    a("v_and_b32 v%d, 3, v%d" % (vB, vLane))
    a("v_bfe_u32 v%d, v%d, 2, 2" % (vAl, vLane))
    a("v_lshl_add_u32 v%d, v%d, 4, v%d" % (vNmc, vB, vA))
    a("v_lshl_add_u32 v%d, v%d, 8, v%d" % (vRdK, vAl, vNmc))
    a("v_lshl_add_u32 v%d, v%d, 8, v%d" % (vA, vB, vA))
    a("v_lshl_add_u32 v%d, v%d, 4, v%d" % (vA, vAl, vA))
    a("v_lshlrev_b32 v%d, 4, v%d" % (vRd, vLane))
    a("s_lshl_b32 %s, %s, 10" % (sT0, sP))
    a("s_lshl_b32 %s, %s, 8" % (sT1, sP))
    a("v_add_u32 v%d, %s, v%d" % (vA, sT0, vA))
    a("v_add_u32 v%d, %s, v%d" % (vNmc, sT1, vNmc))
    a("v_and_b32 v%d, 0xf0, v%d" % (vB, vRd))
    a("v_add_u32 v%d, %s, v%d" % (vB, sT1, vB))
    a("s_lshl_b32 %s, %s, 11" % (sT0, sIdx))
    a("v_add_u32 v%d, %s, v%d" % (vWO0, sT0, vRd))
    a("s_lshl_b32 %s, %s, 7" % (sT0, sIdx))
    a("s_add_u32 %s, %s, %d" % (sT0, sT0, WS_ML))
    a("v_add_u32 v%d, %s, v%d" % (vWO1, sT0, vRd))
    a("s_lshl_b32 %s, %s, 4" % (sT0, sP))
    a("v_mov_b32 v%d, %s" % (vWML, sT0))
    for r in range(4):
        a("v_mov_b32 v%d, -1" % (vD + r))
    a("v_mov_b32 v%d, 1" % vAl)
    a("s_waitcnt lgkmcnt(0)")
    a("global_load_dwordx4 %s, v%d, s[4:5]" % (vr(vQ, 4), vA))
    a("global_load_dwordx4 %s, v%d, s[8:9]" % (vr(vK, 4), vNmc))
    a("global_load_dwordx4 %s, v%d, s[10:11]" % (vr(vK + 4, 4), vB))
    a("s_load_dword %s, s[12:13], 0" % sMask)
    a("s_cmp_lg_u32 %s, %d" % (sW, C - 1))
    a("s_cbranch_scc1 L_noclear")
    a("global_store_dwordx4 v%d, %s, s[18:19] sc1" % (vWO0, vr(vD, 4)))
    a("global_store_dwordx4 v%d, %s, s[18:19] offset:1024 sc1" % (vWO0, vr(vD, 4)))
    a("s_mov_b64 exec, 3")
    a("global_store_dwordx4 v%d, %s, s[18:19] sc1" % (vWO1, vr(vD, 4)))
    a("s_mov_b64 exec, 1")
    a("s_waitcnt vmcnt(0)")
    a("global_atomic_add v%d, v%d, s[16:17]" % (vWML, vAl))
    a("s_mov_b64 exec, -1")
    a("s_branch L_cleared")
    a("L_noclear:")
    a("s_waitcnt vmcnt(0)")
    a("L_cleared:")
    a("s_mul_i32 %s, %s, %d" % (sT0, sW, G * 1024))
    if kpat == "quad":
        vRdK = vRd
    else:
        a("v_add_u32 v%d, %s, v%d" % (vRdK, sT0, vRdK))
    a("v_add_u32 v%d, %s, v%d" % (vRd, sT0, vRd))
    a("s_lshl_b32 %s, %s, 9" % (sT0, sW))
    a("s_add_u32 %s, %s, %d" % (sT0, sT0, ldsML))
    a("v_lshl_add_u32 v%d, v%d, 3, %s" % (vWML, vLane, sT0))
    a("v_bfe_u32 v%d, v%d, 4, 1" % (vA, vLane))
    a("v_bfe_u32 v%d, v%d, 5, 1" % (vB, vLane))
    a("v_lshl_add_u32 v%d, v%d, 1, v%d" % (vA, vA, vB))
    a("v_and_b32 v%d, 15, v%d" % (vB, vLane))
    a("v_lshl_add_u32 v%d, v%d, 2, v%d" % (vA, vB, vA))
    a("s_lshl_b32 %s, %s, 11" % (sT0, sW))
    a("s_add_u32 %s, %s, %d" % (sT0, sT0, ldsO))
    a("v_lshl_add_u32 v%d, v%d, 2, %s" % (vWO0, vA, sT0))
    a("v_xor_b32 v%d, 0x80, v%d" % (vWO1, vWO0))
    a("v_and_b32 v%d, 8, v%d" % (vA, vLane))
    a("v_lshlrev_b32 v%d, 1, v%d" % (vA, vA))
    a("v_mov_b32 v%d, 0xffff" % vB)
    a("v_lshlrev_b32 v%d, v%d, v%d" % (vA, vA, vB))
    a("v_bfe_i32 v%d, v%d, 2, 1" % (vB, vLane))
    a("v_and_b32 v%d, v%d, v%d" % (vMY, vA, vB))
    a("v_xor_b32 v%d, v%d, v%d" % (vMX, vA, vMY))
    a("s_or_b32 %s, %s, %s" % (sT0, sS, sW))
    a("s_cmp_eq_u32 %s, 0" % sT0)
    a("s_cselect_b32 %s, 0x3f803f80, 0" % sT0)
    a("v_mov_b32 v%d, %s" % (vA, sT0))
    a("v_cmp_gt_u32 vcc, 16, v%d" % vLane)
    a("v_mfma_f32_16x16x32_bf16 %s, %s, %s, 0" % (vr(vD, 4), vr(vK, 4), vr(vQ, 4)))
    a("v_not_b32 v%d, v%d" % (vB, vB))
    a("v_cndmask_b32 v%d, 0, v%d, vcc" % (vA, vA))
    a("v_and_b32 v%d, 0xffff0000, v%d" % (vB, vB))
    a("v_and_b32 v%d, v%d, v%d" % (vXY, vA, vMX))
    a("v_and_b32 v%d, v%d, v%d" % (vXY + 1, vA, vMY))
    a("v_and_b32 v%d, v%d, v%d" % (vL, vA, vB))
    a("s_lshr_b32 %s, %s, 3" % (sT0, sP))
    a("s_lshl_b32 %s, %s, 4" % (sT0, sT0))
    a("v_mfma_f32_16x16x16_bf16 %s, %s, %s, 0" % (vr(vO, 4), vr(vXY, 2), vr(vK + 4, 2)))
    a("v_mfma_f32_16x16x16_bf16 %s, %s, %s, 0" % (vr(vO + 4, 4), vr(vXY, 2), vr(vK + 6, 2)))
    a("s_waitcnt lgkmcnt(0)")
    a("s_lshr_b32 %s, %s, %s" % (sMask, sMask, sT0))
    a("s_lshl_b32 %s, %s, 16" % (sMask, sMask))
    a("v_mov_b32 v%d, %s" % (vA, sMask))
    a("v_sub_f32 v%d, 1.0, v%d" % (vA, vA))
    a("v_mul_f32 v%d, %s, v%d" % (vA, f32(-1e9 * 128 ** 0.5), vA))
    fold_a(vM, vD)
    fold_b(vM, vD)
    fold_c(vM)
    a("v_add_f32 v%d, v%d, v%d" % (vM, vM, vA))
    a("s_mov_b32 %s, %d" % (sCnt, T))

    a(".p2align 3")
    a("L_tile:")
    l0 = a.mark()
    a("s_barrier")
    for j in range(G):
        a("ds_read_b128 %s, v%d offset:%d" % (vr(vK + 4 * j, 4), vRdK, j * 1024))
    for j in range(G):
        a("s_waitcnt lgkmcnt(%d)" % (G - 1 - j))
        a("v_mfma_f32_16x16x32_bf16 %s, %s, %s, 0"
          % (vr(vD + 4 * j, 4), vr(vK + 4 * j, 4), vr(vQ, 4)))
    for part in range(4):
        for i in range(G // 2):
            t, da, db = vT + i, vD + 8 * i, vD + 8 * i + 4
            src, own, ror, bank = ((da + 1, da, 12, 1), (da + 3, da + 2, 12, 4),
                                   (db, db + 1, 4, 2), (db + 2, db + 3, 4, 8))[part]
            a("v_add_f32_dpp v%d, v%d, v%d row_ror:%d row_mask:0xf bank_mask:0x%x"
              % (t, src, own, ror, bank))
    for i in range(G // 2):
        fold_c(vT + i)
    srcs = [vT + i for i in range(G // 2)]
    cur = vM
    while srcs:
        if len(srcs) >= 2:
            a("v_max3_f32 v%d, v%d, v%d, v%d" % (vA, cur, srcs[0], srcs[1]))
            srcs = srcs[2:]
        else:
            a("v_max_f32 v%d, v%d, v%d" % (vA, cur, srcs[0]))
            srcs = srcs[1:]
        cur = vA
    a("v_max_f32_dpp v%d, v%d, v%d row_ror:4 %s" % (vA, vA, vA, DPPF))
    rows_reduce("v_max_f32", vA, vB)
    a("v_sub_f32 v%d, v%d, v%d" % (vAl, vM, vA))
    a("v_mul_f32 v%d, %s, v%d" % (vNmc, f32(-CS), vA))
    a("v_mul_f32 v%d, %s, v%d" % (vAl, sC, vAl))
    a("v_mov_b32 v%d, v%d" % (vM, vA))
    a("v_exp_f32 v%d, v%d" % (vAl, vAl))
    for i in range(G // 2):
        a("v_fma_f32 v%d, v%d, %s, v%d" % (vT + i, vT + i, sC, vNmc))
    for i in range(G // 2):
        a("v_exp_f32 v%d, v%d" % (vT + i, vT + i))
    for r in range(8):
        h = r % 4
        a("v_mul_f32_dpp v%d, v%d, v%d quad_perm:[%d,%d,%d,%d] %s"
          % (vO + r, vAl, vO + r, h, h, h, h, DPPF))
    a("v_fma_f32 v%d, v%d, v%d, v%d" % (vL, vL, vAl, vT))
    for i in range(1, G // 2):
        a("v_add_f32 v%d, v%d, v%d" % (vL, vL, vT + i))
    for i in range(G // 2):
        a("v_cvt_pk_bf16_f32 v%d, v%d, v%d" % (vT + i, vT + i, vT + i))
    a("ds_write_b64 v%d, %s" % (vWML, vr(vM, 2)))
    for i in range(G // 2):
        x, p = vXY + 4 * i, vT + i
        a("v_and_b32 v%d, v%d, v%d" % (x, p, vMX))
        a("v_and_b32 v%d, v%d, v%d" % (x + 3, p, vMY))
        a("v_and_b32_dpp v%d, v%d, v%d row_ror:4 %s" % (x + 1, p, vMY, DPPF))
        a("v_and_b32_dpp v%d, v%d, v%d row_ror:4 %s" % (x + 2, p, vMX, DPPF))
    a("s_sub_u32 %s, %s, 1" % (sCnt, sCnt))
    a("s_waitcnt lgkmcnt(0)")
    a("s_barrier")
    for j in range(G):
        a("ds_read_b128 %s, v%d offset:%d" % (vr(vK + 4 * j, 4), vRd, (N + j) * 1024))
    for rd in sorted({vRd, vRdK}):
        if R == 4:
            a("v_xor_b32 v%d, %d, v%d" % (rd, 2 * N * 1024, rd))
        else:
            a("v_add_u32 v%d, %d, v%d" % (rd, 2 * N * 1024, rd))
            a("v_and_b32 v%d, %d, v%d" % (rd, RING - 1, rd))
    a("s_cmp_lg_u32 %s, 0" % sCnt)
    for j in range(G):
        a("s_waitcnt lgkmcnt(%d)" % (G - 1 - j))
        for k in range(2):
            a("v_mfma_f32_16x16x16_bf16 %s, %s, %s, %s"
              % (vr(vO + 4 * k, 4), vr(vXY + 2 * j, 2), vr(vK + 4 * j + 2 * k, 2),
                 vr(vO + 4 * k, 4)))
    a("s_cbranch_scc1 L_tile")
    a.loop_check(l0)
    for r in range(8):
        a("ds_write_b32 v%d, v%d offset:%d"
          % (vWO1 if r >= 4 else vWO0, vO + r, (r % 4) * 512 + (r // 4) * 256))
    a("s_waitcnt lgkmcnt(0)")
    a("s_barrier")
    a("L_last:")
    a("s_endpgm")

    nvg = a.max_v()
    acc = (nvg + 3) // 4 * 4
    out = HEADER
    out += "; @launch grid=(%d,1,1) block=(%d,1,1) lds=%d\n" % (NWG, 64 * (C + 1), LDS)
    out += '.amdgcn_target "amdgcn-amd-amdhsa--gfx950"\n.text\n'
    out += ".globl %s_kernel\n.p2align 8\n.type %s_kernel,@function\n" % (NAME, NAME)
    out += a.text()
    out += """.section .rodata,"a"
.p2align 6
.amdhsa_kernel %s_kernel
  .amdhsa_next_free_vgpr %d
  .amdhsa_next_free_sgpr 64
  .amdhsa_accum_offset %d
  .amdhsa_group_segment_fixed_size 0
  .amdhsa_kernarg_size 72
  .amdhsa_user_sgpr_count 2
  .amdhsa_user_sgpr_kernarg_segment_ptr 1
  .amdhsa_system_sgpr_workgroup_id_x 1
.end_amdhsa_kernel
""" % (NAME, nvg, acc)
    return out


if __name__ == "__main__":
    kw = {}
    for arg in sys.argv[2:]:
        k, v = arg.split("=")
        kw[k] = int(v) if v.lstrip("-").isdigit() else v
    open(sys.argv[1], "w").write(gen(**kw))
```

```python
import math
import struct
import sys

from asmlib import Asm

NAME = "standalone__tree_speculative_verify_tree_attention_over_candidate_token_tree__decode"
HEADER = open("cdna_kernels/%s.s.ref" % NAME).read().split("; Override launch")[0]
DPPF = "row_mask:0xf bank_mask:0xf"

ORDERS = {
    "seq": ((19, 20, 21, 22), (14, 15, 16, 17, 18), ()),
    "rowset": ((14, 15, 16, 21), (19, 20, 17, 18, 22), ((1, 12), (2, 11))),
    "2set": ((14, 15, 21, 17), (16, 19, 20, 18, 22), ((1, 12), (3, 11))),
    "2setb": ((14, 15, 21, 18), (16, 19, 20, 17, 22), ((1, 12),)),
    "4set": ((14, 21, 17, 18), (15, 16, 19, 20, 22), ((2, 12),)),
}


def f32(x):
    return "0x%08x" % struct.unpack("<I", struct.pack("<f", x))[0]


def vr(a, n):
    return "v[%d:%d]" % (a, a + n - 1)


def gen(D=26, D0=19, fb=8, bias=2, order="2set", pre=1, stamp=0, diagpad=0, diagx=-1,
        force=0):
    N, R, C, G, S = 16, 4, 4, 4, 16
    NWG = 16 * S
    T = 32
    RING = R * N * 1024
    assert (R - 2) * N > D - 1 and N + 2 <= D <= 2 * N
    CS = 128 ** -0.5 * math.log2(math.e)
    timed = stamp or diagpad
    sbits, tbits, xs = ORDERS[order]
    a = Asm()

    ldsO = RING
    ldsML = ldsO + C * 2048
    LDS = ldsML + C * 512
    WS_ML = 0x100000
    DBG_PROG = 128
    READY = 2

    sW, sP, sS, sK, sCnt, sC, sT0, sT1, sIdx, sMask = (
        "s3", "s6", "s7", "s20", "s22", "s23", "s32", "s33", "s34", "s35")
    sBase, sTile, sTK, sTV = "s36", "s37", "s38", "s39"
    sProg, sKd, sRnd, sSlow = "s4", "s5", "s8", "s9"

    def stamp_at(i):
        if timed:
            a("s_memrealtime s[%d:%d]" % (40 + 2 * i, 41 + 2 * i))

    def swap_add(op, swap, x, y, dst):
        a("%s v%d, v%d" % (swap, x, y))
        a("%s v%d, v%d, v%d" % (op, dst, x, y))

    def rows_reduce(op, x, tmp):
        for swap in ("v_permlane16_swap_b32", "v_permlane32_swap_b32"):
            a("v_mov_b32 v%d, v%d" % (tmp, x))
            swap_add(op, swap, x, tmp, x)

    def scatter(dst, src, bits, first):
        i = 0
        while i < len(bits):
            n = 1
            while (i + n < len(bits) and bits[i + n][0] == bits[i][0] + n
                   and bits[i + n][1] == bits[i][1] + n):
                n += 1
            a("s_bfe_u32 %s, %s, 0x%x" % (sT0, src, n << 16 | bits[i][0]))
            a("s_lshl_b32 %s, %s, %d" % (sT0, sT0, bits[i][1]))
            a("s_xor_b32 %s, %s, %s" % (dst, first, sT0))
            first = dst
            i += n

    a("%s_kernel:" % NAME)
    a("s_load_dwordx2 s[24:25], s[0:1], 8")
    a("s_load_dwordx2 s[28:29], s[0:1], 16")
    a("s_load_dwordx8 s[12:19], s[0:1], 40")
    stamp_at(0)
    a("v_readfirstlane_b32 %s, v0" % sW)
    a("s_cmp_ge_u32 s2, %d" % NWG)
    a("s_cbranch_scc1 L_end")
    a("s_and_b32 %s, s2, 15" % sP)
    a("s_lshr_b32 %s, s2, 4" % sS)
    a("s_cmp_eq_u32 %s, 0" % sW)
    a("s_cbranch_scc1 L_loader")
    if pre:
        a("; the first workgroups pull the code into L2")
        a("s_sub_u32 %s, %s, 64" % (sT0, sW))
        a("s_or_b32 %s, %s, %s" % (sT0, sT0, sS))
        a("s_cbranch_scc1 L_cons")
        a("s_getpc_b64 s[36:37]")
        a("L_pc:")
        a("v_lshlrev_b32 v1, 7, v0")
        a("v_and_b32 v1, 0x1fff, v1")
        a("v_min_u32 v1, L_last-L_pc, v1")
        a("global_load_dword v2, v1, s[36:37]")
    a("s_branch L_cons")

    vKoff, vVoff, vA, vB = 1, 2, 3, 4
    vCntA, vCnt, vMLrd, vOrd0, vOrd1, vPubO, vPubML, vInO, vInML, vOut, vF = range(5, 16)
    vML, vMLi, vX, vAcc, vBuf = 16, 18, 20, 28, 36
    vOob, vSlot, vPeerA, vVal, vPeer, vDum = 68, 69, 70, 71, 72, 74
    vKo, vVo = [75, 76], [77, 78]
    vSt = 79
    a("L_loader:")
    a("s_setprio 3")
    a("s_lshl_b32 %s, %s, 23" % (sBase, sP))
    scatter(sBase, sS, list(enumerate(sbits)) + [x for x in xs if x[1] >= 12], sBase)
    a("s_mov_b32 %s, 0" % sTile)
    a("s_mov_b32 %s, %s" % (sTK, sBase))
    a("s_mov_b32 %s, %s" % (sK, sBase))
    a("s_mov_b32 s26, 0x8000000")
    a("s_mov_b32 s30, s26")
    a("s_mov_b32 s27, 0x00020000")
    a("s_mov_b32 s31, s27")
    a("s_mov_b32 m0, 0")
    a("v_lshlrev_b32 v%d, 4, v0" % vVoff)
    a("v_lshrrev_b32 v%d, 4, v0" % vA)
    a("v_and_b32 v%d, 0x30, v%d" % (vB, vVoff))
    a("v_lshl_add_u32 v%d, v%d, 6, v%d" % (vA, vA, vB))
    a("v_bfe_u32 v%d, v0, 2, 2" % vB)
    a("v_lshl_add_u32 v%d, v%d, 8, v%d" % (vKoff, vB, vA))
    x11 = [b for b, ab in xs if ab == 11]
    if x11:
        a("s_bfe_u32 %s, %s, 0x%x" % (sT0, sS, 1 << 16 | x11[0]))
        a("s_lshl_b32 %s, %s, 11" % (sT0, sT0))
        a("s_xor_b32 %s, %s, 2048" % (sT1, sT0))
        for pair, src in ((vKo, vKoff), (vVo, vVoff)):
            a("v_add_u32 v%d, %s, v%d" % (pair[0], sT0, src))
            a("v_add_u32 v%d, %s, v%d" % (pair[1], sT1, src))
    else:
        vKo, vVo = [vKoff, vKoff], [vVoff, vVoff]
    per = 2 if x11 else 4

    def load(i, burst=False):
        isv, j = (i // N) % 2, i % N
        srd, vo = ("s[28:31]", vVo) if isv else ("s[24:27]", vKo)
        a("buffer_load_dwordx4 v%d, %s, %s offen offset:%d nt lds"
          % (vo[(j % 4) // 2], srd, sK, (j % per) * 1024))
        if i % per == per - 1:
            a("s_add_u32 m0, m0, %d" % (per * 1024))
            if (i + 1) % (2 * N) == 0:
                a("s_and_b32 m0, m0, %d" % (RING - 1))
            if i % 4 != 3 and burst:
                a("s_nop 0")
        if isv and j == 4:
            a("s_add_u32 %s, %s, 1" % (sTile, sTile))
            scatter(sTV, sTile, list(enumerate(tbits)), sBase)
        if i % 4 == 3:
            if j + 1 < N:
                a("s_xor_b32 %s, %s, %d" % (sK, sTK, ((j + 1) // 4) * 4096))
            elif isv:
                a("s_mov_b32 %s, %s" % (sTK, sTV))
                a("s_mov_b32 %s, %s" % (sK, sTV))
            else:
                a("s_mov_b32 %s, %s" % (sK, sTK))

    def dummy():
        a("buffer_load_dword v%d, v%d, s[24:27], 0 offen" % (vDum, vOob))

    a("s_waitcnt lgkmcnt(0)")
    stamp_at(1)
    for i in range(D0):
        load(i, True)
    a("v_and_b32 v%d, 31, v0" % vPeerA)
    a("v_lshlrev_b32 v%d, 2, v%d" % (vPeerA, vPeerA))
    a("global_load_dword v%d, v%d, s[16:17] offset:%d" % (vDum, vPeerA, DBG_PROG))
    a("s_getreg_b32 %s, hwreg(HW_REG_XCC_ID, 0, 4)" % sT0)
    a("s_and_b32 %s, %s, 1" % (sRnd, sT0))
    a("s_mul_i32 %s, %s, %d" % (sRnd, sRnd, 2 * bias))
    a("s_add_u32 %s, %s, %d" % (sRnd, sRnd, 32 // fb - bias))
    a("s_lshl_b32 %s, %s, 3" % (sT0, sT0))
    a("s_and_b32 %s, s2, 7" % sProg)
    a("s_or_b32 %s, %s, %s" % (sProg, sProg, sT0))
    a("s_mov_b32 %s, %d" % (sKd, fb // 2))
    a("s_lshr_b32 %s, s2, 3" % sT0)
    a("s_lshl_b32 %s, %s, 2" % (sT0, sT0))
    a("v_mov_b32 v%d, %s" % (vSlot, sT0))
    a("v_mov_b32 v%d, 0x7f000000" % vOob)
    a("v_lshlrev_b32 v%d, 31, v0" % vPeer)
    a("v_or_b32 v%d, 0xff, v%d" % (vPeer, vPeer))
    a("v_mov_b32 v%d, v%d" % (vPeer + 1, vPeer))
    a("s_lshl_b32 %s, %s, 4" % (sIdx, sP))
    a("s_add_u32 %s, %s, %s" % (sIdx, sIdx, sS))
    a("s_mov_b32 %s, %s" % (sC, f32(CS)))
    a("s_lshl_b32 %s, %s, 2" % (sT0, sP))
    a("v_mov_b32 v%d, %s" % (vCntA, sT0))
    a("v_lshrrev_b32 v%d, 4, v0" % vA)
    a("v_and_b32 v%d, 15, v0" % vB)
    a("v_lshlrev_b32 v%d, 7, v%d" % (vMLrd, vB))
    a("v_lshl_add_u32 v%d, v%d, 3, v%d" % (vMLrd, vA, vMLrd))
    a("v_add_u32 v%d, %d, v%d" % (vMLrd, ldsML, vMLrd))
    a("v_and_b32 v%d, 1, v0" % vOrd0)
    a("v_mul_u32_u24 v%d, 24, v%d" % (vOrd0, vOrd0))
    a("v_bfe_u32 v%d, v0, 1, 3" % vOrd1)
    a("v_add_u32 v%d, v%d, v%d" % (vOrd0, vOrd0, vOrd1))
    a("v_lshl_add_u32 v%d, v%d, 5, v%d" % (vOrd0, vA, vOrd0))
    a("v_lshlrev_b32 v%d, 4, v%d" % (vOrd0, vOrd0))
    a("v_add_u32 v%d, %d, v%d" % (vOrd0, ldsO, vOrd0))
    a("v_xor_b32 v%d, 0x80, v%d" % (vOrd1, vOrd0))
    a("s_lshl_b32 %s, %s, 11" % (sT0, sIdx))
    a("v_lshl_add_u32 v%d, v%d, 5, v%d" % (vPubO, vA, vB))
    a("v_lshl_add_u32 v%d, v%d, 4, %s" % (vPubO, vPubO, sT0))
    a("s_lshl_b32 %s, %s, 7" % (sT0, sIdx))
    a("s_add_u32 %s, %s, %d" % (sT0, sT0, WS_ML))
    a("v_lshl_add_u32 v%d, v%d, 3, %s" % (vPubML, vA, sT0))
    a("v_lshrrev_b32 v%d, 2, v0" % vA)
    a("v_and_b32 v%d, 3, v0" % vB)
    a("s_lshl_b32 %s, %s, 8" % (sT0, sP))
    a("s_add_u32 %s, %s, %s" % (sT0, sT0, sS))
    a("s_lshl_b32 %s, %s, 7" % (sT0, sT0))
    a("v_lshl_add_u32 v%d, v%d, 7, v%d" % (vInO, vA, vB))
    a("v_lshl_add_u32 v%d, v%d, 4, %s" % (vInO, vInO, sT0))
    a("s_lshl_b32 %s, %s, 11" % (sT0, sP))
    a("s_lshr_b32 %s, %s, 2" % (sT1, sS))
    a("s_lshl_b32 %s, %s, 3" % (sT1, sT1))
    a("s_add_u32 %s, %s, %s" % (sT0, sT0, sT1))
    a("s_add_u32 %s, %s, %d" % (sT0, sT0, WS_ML))
    a("v_lshl_add_u32 v%d, v%d, 7, %s" % (vInML, vA, sT0))
    a("v_lshrrev_b32 v%d, 5, v0" % vA)
    a("v_lshl_add_u32 v%d, v%d, 2, v%d" % (vA, vA, vB))
    a("v_bfe_u32 v%d, v0, 4, 1" % vB)
    a("v_lshl_add_u32 v%d, v%d, 1, v%d" % (vA, vA, vB))
    a("s_lshl_b32 %s, %s, 6" % (sT0, sIdx))
    a("v_lshl_add_u32 v%d, v%d, 2, %s" % (vOut, vA, sT0))
    a("s_mov_b32 %s, %d" % (sCnt, T - 1))
    if timed:
        a("s_waitcnt vmcnt(%d)" % D0)
        stamp_at(2)
    for i in range(D0, D):
        a("s_waitcnt vmcnt(%d)" % i)
        load(i)
        if i + 1 < D:
            dummy()

    order_k = {4: (0, 2, 1, 3), 8: (0, 4, 2, 6, 1, 5, 3, 7)}[fb]
    nlab = [0]

    def step(i):
        pos, half = (i - D) % N, ((i - D) // N) % 2
        a("s_waitcnt vmcnt(%d)" % (D - 1))
        load(i)
        if pos == N - 1:
            a("s_barrier")
            a("s_add_u32 %s, %s, 0x100" % (sProg, sProg))
            a("v_mov_b32 v%d, %s" % (vVal, sProg))
            a("global_store_dword v%d, v%d, s[16:17] offset:%d" % (vSlot, vVal, DBG_PROG))
            a("global_load_dword v%d, v%d, s[16:17] offset:%d nt"
              % (vPeer + half, vPeerA, DBG_PROG))
        if pos == D - N - 2:
            a("s_sub_u32 %s, %s, 0x100" % (sT0, sProg))
            a("v_cmp_le_i32 vcc, %s, v%d" % (sT0, vPeer + half))
            a("s_nop 1")
            a("s_bcnt0_i32_b64 %s, vcc" % sKd)
            a("s_add_u32 %s, %s, %s" % (sKd, sKd, sRnd))
            a("s_lshr_b32 %s, %s, %d" % (sKd, sKd, {4: 4, 8: 3}[fb]))
        gap = N // fb
        if pos % gap == 0:
            nlab[0] += 1
            a("s_cmp_gt_u32 %s, %d" % (sKd, order_k[pos // gap]))
            a("s_cbranch_scc0 L_nd%d" % nlab[0])
            dummy()
            a("L_nd%d:" % nlab[0])

    a("L_load:")
    for i in range(D, D + 2 * N):
        step(i)
        if stamp and i == D + 2:
            a("s_memrealtime s[60:61]")
        if stamp and i == D + 8:
            a("s_waitcnt lgkmcnt(0)")
            a("s_mov_b32 s62, m0")
            a("s_mov_b32 m0, %s" % sCnt)
            a("s_nop 0")
            a("v_writelane_b32 v%d, s60, m0" % vSt)
            a("s_mov_b32 m0, s62")
    a("s_sub_u32 %s, %s, 1" % (sCnt, sCnt))
    a("s_cmp_lg_u32 %s, 0" % sCnt)
    a("s_cbranch_scc1 L_load")
    for i in range(D + 2 * N * (T - 1), 2 * N * T):
        step(i)
    a("s_waitcnt vmcnt(%d)" % N)
    a("s_barrier")
    a("s_and_b32 %s, %s, 0xff" % (sT0, sProg))
    a("v_xor_b32 v%d, %s, v%d" % (vA, sT0, vPeer))
    a("v_and_b32 v%d, 0xff, v%d" % (vB, vA))
    a("v_cmp_eq_u32 vcc, 0, v%d" % vB)
    a("s_lshr_b32 %s, %s, 3" % (sT0, sP))
    a("s_lshl_b32 %s, 0x55555555, %s" % (sT0, sT0))
    a("s_and_b32 %s, %s, vcc_lo" % (sT1, sT0))
    a("v_cmp_le_i32 vcc, 0x%x, v%d" % (READY << 8, vA))
    a("s_mov_b32 %s, 0x200000" % sCnt)
    a("s_nop 0")
    a("s_and_b32 %s, %s, vcc_lo" % (sT1, sT1))
    if force:
        a("s_and_b32 s10, s2, %d" % force)
        a("s_cselect_b32 %s, 0, %s" % (sT1, sT1))
    a("s_cmp_eq_u32 %s, %s" % (sT0, sT1))
    a("s_cselect_b32 %s, 0, 0x80000000" % sSlow)
    a("s_waitcnt vmcnt(0)")
    a("s_barrier")
    stamp_at(3)

    a("ds_read2_b64 %s, v%d offset0:0 offset1:4" % (vr(vX, 4), vMLrd))
    a("s_waitcnt lgkmcnt(0)")
    a("v_max_f32_dpp v%d, v%d, v%d row_ror:4 %s" % (vML, vX, vX, DPPF))
    a("v_add_f32 v%d, v%d, v%d" % (vML + 1, vX + 1, vX + 3))
    a("v_max_f32_dpp v%d, v%d, v%d row_ror:8 %s" % (vML, vML, vML, DPPF))
    a("v_sub_f32 v%d, v%d, v%d" % (vF, vX, vML))
    a("v_mul_f32 v%d, %s, v%d" % (vF, sC, vF))
    a("v_exp_f32 v%d, v%d" % (vF, vF))
    a("v_min_u32 v%d, -2, v%d" % (vML, vML))
    a("v_mul_f32 v%d, v%d, v%d" % (vML + 1, vML + 1, vF))
    for sh in (8, 4, 2, 1):
        a("v_add_f32_dpp v%d, v%d, v%d row_ror:%d %s" % (vML + 1, vML + 1, vML + 1, sh, DPPF))
    a("v_or_b32 v%d, %s, v%d" % (vML + 1, sSlow, vML + 1))
    a("v_min_u32 v%d, -2, v%d" % (vML + 1, vML + 1))

    def pub_ml(flags):
        a("s_mov_b32 exec_lo, 0x00010001")
        a("s_mov_b32 exec_hi, 0x00010001")
        a("global_store_dwordx2 v%d, %s, s[18:19] %s" % (vPubML, vr(vML, 2), flags))
        a("s_mov_b64 exec, -1")

    def pub_o(k, flags):
        a("global_store_dwordx4 v%d, %s, s[18:19] offset:%d %s"
          % (vPubO, vr(vAcc + 4 * k, 4), 256 * k, flags))

    pub_ml("")
    a("s_cmp_lg_u32 %s, 0" % sSlow)
    a("s_barrier")
    for k in range(2):
        for c in range(C):
            a("ds_read_b128 %s, v%d offset:%d"
              % (vr(vBuf + 16 * k + 4 * c, 4), vOrd1 if k else vOrd0, c * 2048))
    for k in range(2):
        for c in range(C):
            a("s_waitcnt lgkmcnt(%d)" % (7 - 4 * k - c))
            for r in range(4):
                a("%s v%d, v%d, v%d row_newbcast:%d %s"
                  % ("v_fmac_f32_dpp" if c else "v_mul_f32_dpp", vAcc + 4 * k + r, vF,
                     vBuf + 16 * k + 4 * c + r, 4 * c, DPPF))
        for r in range(4):
            a("v_min_u32 v%d, -2, v%d" % (vAcc + 4 * k + r, vAcc + 4 * k + r))
        pub_o(k, "")
    stamp_at(4)
    a("s_cbranch_scc1 L_slow")
    a("L_poll:")
    a("global_load_dwordx2 %s, v%d, s[18:19] sc1" % (vr(vMLi, 2), vInML))
    a("global_load_dwordx4 %s, v%d, s[18:19] sc1" % (vr(vX, 4), vInO))
    a("global_load_dwordx4 %s, v%d, s[18:19] offset:64 sc1" % (vr(vX + 4, 4), vInO))
    a("s_sub_u32 %s, %s, 1" % (sCnt, sCnt))
    a("s_cbranch_scc1 L_end")
    a("s_waitcnt vmcnt(1)")
    a("v_max3_u32 v%d, v%d, v%d, v%d" % (vA, vMLi, vMLi + 1, vX))
    a("v_max3_u32 v%d, v%d, v%d, v%d" % (vB, vX + 1, vX + 2, vX + 3))
    a("s_waitcnt vmcnt(0)")
    a("v_max3_u32 v%d, v%d, v%d, v%d" % (vA, vA, vX + 4, vX + 5))
    a("v_max3_u32 v%d, v%d, v%d, v%d" % (vB, vB, vX + 6, vX + 7))
    a("v_max_u32 v%d, v%d, v%d" % (vA, vA, vB))
    a("v_cmp_eq_u32 vcc, -1, v%d" % vA)
    a("s_nop 1")
    a("s_and_b64 exec, exec, vcc")
    a("s_cbranch_scc1 L_poll")
    a("s_mov_b64 exec, -1")
    stamp_at(5)
    a("v_max_f32_dpp v%d, v%d, v%d row_ror:4 %s" % (vA, vMLi, vMLi, DPPF))
    a("v_cmp_gt_i32 vcc, 0, v%d" % (vMLi + 1))
    a("v_max_f32_dpp v%d, v%d, v%d row_ror:8 %s" % (vA, vA, vA, DPPF))
    rows_reduce("v_max_f32", vA, vB)
    a("v_sub_f32 v%d, v%d, v%d" % (vF, vMLi, vA))
    a("v_mul_f32 v%d, %s, v%d" % (vF, sC, vF))
    a("v_exp_f32 v%d, v%d" % (vF, vF))
    a("v_mul_f32 v%d, v%d, abs(v%d)" % (vA, vF, vMLi + 1))
    a("v_mul_f32 v%d, v%d, abs(v%d)" % (vB, vF, vMLi + 1))
    for r in range(8):
        a("v_mul_f32 v%d, v%d, v%d" % (vX + r, vF, vX + r))
    swap_add("v_add_f32", "v_permlane32_swap_b32", vA, vB, vA)
    for e in range(4):
        a("v_permlane32_swap_b32 v%d, v%d" % (vX + e, vX + 4 + e))
    a("v_mov_b32 v%d, v%d" % (vB, vA))
    for e in range(4):
        a("v_add_f32 v%d, v%d, v%d" % (vX + e, vX + e, vX + 4 + e))
    swap_add("v_add_f32", "v_permlane16_swap_b32", vA, vB, vA)
    for e in range(2):
        a("v_permlane16_swap_b32 v%d, v%d" % (vX + e, vX + 2 + e))
    for e in range(2):
        a("v_add_f32 v%d, v%d, v%d" % (vX + e, vX + e, vX + 2 + e))
    for sh in (4, 8):
        for x in (vA, vX, vX + 1):
            a("v_add_f32_dpp v%d, v%d, v%d row_ror:%d %s" % (x, x, x, sh, DPPF))
    a("v_rcp_f32 v%d, v%d" % (vA, vA))
    a("s_mov_b32 exec_lo, 0x000f000f")
    a("s_mov_b32 exec_hi, 0x000f000f")
    a("v_mul_f32 v%d, v%d, v%d" % (vX, vX, vA))
    a("v_mul_f32 v%d, v%d, v%d" % (vX + 1, vX + 1, vA))
    a("v_cvt_pk_bf16_f32 v%d, v%d, v%d" % (vX, vX, vX + 1))
    a("global_store_dword v%d, v%d, s[14:15]" % (vOut, vX))
    a("s_cbranch_vccnz L_help")
    a("L_fin:")
    if timed:
        a("s_waitcnt vmcnt(0)")
        stamp_at(6)
        a("s_waitcnt lgkmcnt(0)")
    if stamp:
        a("s_mov_b64 exec, -1")
        a("s_getreg_b32 s54, hwreg(HW_REG_XCC_ID)")
        a("s_or_b32 s54, s54, %s" % sSlow)
        a("s_lshl_b32 %s, s2, 6" % sT1)
        a("s_add_u32 %s, %s, 0x200000" % (sT1, sT1))
        a("v_mov_b32 v%d, %s" % (vA, sT1))
        for i in range(8):
            a("v_mov_b32 v%d, s%d" % (vBuf + i, 40 + 2 * i))
        a("s_lshl_b32 %s, s2, 8" % sT1)
        a("s_add_u32 %s, %s, 0x300000" % (sT1, sT1))
        a("v_lshl_add_u32 v%d, v0, 2, %s" % (vB, sT1))
        a("global_store_dword v%d, v%d, s[18:19]" % (vB, vSt))
        a("s_mov_b64 exec, 1")
        a("global_store_dwordx4 v%d, %s, s[18:19]" % (vA, vr(vBuf, 4)))
        a("global_store_dwordx4 v%d, %s, s[18:19] offset:16" % (vA, vr(vBuf + 4, 4)))
    if diagpad:
        if diagx >= 0:
            lo, hi = diagx // 10, diagx % 10
            a("s_sub_u32 s56, s%d, s%d" % (40 + 2 * hi, 40 + 2 * lo))
            a("s_mul_i32 s56, s56, 10")
            a("s_add_u32 s56, s56, %d" % (diagpad * 100))
        else:
            a("s_mov_b32 s56, %d" % (diagpad * 100))
        a("L_pad:")
        a("s_memrealtime s[58:59]")
        a("s_waitcnt lgkmcnt(0)")
        a("s_sub_u32 s58, s58, s40")
        a("s_cmp_lt_u32 s58, s56")
        a("s_cbranch_scc1 L_pad")
    a("L_end:")
    a("s_endpgm")

    a("L_help:")
    a("s_cmp_lg_u32 %s, 0" % sSlow)
    a("s_cbranch_scc1 L_fin")
    a("s_mov_b64 exec, 1")
    a("v_mov_b32 v%d, 1" % vCnt)
    a("global_atomic_add v%d, v%d, s[16:17]" % (vCntA, vCnt))
    a("s_branch L_fin")

    a("L_slow:")
    pub_ml("sc1")
    pub_o(0, "sc1")
    pub_o(1, "sc1")
    a("s_mov_b64 exec, 1")
    a("v_mov_b32 v%d, 1" % vCnt)
    a("s_waitcnt vmcnt(0)")
    a("global_atomic_add v%d, v%d, s[16:17]" % (vCntA, vCnt))
    a("L_cnt:")
    a("s_sub_u32 %s, %s, 1" % (sCnt, sCnt))
    a("s_cbranch_scc1 L_end")
    a("global_load_dword v%d, v%d, s[16:17] sc1" % (vVal, vCntA))
    a("s_waitcnt vmcnt(0)")
    a("v_readfirstlane_b32 %s, v%d" % (sT0, vVal))
    a("s_nop 1")
    a("s_cmp_ge_u32 %s, %d" % (sT0, S))
    a("s_cbranch_scc0 L_cnt")
    a("s_mov_b64 exec, -1")
    a("s_branch L_poll")

    vLane, vRd, vMX, vMY, vAl, vNmc, vA, vB, vWO0, vWO1, vWML = range(3, 14)
    vM, vL = 14, 15
    vQ, vO, vT, vXY, vD, vK = 16, 20, 28, 30, 40, 56

    def fold(part, t, da, db):
        src, own, ror, bank = ((da + 1, da, 12, 1), (da + 3, da + 2, 12, 4),
                               (db, db + 1, 4, 2), (db + 2, db + 3, 4, 8))[part]
        a("v_add_f32_dpp v%d, v%d, v%d row_ror:%d row_mask:0xf bank_mask:0x%x"
          % (t, src, own, ror, bank))

    def fold_c(t):
        a("v_add_f32_dpp v%d, v%d, v%d row_ror:8 %s" % (t, t, t, DPPF))

    a("L_cons:")
    a("s_load_dwordx2 s[4:5], s[0:1], 0")
    a("s_load_dwordx4 s[8:11], s[0:1], 24")
    a("v_and_b32 v%d, 63, v0" % vLane)
    a("s_lshr_b32 %s, %s, 6" % (sW, sW))
    a("s_sub_u32 %s, %s, 1" % (sW, sW))
    a("s_lshl_b32 %s, %s, 4" % (sIdx, sP))
    a("s_add_u32 %s, %s, %s" % (sIdx, sIdx, sS))
    a("s_mov_b32 %s, %s" % (sC, f32(CS)))
    a("v_lshrrev_b32 v%d, 4, v%d" % (vA, vLane))
    a("v_lshlrev_b32 v%d, 6, v%d" % (vA, vA))
    a("v_and_b32 v%d, 3, v%d" % (vB, vLane))
    a("v_bfe_u32 v%d, v%d, 2, 2" % (vAl, vLane))
    a("v_lshl_add_u32 v%d, v%d, 4, v%d" % (vNmc, vB, vA))
    a("v_lshl_add_u32 v%d, v%d, 8, v%d" % (vA, vB, vA))
    a("v_lshl_add_u32 v%d, v%d, 4, v%d" % (vA, vAl, vA))
    a("v_lshlrev_b32 v%d, 4, v%d" % (vRd, vLane))
    a("s_lshl_b32 %s, %s, 10" % (sT0, sP))
    a("s_lshl_b32 %s, %s, 8" % (sT1, sP))
    a("v_add_u32 v%d, %s, v%d" % (vA, sT0, vA))
    a("v_add_u32 v%d, %s, v%d" % (vNmc, sT1, vNmc))
    a("v_and_b32 v%d, 0xf0, v%d" % (vB, vRd))
    a("v_add_u32 v%d, %s, v%d" % (vB, sT1, vB))
    a("s_lshl_b32 %s, %s, 11" % (sT0, sIdx))
    a("v_add_u32 v%d, %s, v%d" % (vWO0, sT0, vRd))
    a("s_lshl_b32 %s, %s, 7" % (sT0, sIdx))
    a("s_add_u32 %s, %s, %d" % (sT0, sT0, WS_ML))
    a("v_add_u32 v%d, %s, v%d" % (vWO1, sT0, vRd))
    for r in range(4):
        a("v_mov_b32 v%d, -1" % (vD + 4 + r))
    a("s_waitcnt lgkmcnt(0)")
    a("global_load_dwordx4 %s, v%d, s[4:5]" % (vr(vQ, 4), vA))
    a("global_load_dwordx4 %s, v%d, s[8:9]" % (vr(vK, 4), vNmc))
    a("global_load_dwordx4 %s, v%d, s[10:11]" % (vr(vK + 4, 4), vB))
    a("s_load_dword %s, s[12:13], 0" % sMask)
    a("s_cmp_lg_u32 %s, %d" % (sW, C - 1))
    a("s_cbranch_scc1 L_noclear")
    a("; reset this workgroup's messages; acknowledged before barrier %d" % READY)
    a("global_store_dwordx4 v%d, %s, s[18:19]" % (vWO0, vr(vD + 4, 4)))
    a("global_store_dwordx4 v%d, %s, s[18:19] offset:1024" % (vWO0, vr(vD + 4, 4)))
    a("s_mov_b64 exec, 0xff")
    a("global_store_dwordx4 v%d, %s, s[18:19]" % (vWO1, vr(vD + 4, 4)))
    a("s_mov_b64 exec, -1")
    a("L_noclear:")
    a("s_lshl_b32 %s, %s, 12" % (sT0, sW))
    a("v_add_u32 v%d, %s, v%d" % (vRd, sT0, vRd))
    a("s_lshl_b32 %s, %s, 9" % (sT0, sW))
    a("s_add_u32 %s, %s, %d" % (sT0, sT0, ldsML))
    a("v_lshl_add_u32 v%d, v%d, 3, %s" % (vWML, vLane, sT0))
    a("v_bfe_u32 v%d, v%d, 4, 1" % (vA, vLane))
    a("v_bfe_u32 v%d, v%d, 5, 1" % (vB, vLane))
    a("v_lshl_add_u32 v%d, v%d, 1, v%d" % (vA, vA, vB))
    a("v_and_b32 v%d, 15, v%d" % (vB, vLane))
    a("v_lshl_add_u32 v%d, v%d, 2, v%d" % (vA, vB, vA))
    a("s_lshl_b32 %s, %s, 11" % (sT0, sW))
    a("s_add_u32 %s, %s, %d" % (sT0, sT0, ldsO))
    a("v_lshl_add_u32 v%d, v%d, 2, %s" % (vWO0, vA, sT0))
    a("v_xor_b32 v%d, 0x80, v%d" % (vWO1, vWO0))
    a("v_and_b32 v%d, 8, v%d" % (vA, vLane))
    a("v_lshlrev_b32 v%d, 1, v%d" % (vA, vA))
    a("v_mov_b32 v%d, 0xffff" % vB)
    a("v_lshlrev_b32 v%d, v%d, v%d" % (vA, vA, vB))
    a("v_bfe_i32 v%d, v%d, 2, 1" % (vB, vLane))
    a("v_and_b32 v%d, v%d, v%d" % (vMY, vA, vB))
    a("v_xor_b32 v%d, v%d, v%d" % (vMX, vA, vMY))
    a("s_or_b32 %s, %s, %s" % (sT0, sS, sW))
    a("s_cselect_b32 %s, 0, 0x3f803f80" % sT0)
    a("v_cmp_gt_u32 vcc, 16, v%d" % vLane)
    a("v_mov_b32 v%d, %s" % (vA, sT0))
    a("v_not_b32 v%d, v%d" % (vB, vB))
    a("v_cndmask_b32 v%d, 0, v%d, vcc" % (vA, vA))
    a("v_and_b32 v%d, 0xffff0000, v%d" % (vB, vB))
    a("v_and_b32 v%d, v%d, v%d" % (vXY, vA, vMX))
    a("v_and_b32 v%d, v%d, v%d" % (vXY + 1, vA, vMY))
    a("v_and_b32 v%d, v%d, v%d" % (vL, vA, vB))
    a("s_lshr_b32 %s, %s, 3" % (sT0, sP))
    a("s_lshl_b32 %s, %s, 4" % (sT0, sT0))
    a("s_mov_b32 %s, %d" % (sCnt, T))
    a("s_barrier")
    a("s_waitcnt vmcnt(0) lgkmcnt(0)")
    a("v_mfma_f32_16x16x32_bf16 %s, %s, %s, 0" % (vr(vD, 4), vr(vK, 4), vr(vQ, 4)))
    a("v_mfma_f32_16x16x16_bf16 %s, %s, %s, 0" % (vr(vO, 4), vr(vXY, 2), vr(vK + 4, 2)))
    a("v_mfma_f32_16x16x16_bf16 %s, %s, %s, 0" % (vr(vO + 4, 4), vr(vXY, 2), vr(vK + 6, 2)))
    a("s_lshr_b32 %s, %s, %s" % (sMask, sMask, sT0))
    a("s_lshl_b32 %s, %s, 16" % (sMask, sMask))
    a("v_mov_b32 v%d, %s" % (vA, sMask))
    a("v_sub_f32 v%d, 1.0, v%d" % (vA, vA))
    a("v_mul_f32 v%d, %s, v%d" % (vA, f32(-1e9 * 128 ** 0.5), vA))
    for part in range(4):
        fold(part, vM, vD, vD)
    fold_c(vM)
    a("v_add_f32 v%d, v%d, v%d" % (vM, vM, vA))
    a("s_branch L_tile_in")

    a("L_tile:")
    l0 = a.mark()
    a("s_barrier")
    a("L_tile_in:")
    for j in range(G):
        a("ds_read_b128 %s, v%d offset:%d" % (vr(vK + 4 * j, 4), vRd, j * 1024))
    for j in range(G):
        a("s_waitcnt lgkmcnt(%d)" % (G - 1 - j))
        a("v_mfma_f32_16x16x32_bf16 %s, %s, %s, 0"
          % (vr(vD + 4 * j, 4), vr(vK + 4 * j, 4), vr(vQ, 4)))
    for part in range(4):
        for i in range(G // 2):
            fold(part, vT + i, vD + 8 * i, vD + 8 * i + 4)
    for i in range(G // 2):
        fold_c(vT + i)
    a("v_max3_f32 v%d, v%d, v%d, v%d" % (vA, vM, vT, vT + 1))
    a("v_max_f32_dpp v%d, v%d, v%d row_ror:4 %s" % (vA, vA, vA, DPPF))
    rows_reduce("v_max_f32", vA, vB)
    a("v_sub_f32 v%d, v%d, v%d" % (vAl, vM, vA))
    a("v_mul_f32 v%d, %s, v%d" % (vNmc, f32(-CS), vA))
    a("v_mul_f32 v%d, %s, v%d" % (vAl, sC, vAl))
    a("v_mov_b32 v%d, v%d" % (vM, vA))
    a("v_exp_f32 v%d, v%d" % (vAl, vAl))
    for i in range(G // 2):
        a("v_fma_f32 v%d, v%d, %s, v%d" % (vT + i, vT + i, sC, vNmc))
    for i in range(G // 2):
        a("v_exp_f32 v%d, v%d" % (vT + i, vT + i))
    for r in range(8):
        h = r % 4
        a("v_mul_f32_dpp v%d, v%d, v%d quad_perm:[%d,%d,%d,%d] %s"
          % (vO + r, vAl, vO + r, h, h, h, h, DPPF))
    a("v_fma_f32 v%d, v%d, v%d, v%d" % (vL, vL, vAl, vT))
    a("v_add_f32 v%d, v%d, v%d" % (vL, vL, vT + 1))
    for i in range(G // 2):
        a("v_cvt_pk_bf16_f32 v%d, v%d, v%d" % (vT + i, vT + i, vT + i))
    a("ds_write_b64 v%d, %s" % (vWML, vr(vM, 2)))
    for i in range(G // 2):
        x, p = vXY + 4 * i, vT + i
        a("v_and_b32 v%d, v%d, v%d" % (x, p, vMX))
        a("v_and_b32 v%d, v%d, v%d" % (x + 3, p, vMY))
        a("v_and_b32_dpp v%d, v%d, v%d row_ror:4 %s" % (x + 1, p, vMY, DPPF))
        a("v_and_b32_dpp v%d, v%d, v%d row_ror:4 %s" % (x + 2, p, vMX, DPPF))
    a("s_sub_u32 %s, %s, 1" % (sCnt, sCnt))
    a("s_cmp_lg_u32 %s, 0" % sCnt)
    a("s_waitcnt lgkmcnt(0)")
    a("s_barrier")
    for j in range(G):
        a("ds_read_b128 %s, v%d offset:%d" % (vr(vK + 4 * j, 4), vRd, (N + j) * 1024))
    a("v_xor_b32 v%d, %d, v%d" % (vRd, 2 * N * 1024, vRd))
    for j in range(G):
        a("s_waitcnt lgkmcnt(%d)" % (G - 1 - j))
        for k in range(2):
            a("v_mfma_f32_16x16x16_bf16 %s, %s, %s, %s"
              % (vr(vO + 4 * k, 4), vr(vXY + 2 * j, 2), vr(vK + 4 * j + 2 * k, 2),
                 vr(vO + 4 * k, 4)))
    a("s_cbranch_scc1 L_tile")
    a.loop_check(l0)
    for r in range(8):
        a("ds_write_b32 v%d, v%d offset:%d"
          % (vWO1 if r >= 4 else vWO0, vO + r, (r % 4) * 512 + (r // 4) * 256))
    a("s_waitcnt lgkmcnt(0)")
    a("s_barrier")
    a("L_last:")
    a("s_endpgm")

    nvg = a.max_v()
    acc = (nvg + 3) // 4 * 4
    out = HEADER
    out += "; @launch grid=(%d,1,1) block=(%d,1,1) lds=%d\n" % (NWG, 64 * (C + 1), LDS)
    out += '.amdgcn_target "amdgcn-amd-amdhsa--gfx950"\n.text\n'
    out += ".globl %s_kernel\n.p2align 8\n.type %s_kernel,@function\n" % (NAME, NAME)
    out += a.text()
    out += """.section .rodata,"a"
.p2align 6
.amdhsa_kernel %s_kernel
  .amdhsa_next_free_vgpr %d
  .amdhsa_next_free_sgpr 64
  .amdhsa_accum_offset %d
  .amdhsa_group_segment_fixed_size 0
  .amdhsa_kernarg_size 72
  .amdhsa_user_sgpr_count 2
  .amdhsa_user_sgpr_kernarg_segment_ptr 1
  .amdhsa_system_sgpr_workgroup_id_x 1
.end_amdhsa_kernel
""" % (NAME, nvg, acc)
    return out


if __name__ == "__main__":
    kw = {}
    for arg in sys.argv[2:]:
        k, v = arg.split("=")
        kw[k] = int(v) if v.lstrip("-").isdigit() else v
    open(sys.argv[1], "w").write(gen(**kw))
```

```python
import math
import struct
import sys

from asmlib import Asm

NAME = "standalone__tree_speculative_verify_tree_attention_over_candidate_token_tree__decode"
HEADER = open("cdna_kernels/%s.s.ref" % NAME).read().split("; Override launch")[0]
DPPF = "row_mask:0xf bank_mask:0xf"

ORDERS = {
    "seq": ((19, 20, 21, 22), (14, 15, 16, 17, 18), ()),
    "rowset": ((14, 15, 16, 21), (19, 20, 17, 18, 22), ((1, 12), (2, 11))),
    "2set": ((14, 15, 21, 17), (16, 19, 20, 18, 22), ((1, 12), (3, 11))),
    "2setb": ((14, 15, 21, 18), (16, 19, 20, 17, 22), ((1, 12),)),
    "2c": ((15, 16, 21, 17), (14, 19, 20, 18, 22), ((0, 12), (1, 14), (3, 11))),
    "2d": ((15, 16, 21, 18), (14, 19, 20, 17, 22), ((0, 12), (1, 14))),
    "2e": ((15, 16, 21, 19), (14, 20, 17, 18, 22), ((0, 12), (1, 11))),
    "4c": ((16, 21, 17, 18), (14, 15, 19, 20, 22), ((0, 12), (2, 14))),
    "4d": ((16, 21, 19, 20), (14, 15, 17, 18, 22), ((0, 11),)),
    "4e": ((16, 21, 18, 19), (14, 15, 20, 17, 22), ((0, 12),)),
    "4set": ((14, 21, 17, 18), (15, 16, 19, 20, 22), ((2, 12),)),
}


def f32(x):
    return "0x%08x" % struct.unpack("<I", struct.pack("<f", x))[0]


def vr(a, n):
    return "v[%d:%d]" % (a, a + n - 1)


def gen(D=26, D0=19, fb=8, bias=2, order="2set", pre=1, stamp=0, diagpad=0, diagx=-1,
        force=0, NS=16, warm=1, padwg=-1):
    N, C, S = 16, 4, 16
    G = NS // C
    NWG = 16 * S
    T = 32
    RING = 65536
    assert RING // 1024 - 2 * NS > D - 1 and N + 2 <= D <= 2 * N
    CS = 128 ** -0.5 * math.log2(math.e)
    timed = stamp or diagpad
    sbits, tbits, xs = ORDERS[order]
    a = Asm()

    ldsO = RING
    ldsL = ldsO + C * 2048
    ldsM = ldsL + C * 256
    LDS = ldsM + 64
    WS_ML = 0x100000
    DBG_PROG = 128
    READY = 2

    sW, sP, sS, sK, sCnt, sC, sT0, sT1, sIdx, sMask = (
        "s3", "s6", "s7", "s20", "s22", "s23", "s32", "s33", "s34", "s35")
    sBase, sTile, sTK, sTV = "s36", "s37", "s38", "s39"
    sProg, sKd, sRnd, sSlow = "s4", "s5", "s8", "s9"

    def stamp_at(i):
        if timed:
            a("s_memrealtime s[%d:%d]" % (40 + 2 * i, 41 + 2 * i))

    def swap_add(op, swap, x, y, dst):
        a("%s v%d, v%d" % (swap, x, y))
        a("%s v%d, v%d, v%d" % (op, dst, x, y))

    def rows_reduce(op, x, tmp):
        for swap in ("v_permlane16_swap_b32", "v_permlane32_swap_b32"):
            a("v_mov_b32 v%d, v%d" % (tmp, x))
            swap_add(op, swap, x, tmp, x)

    def scatter(dst, src, bits, first):
        i = 0
        while i < len(bits):
            n = 1
            while (i + n < len(bits) and bits[i + n][0] == bits[i][0] + n
                   and bits[i + n][1] == bits[i][1] + n):
                n += 1
            a("s_bfe_u32 %s, %s, 0x%x" % (sT0, src, n << 16 | bits[i][0]))
            a("s_lshl_b32 %s, %s, %d" % (sT0, sT0, bits[i][1]))
            a("s_xor_b32 %s, %s, %s" % (dst, first, sT0))
            first = dst
            i += n

    a("%s_kernel:" % NAME)
    a("s_load_dwordx2 s[24:25], s[0:1], 8")
    a("s_load_dwordx2 s[28:29], s[0:1], 16")
    a("s_load_dwordx8 s[12:19], s[0:1], 40")
    stamp_at(0)
    a("v_readfirstlane_b32 %s, v0" % sW)
    a("s_cmp_ge_u32 s2, %d" % NWG)
    a("s_cbranch_scc1 L_end")
    a("s_and_b32 %s, s2, 15" % sP)
    a("s_lshr_b32 %s, s2, 4" % sS)
    a("s_cmp_eq_u32 %s, 0" % sW)
    a("s_cbranch_scc1 L_loader")
    if pre:
        a("; the first workgroups pull the code into L2")
        a("s_sub_u32 %s, %s, 64" % (sT0, sW))
        a("s_or_b32 %s, %s, %s" % (sT0, sT0, sS))
        a("s_cbranch_scc1 L_cons")
        a("s_getpc_b64 s[36:37]")
        a("L_pc:")
        a("v_lshlrev_b32 v1, 7, v0")
        a("v_and_b32 v1, 0x1fff, v1")
        a("v_min_u32 v1, L_last-L_pc, v1")
        a("global_load_dword v2, v1, s[36:37]")
    a("s_branch L_cons")

    vOff, vA, vB = [1, 2], 3, 4
    vCntA, vCnt, vMLrd, vOrd0, vOrd1, vPubO, vPubML, vInO, vInML, vOut, vF = range(5, 16)
    vML, vMLi, vX, vAcc, vBuf = 16, 18, 20, 28, 36
    vOob, vSlot, vPeerA, vVal, vPeer, vDum = 68, 69, 70, 71, 72, 74
    vMrd, vSt = 75, 76
    a("L_loader:")
    a("s_setprio 3")
    a("s_lshl_b32 %s, %s, 23" % (sBase, sP))
    scatter(sBase, sS, list(enumerate(sbits)) + [x for x in xs if x[1] >= 12], sBase)
    a("s_mov_b32 %s, 1" % sTile)
    a("s_xor_b32 %s, %s, %d" % (sTV, sBase, 1 << tbits[0]))
    a("s_mov_b32 %s, %s" % (sTK, sBase))
    a("s_mov_b32 %s, %s" % (sK, sBase))
    a("s_mov_b32 s26, 0x8000000")
    a("s_mov_b32 s27, 0x00020000")
    a("s_mov_b32 m0, 0")
    a("v_lshlrev_b32 v%d, 4, v0" % vA)
    a("v_and_b32 v%d, 32, v0" % vB)
    a("v_lshlrev_b32 v%d, 2, v%d" % (vB, vB))
    a("v_xor_b32 v%d, v%d, v%d" % (vOff[0], vA, vB))
    x11 = [b for b, ab in xs if ab == 11]
    if x11:
        a("s_bfe_u32 %s, %s, 0x%x" % (sT0, sS, 1 << 16 | x11[0]))
        a("s_lshl_b32 %s, %s, 11" % (sT0, sT0))
        a("v_add_u32 v%d, %s, v%d" % (vOff[0], sT0, vOff[0]))
        a("v_xor_b32 v%d, 0x800, v%d" % (vOff[1], vOff[0]))
    else:
        vOff = [vOff[0], vOff[0]]
    per = 2 if x11 else 4

    def load(i, burst=False):
        j = i % N
        a("buffer_load_dwordx4 v%d, s[24:27], %s offen offset:%d nt lds"
          % (vOff[(j % 4) // 2], sK, (j % per) * 1024))
        if i % per == per - 1:
            a("s_add_u32 m0, m0, %d" % (per * 1024))
            if (i + 1) % (2 * N) == 0:
                a("s_and_b32 m0, m0, %d" % (RING - 1))
            if i % 4 != 3 and burst:
                a("s_nop 0")
        if j == 4 and i >= N:
            a("s_add_u32 %s, %s, 1" % (sTile, sTile))
            scatter(sTV, sTile, list(enumerate(tbits)), sBase)
        if i % 4 == 3:
            if j + 1 < N:
                a("s_xor_b32 %s, %s, %d" % (sK, sTK, ((j + 1) // 4) * 4096))
            else:
                a("s_mov_b32 %s, %s" % (sTK, sTV))
                if (i // N) % 2 == 1:
                    a("s_cmp_eq_u32 %s, %d" % (sTile, T))
                    a("s_cselect_b64 s[24:25], s[28:29], s[24:25]")
                a("s_mov_b32 %s, %s" % (sK, sTV))

    def dummy():
        a("buffer_load_dword v%d, v%d, s[24:27], 0 offen" % (vDum, vOob))

    a("s_waitcnt lgkmcnt(0)")
    stamp_at(1)
    for i in range(D0):
        load(i, True)
    a("v_and_b32 v%d, 31, v0" % vPeerA)
    a("v_lshlrev_b32 v%d, 2, v%d" % (vPeerA, vPeerA))
    a("global_load_dword v%d, v%d, s[16:17] offset:%d" % (vDum, vPeerA, DBG_PROG))
    a("s_getreg_b32 %s, hwreg(HW_REG_XCC_ID, 0, 4)" % sT0)
    a("s_and_b32 %s, %s, 1" % (sRnd, sT0))
    a("s_mul_i32 %s, %s, %d" % (sRnd, sRnd, 2 * bias))
    a("s_add_u32 %s, %s, %d" % (sRnd, sRnd, 32 // fb - bias))
    a("s_lshl_b32 %s, %s, 3" % (sT0, sT0))
    a("s_and_b32 %s, s2, 7" % sProg)
    a("s_or_b32 %s, %s, %s" % (sProg, sProg, sT0))
    a("s_mov_b32 %s, %d" % (sKd, fb // 2))
    a("s_lshr_b32 %s, s2, 3" % sT0)
    a("s_lshl_b32 %s, %s, 2" % (sT0, sT0))
    a("v_mov_b32 v%d, %s" % (vSlot, sT0))
    a("v_mov_b32 v%d, 0x7f000000" % vOob)
    a("v_lshlrev_b32 v%d, 31, v0" % vPeer)
    a("v_or_b32 v%d, 0xff, v%d" % (vPeer, vPeer))
    a("v_mov_b32 v%d, v%d" % (vPeer + 1, vPeer))
    a("s_lshl_b32 %s, %s, 4" % (sIdx, sP))
    a("s_add_u32 %s, %s, %s" % (sIdx, sIdx, sS))
    a("s_mov_b32 %s, %s" % (sC, f32(CS)))
    a("s_lshl_b32 %s, %s, 2" % (sT0, sP))
    a("v_mov_b32 v%d, %s" % (vCntA, sT0))
    a("v_lshrrev_b32 v%d, 4, v0" % vA)
    a("v_and_b32 v%d, 15, v0" % vB)
    a("v_lshlrev_b32 v%d, 6, v%d" % (vMLrd, vB))
    a("v_lshl_add_u32 v%d, v%d, 2, v%d" % (vMLrd, vA, vMLrd))
    a("v_add_u32 v%d, %d, v%d" % (vMLrd, ldsL, vMLrd))
    a("v_lshlrev_b32 v%d, 4, v%d" % (vMrd, vA))
    a("v_add_u32 v%d, %d, v%d" % (vMrd, ldsM, vMrd))
    a("v_and_b32 v%d, 1, v0" % vOrd0)
    a("v_mul_u32_u24 v%d, 24, v%d" % (vOrd0, vOrd0))
    a("v_bfe_u32 v%d, v0, 1, 3" % vOrd1)
    a("v_add_u32 v%d, v%d, v%d" % (vOrd0, vOrd0, vOrd1))
    a("v_lshl_add_u32 v%d, v%d, 5, v%d" % (vOrd0, vA, vOrd0))
    a("v_lshlrev_b32 v%d, 4, v%d" % (vOrd0, vOrd0))
    a("v_add_u32 v%d, %d, v%d" % (vOrd0, ldsO, vOrd0))
    a("v_xor_b32 v%d, 0x80, v%d" % (vOrd1, vOrd0))
    a("s_lshl_b32 %s, %s, 11" % (sT0, sIdx))
    a("v_lshl_add_u32 v%d, v%d, 5, v%d" % (vPubO, vA, vB))
    a("v_lshl_add_u32 v%d, v%d, 4, %s" % (vPubO, vPubO, sT0))
    a("s_lshl_b32 %s, %s, 7" % (sT0, sIdx))
    a("s_add_u32 %s, %s, %d" % (sT0, sT0, WS_ML))
    a("v_lshl_add_u32 v%d, v%d, 3, %s" % (vPubML, vA, sT0))
    a("v_lshrrev_b32 v%d, 2, v0" % vA)
    a("v_and_b32 v%d, 3, v0" % vB)
    a("s_lshl_b32 %s, %s, 8" % (sT0, sP))
    a("s_add_u32 %s, %s, %s" % (sT0, sT0, sS))
    a("s_lshl_b32 %s, %s, 7" % (sT0, sT0))
    a("v_lshl_add_u32 v%d, v%d, 7, v%d" % (vInO, vA, vB))
    a("v_lshl_add_u32 v%d, v%d, 4, %s" % (vInO, vInO, sT0))
    a("s_lshl_b32 %s, %s, 11" % (sT0, sP))
    a("s_lshr_b32 %s, %s, 2" % (sT1, sS))
    a("s_lshl_b32 %s, %s, 3" % (sT1, sT1))
    a("s_add_u32 %s, %s, %s" % (sT0, sT0, sT1))
    a("s_add_u32 %s, %s, %d" % (sT0, sT0, WS_ML))
    a("v_lshl_add_u32 v%d, v%d, 7, %s" % (vInML, vA, sT0))
    a("v_lshrrev_b32 v%d, 5, v0" % vA)
    a("v_lshl_add_u32 v%d, v%d, 2, v%d" % (vA, vA, vB))
    a("v_bfe_u32 v%d, v0, 4, 1" % vB)
    a("v_lshl_add_u32 v%d, v%d, 1, v%d" % (vA, vA, vB))
    a("s_lshl_b32 %s, %s, 6" % (sT0, sIdx))
    a("v_lshl_add_u32 v%d, v%d, 2, %s" % (vOut, vA, sT0))
    a("s_mov_b32 %s, %d" % (sCnt, T - 1))
    if timed:
        a("s_waitcnt vmcnt(%d)" % D0)
        stamp_at(2)
    for i in range(D0, D):
        a("s_waitcnt vmcnt(%d)" % i)
        load(i)
        if i + 1 < D:
            dummy()

    order_k = {4: (0, 2, 1, 3), 8: (0, 4, 2, 6, 1, 5, 3, 7)}[fb]
    nlab = [0]

    def step(i):
        pos, half = (i - D) % N, ((i - D) // N) % 2
        a("s_waitcnt vmcnt(%d)" % (D - 1))
        load(i)
        if pos % NS == NS - 1:
            a("s_barrier")
        if pos == N - 1:
            a("s_add_u32 %s, %s, 0x100" % (sProg, sProg))
            a("v_mov_b32 v%d, %s" % (vVal, sProg))
            a("global_store_dword v%d, v%d, s[16:17] offset:%d" % (vSlot, vVal, DBG_PROG))
            a("global_load_dword v%d, v%d, s[16:17] offset:%d nt"
              % (vPeer + half, vPeerA, DBG_PROG))
        if pos == D - N - 2:
            a("s_sub_u32 %s, %s, 0x100" % (sT0, sProg))
            a("v_cmp_le_i32 vcc, %s, v%d" % (sT0, vPeer + half))
            a("s_nop 1")
            a("s_bcnt0_i32_b64 %s, vcc" % sKd)
            a("s_add_u32 %s, %s, %s" % (sKd, sKd, sRnd))
            a("s_lshr_b32 %s, %s, %d" % (sKd, sKd, {4: 4, 8: 3}[fb]))
        gap = N // fb
        if pos % gap == 0:
            nlab[0] += 1
            a("s_cmp_gt_u32 %s, %d" % (sKd, order_k[pos // gap]))
            a("s_cbranch_scc0 L_nd%d" % nlab[0])
            dummy()
            a("L_nd%d:" % nlab[0])

    a("L_load:")
    for i in range(D, D + 2 * N):
        step(i)
        if stamp and i == D + 2:
            a("s_memrealtime s[60:61]")
        if stamp and i == D + 8:
            a("s_waitcnt lgkmcnt(0)")
            a("s_mov_b32 s62, m0")
            a("s_mov_b32 m0, %s" % sCnt)
            a("s_nop 0")
            a("v_writelane_b32 v%d, s60, m0" % vSt)
            a("s_mov_b32 m0, s62")
    a("s_sub_u32 %s, %s, 1" % (sCnt, sCnt))
    a("s_cmp_lg_u32 %s, 0" % sCnt)
    a("s_cbranch_scc1 L_load")
    for i in range(D + 2 * N * (T - 1), 2 * N * T):
        step(i)
    a("ds_read_b128 %s, v%d" % (vr(vX, 4), vMrd))
    left = 2 * N * T // NS - (2 * N * T - D) // NS
    for h in range(left - 1, 0, -1):
        a("s_waitcnt vmcnt(%d)" % (h * NS))
        a("s_barrier")
    a("s_and_b32 %s, %s, 0xff" % (sT0, sProg))
    a("v_xor_b32 v%d, %s, v%d" % (vA, sT0, vPeer))
    a("v_and_b32 v%d, 0xff, v%d" % (vB, vA))
    a("v_cmp_eq_u32 vcc, 0, v%d" % vB)
    a("s_lshr_b32 %s, %s, 3" % (sT0, sP))
    a("s_lshl_b32 %s, 0x55555555, %s" % (sT0, sT0))
    a("s_and_b32 %s, %s, vcc_lo" % (sT1, sT0))
    a("v_cmp_le_i32 vcc, 0x%x, v%d" % (READY << 8, vA))
    a("s_mov_b32 %s, 0x200000" % sCnt)
    a("s_nop 0")
    a("s_and_b32 %s, %s, vcc_lo" % (sT1, sT1))
    if force:
        a("s_and_b32 s10, s2, %d" % force)
        a("s_cselect_b32 %s, 0, %s" % (sT1, sT1))
    a("s_cmp_eq_u32 %s, %s" % (sT0, sT1))
    a("s_cselect_b32 %s, 0, 0x80000000" % sSlow)
    a("s_waitcnt lgkmcnt(0)")
    a("v_max3_f32 v%d, v%d, v%d, v%d" % (vML, vX, vX + 1, vX + 2))
    a("v_max_f32 v%d, v%d, v%d" % (vML, vML, vX + 3))
    a("v_min_u32 v%d, -2, v%d" % (vML, vML))
    a("s_waitcnt vmcnt(0)")
    a("s_barrier")
    stamp_at(3)

    a("ds_read2_b32 %s, v%d offset0:0 offset1:4" % (vr(vX, 2), vMLrd))
    a("s_waitcnt lgkmcnt(0)")
    a("v_add_f32 v%d, v%d, v%d" % (vML + 1, vX, vX + 1))
    if warm:
        a("L_hop0:")
        a("s_cbranch_execz L_back")
    for sh in (8, 4, 2, 1):
        a("v_add_f32_dpp v%d, v%d, v%d row_ror:%d %s" % (vML + 1, vML + 1, vML + 1, sh, DPPF))
    a("v_or_b32 v%d, %s, v%d" % (vML + 1, sSlow, vML + 1))
    a("v_min_u32 v%d, -2, v%d" % (vML + 1, vML + 1))

    def pub_ml(flags):
        a("s_mov_b32 exec_lo, 0x00010001")
        a("s_mov_b32 exec_hi, 0x00010001")
        a("global_store_dwordx2 v%d, %s, s[18:19] %s" % (vPubML, vr(vML, 2), flags))
        a("s_mov_b64 exec, -1")

    def pub_o(k, flags):
        a("global_store_dwordx4 v%d, %s, s[18:19] offset:%d %s"
          % (vPubO, vr(vAcc + 4 * k, 4), 256 * k, flags))

    pub_ml("")
    a("s_cmp_lg_u32 %s, 0" % sSlow)
    a("s_barrier")
    for k in range(2):
        for c in range(C):
            a("ds_read_b128 %s, v%d offset:%d"
              % (vr(vBuf + 16 * k + 4 * c, 4), vOrd1 if k else vOrd0, c * 2048))
    for k in range(2):
        for c in range(1, C):
            a("s_waitcnt lgkmcnt(%d)" % (7 - 4 * k - c))
            for r in (0, 2):
                prev = vBuf + 16 * k + r if c == 1 else vAcc + 4 * k + r
                a("v_pk_add_f32 %s, %s, %s"
                  % (vr(vAcc + 4 * k + r, 2), vr(prev, 2), vr(vBuf + 16 * k + 4 * c + r, 2)))
        for r in range(4):
            a("v_min_u32 v%d, -2, v%d" % (vAcc + 4 * k + r, vAcc + 4 * k + r))
        pub_o(k, "")
    stamp_at(4)
    a("s_cbranch_scc1 L_slow")
    a("L_poll:")
    a("global_load_dwordx2 %s, v%d, s[18:19] sc1" % (vr(vMLi, 2), vInML))
    a("global_load_dwordx4 %s, v%d, s[18:19] sc1" % (vr(vX, 4), vInO))
    a("global_load_dwordx4 %s, v%d, s[18:19] offset:64 sc1" % (vr(vX + 4, 4), vInO))
    a("s_sub_u32 %s, %s, 1" % (sCnt, sCnt))
    a("s_cbranch_scc1 L_end")
    a("s_waitcnt vmcnt(1)")
    a("v_max3_u32 v%d, v%d, v%d, v%d" % (vA, vMLi, vMLi + 1, vX))
    a("v_max3_u32 v%d, v%d, v%d, v%d" % (vB, vX + 1, vX + 2, vX + 3))
    a("s_waitcnt vmcnt(0)")
    a("v_max3_u32 v%d, v%d, v%d, v%d" % (vA, vA, vX + 4, vX + 5))
    a("v_max3_u32 v%d, v%d, v%d, v%d" % (vB, vB, vX + 6, vX + 7))
    a("v_max_u32 v%d, v%d, v%d" % (vA, vA, vB))
    a("v_cmp_eq_u32 vcc, -1, v%d" % vA)
    a("s_nop 1")
    a("s_and_b64 exec, exec, vcc")
    a("s_cbranch_scc1 L_poll")
    a("s_mov_b64 exec, -1")
    stamp_at(5)
    a("v_max_f32_dpp v%d, v%d, v%d row_ror:4 %s" % (vA, vMLi, vMLi, DPPF))
    a("v_cmp_gt_i32 vcc, 0, v%d" % (vMLi + 1))
    if warm:
        a("L_hop1:")
        a("s_cbranch_execz L_back")
    a("v_max_f32_dpp v%d, v%d, v%d row_ror:8 %s" % (vA, vA, vA, DPPF))
    rows_reduce("v_max_f32", vA, vB)
    a("v_sub_f32 v%d, v%d, v%d" % (vF, vMLi, vA))
    a("v_mul_f32 v%d, %s, v%d" % (vF, sC, vF))
    a("v_exp_f32 v%d, v%d" % (vF, vF))
    a("v_mul_f32 v%d, v%d, abs(v%d)" % (vA, vF, vMLi + 1))
    a("v_mul_f32 v%d, v%d, abs(v%d)" % (vB, vF, vMLi + 1))
    for r in range(8):
        a("v_mul_f32 v%d, v%d, v%d" % (vX + r, vF, vX + r))
    swap_add("v_add_f32", "v_permlane32_swap_b32", vA, vB, vA)
    for e in range(4):
        a("v_permlane32_swap_b32 v%d, v%d" % (vX + e, vX + 4 + e))
    a("v_mov_b32 v%d, v%d" % (vB, vA))
    for e in range(4):
        a("v_add_f32 v%d, v%d, v%d" % (vX + e, vX + e, vX + 4 + e))
    swap_add("v_add_f32", "v_permlane16_swap_b32", vA, vB, vA)
    for e in range(2):
        a("v_permlane16_swap_b32 v%d, v%d" % (vX + e, vX + 2 + e))
    for e in range(2):
        a("v_add_f32 v%d, v%d, v%d" % (vX + e, vX + e, vX + 2 + e))
    for sh in (4, 8):
        for x in (vA, vX, vX + 1):
            a("v_add_f32_dpp v%d, v%d, v%d row_ror:%d %s" % (x, x, x, sh, DPPF))
    a("v_rcp_f32 v%d, v%d" % (vA, vA))
    a("s_mov_b32 exec_lo, 0x000f000f")
    a("s_mov_b32 exec_hi, 0x000f000f")
    a("v_mul_f32 v%d, v%d, v%d" % (vX, vX, vA))
    a("v_mul_f32 v%d, v%d, v%d" % (vX + 1, vX + 1, vA))
    a("v_cvt_pk_bf16_f32 v%d, v%d, v%d" % (vX, vX, vX + 1))
    a("global_store_dword v%d, v%d, s[14:15]" % (vOut, vX))
    a("s_cbranch_vccnz L_help")
    a("L_fin:")
    if timed:
        a("s_waitcnt vmcnt(0)")
        stamp_at(6)
        a("s_waitcnt lgkmcnt(0)")
    if stamp:
        a("s_mov_b64 exec, -1")
        a("s_getreg_b32 s54, hwreg(HW_REG_XCC_ID)")
        a("s_or_b32 s54, s54, %s" % sSlow)
        a("s_lshl_b32 %s, s2, 6" % sT1)
        a("s_add_u32 %s, %s, 0x200000" % (sT1, sT1))
        a("v_mov_b32 v%d, %s" % (vA, sT1))
        for i in range(8):
            a("v_mov_b32 v%d, s%d" % (vBuf + i, 40 + 2 * i))
        a("s_lshl_b32 %s, s2, 8" % sT1)
        a("s_add_u32 %s, %s, 0x300000" % (sT1, sT1))
        a("v_lshl_add_u32 v%d, v0, 2, %s" % (vB, sT1))
        a("global_store_dword v%d, v%d, s[18:19]" % (vB, vSt))
        a("s_mov_b64 exec, 1")
        a("global_store_dwordx4 v%d, %s, s[18:19]" % (vA, vr(vBuf, 4)))
        a("global_store_dwordx4 v%d, %s, s[18:19] offset:16" % (vA, vr(vBuf + 4, 4)))
    if diagpad:
        if diagx >= 0:
            lo, hi = diagx // 10, diagx % 10
            a("s_sub_u32 s56, s%d, s%d" % (40 + 2 * hi, 40 + 2 * lo))
            a("s_mul_i32 s56, s56, 10")
            a("s_add_u32 s56, s56, %d" % (diagpad * 100))
        else:
            a("s_mov_b32 s56, %d" % (diagpad * 100))
        if padwg >= 0:
            a("s_cmp_lg_u32 s2, %d" % padwg)
            a("s_cbranch_scc1 L_end")
        a("L_pad:")
        a("s_memrealtime s[58:59]")
        a("s_waitcnt lgkmcnt(0)")
        a("s_sub_u32 s58, s58, s40")
        a("s_cmp_lt_u32 s58, s56")
        a("s_cbranch_scc1 L_pad")
    a("L_end:")
    a("s_endpgm")

    a("L_help:")
    a("s_cmp_lg_u32 %s, 0" % sSlow)
    a("s_cbranch_scc1 L_fin")
    a("s_mov_b64 exec, 1")
    a("v_mov_b32 v%d, 1" % vCnt)
    a("global_atomic_add v%d, v%d, s[16:17]" % (vCntA, vCnt))
    a("s_branch L_fin")

    a("L_slow:")
    pub_ml("sc1")
    pub_o(0, "sc1")
    pub_o(1, "sc1")
    a("s_mov_b64 exec, 1")
    a("v_mov_b32 v%d, 1" % vCnt)
    a("s_waitcnt vmcnt(0)")
    a("global_atomic_add v%d, v%d, s[16:17]" % (vCntA, vCnt))
    a("L_cnt:")
    a("s_sub_u32 %s, %s, 1" % (sCnt, sCnt))
    a("s_cbranch_scc1 L_end")
    a("global_load_dword v%d, v%d, s[16:17] sc1" % (vVal, vCntA))
    a("s_waitcnt vmcnt(0)")
    a("v_readfirstlane_b32 %s, v%d" % (sT0, vVal))
    a("s_nop 1")
    a("s_cmp_ge_u32 %s, %d" % (sT0, S))
    a("s_cbranch_scc0 L_cnt")
    a("s_mov_b64 exec, -1")
    a("s_branch L_poll")

    vLane, vRd, vMX, vMY, vAl, vNmc, vA, vB, vWO0, vWO1, vWL = range(3, 14)
    vM, vL = 14, 15
    vQ, vO, vT, vXY, vD, vK = 16, 20, 28, 30, 40, 56
    vRdK, vOwn, vVt, vS = 38, 39, 72, 76
    vSt, vWM = 1, vAl
    vCl0, vCl1 = vXY, vXY + 1
    sI = "s21"

    def fold(part, t, da, db):
        src, own, ror, bank = ((da + 1, da, 12, 1), (da + 3, da + 2, 12, 4),
                               (db, db + 1, 4, 2), (db + 2, db + 3, 4, 8))[part]
        a("v_add_f32_dpp v%d, v%d, v%d row_ror:%d row_mask:0xf bank_mask:0x%x"
          % (t, src, own, ror, bank))

    def fold_c(t):
        a("v_add_f32_dpp v%d, v%d, v%d row_ror:8 %s" % (t, t, t, DPPF))

    a("L_cons:")
    a("s_load_dwordx2 s[4:5], s[0:1], 0")
    a("s_load_dwordx4 s[8:11], s[0:1], 24")
    a("v_and_b32 v%d, 63, v0" % vLane)
    a("s_lshr_b32 %s, %s, 6" % (sW, sW))
    a("s_sub_u32 %s, %s, 1" % (sW, sW))
    a("s_lshl_b32 %s, %s, 4" % (sIdx, sP))
    a("s_add_u32 %s, %s, %s" % (sIdx, sIdx, sS))
    a("s_mov_b32 %s, %s" % (sC, f32(CS)))
    a("v_lshrrev_b32 v%d, 4, v%d" % (vA, vLane))
    a("v_lshlrev_b32 v%d, 6, v%d" % (vA, vA))
    a("v_and_b32 v%d, 3, v%d" % (vB, vLane))
    a("v_bfe_u32 v%d, v%d, 2, 2" % (vAl, vLane))
    a("v_lshl_add_u32 v%d, v%d, 4, v%d" % (vNmc, vB, vA))
    a("v_lshl_add_u32 v%d, v%d, 8, v%d" % (vRdK, vAl, vNmc))
    a("v_lshl_add_u32 v%d, v%d, 8, v%d" % (vA, vB, vA))
    a("v_lshl_add_u32 v%d, v%d, 4, v%d" % (vA, vAl, vA))
    a("v_lshlrev_b32 v%d, 4, v%d" % (vRd, vLane))
    a("s_lshl_b32 %s, %s, 10" % (sT0, sP))
    a("s_lshl_b32 %s, %s, 8" % (sT1, sP))
    a("v_add_u32 v%d, %s, v%d" % (vA, sT0, vA))
    a("v_add_u32 v%d, %s, v%d" % (vNmc, sT1, vNmc))
    a("v_and_b32 v%d, 0xf0, v%d" % (vB, vRd))
    a("v_add_u32 v%d, %s, v%d" % (vB, sT1, vB))
    a("s_lshl_b32 %s, %s, 11" % (sT0, sIdx))
    a("v_add_u32 v%d, %s, v%d" % (vCl0, sT0, vRd))
    a("s_lshl_b32 %s, %s, 7" % (sT0, sIdx))
    a("s_add_u32 %s, %s, %d" % (sT0, sT0, WS_ML))
    a("v_and_b32 v%d, 0x70, v%d" % (vCl1, vRd))
    a("v_add_u32 v%d, %s, v%d" % (vCl1, sT0, vCl1))
    for r in range(4):
        a("v_mov_b32 v%d, -1" % (vO + r))
    a("s_waitcnt lgkmcnt(0)")
    a("global_load_dwordx4 %s, v%d, s[4:5]" % (vr(vQ, 4), vA))
    a("global_load_dwordx4 %s, v%d, s[8:9]" % (vr(vK, 4), vNmc))
    a("global_load_dwordx4 %s, v%d, s[10:11]" % (vr(vVt, 4), vB))
    a("s_load_dword %s, s[12:13], 0" % sMask)
    a("s_cmp_lg_u32 %s, %d" % (sW, C - 1))
    a("s_cbranch_scc1 L_noclear")
    a("global_load_dwordx4 %s, v%d, s[18:19]" % (vr(vK + 4, 4), vCl0))
    a("global_load_dwordx4 %s, v%d, s[18:19] offset:1024" % (vr(vK + 8, 4), vCl0))
    a("global_load_dwordx4 %s, v%d, s[18:19]" % (vr(vK + 12, 4), vCl1))
    a("L_noclear:")
    if warm:
        a("; touch code that first runs late, one region per wave")
        a("s_mov_b64 exec, 0")
        for c in range(C - 1):
            a("s_cmp_eq_u32 %s, %d" % (sW, c))
            a("s_cbranch_scc1 L_hop%d" % c)
        a("L_back:")
        a("s_mov_b64 exec, -1")
    a("s_mul_i32 %s, %s, %d" % (sT0, sW, G * 1024))
    a("v_and_b32 v%d, 32, v%d" % (vA, vLane))
    a("v_lshlrev_b32 v%d, 2, v%d" % (vA, vA))
    a("v_xor_b32 v%d, v%d, v%d" % (vRd, vRd, vA))
    a("v_add_u32 v%d, %s, v%d" % (vRd, sT0, vRd))
    a("v_and_b32 v%d, 8, v%d" % (vA, vLane))
    a("v_lshlrev_b32 v%d, 4, v%d" % (vA, vA))
    a("v_xor_b32 v%d, v%d, v%d" % (vRdK, vRdK, vA))
    a("v_add_u32 v%d, %s, v%d" % (vRdK, sT0, vRdK))
    a("s_lshl_b32 %s, %s, 8" % (sT0, sW))
    a("s_add_u32 %s, %s, %d" % (sT0, sT0, ldsL))
    a("v_lshl_add_u32 v%d, v%d, 2, %s" % (vWL, vLane, sT0))
    a("v_and_b32 v%d, 3, v%d" % (vWM, vLane))
    a("v_lshlrev_b32 v%d, 4, v%d" % (vWM, vWM))
    a("v_add_u32 v%d, %d, v%d" % (vWM, ldsM, vWM))
    a("v_bfe_u32 v%d, v%d, 4, 1" % (vA, vLane))
    a("v_bfe_u32 v%d, v%d, 5, 1" % (vB, vLane))
    a("v_lshl_add_u32 v%d, v%d, 1, v%d" % (vA, vA, vB))
    a("v_and_b32 v%d, 15, v%d" % (vB, vLane))
    a("v_lshl_add_u32 v%d, v%d, 2, v%d" % (vA, vB, vA))
    a("s_lshl_b32 %s, %s, 11" % (sT0, sW))
    a("s_add_u32 %s, %s, %d" % (sT0, sT0, ldsO))
    a("v_lshl_add_u32 v%d, v%d, 2, %s" % (vWO0, vA, sT0))
    a("v_xor_b32 v%d, 0x80, v%d" % (vWO1, vWO0))
    a("v_and_b32 v%d, 8, v%d" % (vA, vLane))
    a("v_lshlrev_b32 v%d, 1, v%d" % (vA, vA))
    a("v_mov_b32 v%d, 0xffff" % vB)
    a("v_lshlrev_b32 v%d, v%d, v%d" % (vA, vA, vB))
    a("v_bfe_i32 v%d, v%d, 2, 1" % (vB, vLane))
    a("v_and_b32 v%d, v%d, v%d" % (vMY, vA, vB))
    a("v_xor_b32 v%d, v%d, v%d" % (vMX, vA, vMY))
    a("s_or_b32 %s, %s, %s" % (sT0, sS, sW))
    a("s_cselect_b32 %s, 0, 16" % sT0)
    a("v_cmp_gt_u32 vcc, %s, v%d" % (sT0, vLane))
    a("s_lshr_b32 %s, %s, 3" % (sT0, sP))
    a("s_lshl_b32 %s, %s, 4" % (sT0, sT0))
    a("v_cndmask_b32 v%d, 0, -1, vcc" % vOwn)
    a("s_mov_b32 %s, 0" % sI)
    a("s_barrier")
    a("s_cmp_lg_u32 %s, %d" % (sW, C - 1))
    a("s_waitcnt vmcnt(0) lgkmcnt(0)")
    a("s_cbranch_scc1 L_noreset")
    a("; reset the messages; acknowledged before barrier %d" % READY)
    a("global_store_dwordx4 v%d, %s, s[18:19]" % (vCl0, vr(vO, 4)))
    a("global_store_dwordx4 v%d, %s, s[18:19] offset:1024" % (vCl0, vr(vO, 4)))
    a("global_store_dwordx4 v%d, %s, s[18:19]" % (vCl1, vr(vO, 4)))
    a("L_noreset:")
    a("v_mfma_f32_16x16x32_bf16 %s, %s, %s, 0" % (vr(vD, 4), vr(vK, 4), vr(vQ, 4)))
    a("s_lshr_b32 %s, %s, %s" % (sMask, sMask, sT0))
    a("s_lshl_b32 %s, %s, 16" % (sMask, sMask))
    a("v_mov_b32 v%d, %s" % (vA, sMask))
    a("v_sub_f32 v%d, 1.0, v%d" % (vA, vA))
    a("v_mul_f32 v%d, %s, v%d" % (vA, f32(-1e9 * 128 ** 0.5), vA))
    for part in range(4):
        fold(part, vM, vD, vD)
    fold_c(vM)
    a("v_add_f32 v%d, v%d, v%d" % (vM, vM, vA))
    a("v_mov_b32 v%d, v%d" % (vSt, vM))
    a("s_branch L_k_in")

    NT = G // 2

    def advance(rd):
        a("v_add_u32 v%d, %d, v%d" % (rd, NS * 1024, rd))
        a("v_and_b32 v%d, %d, v%d" % (rd, RING - 1, rd))

    a("L_k:")
    l0 = a.mark()
    a("s_waitcnt vmcnt(0)")
    a("s_barrier")
    a("L_k_in:")
    for j in range(G):
        a("ds_read_b128 %s, v%d offset:%d" % (vr(vK + 4 * j, 4), vRdK, j * 1024))
    advance(vRdK)
    for j in range(G):
        a("s_waitcnt lgkmcnt(%d)" % (G - 1 - j))
        a("v_mfma_f32_16x16x32_bf16 %s, %s, %s, 0"
          % (vr(vD + 4 * j, 4), vr(vK + 4 * j, 4), vr(vQ, 4)))
    for part in range(4):
        for i in range(NT):
            fold(part, vT + i, vD + 8 * i, vD + 8 * i + 4)
    for i in range(NT):
        fold_c(vT + i)
    a("s_set_gpr_idx_on %s, gpr_idx(DST)" % sI)
    for i in range(NT):
        a("v_mov_b32 v%d, v%d" % (vS + i, vT + i))
    a("s_set_gpr_idx_off")
    a("v_max3_f32 v%d, v%d, v%d, v%d" % (vM, vM, vT, vT + NT - 1))
    a("s_add_u32 %s, %s, %d" % (sI, sI, NT))
    a("s_cmp_lt_u32 %s, 64" % sI)
    a("s_cbranch_scc1 L_k")
    a.loop_check(l0)

    def prep():
        a("s_set_gpr_idx_on %s, gpr_idx(SRC0)" % sI)
        for i in range(NT):
            a("v_mov_b32 v%d, v%d" % (vT + i, vS + i))
        a("s_set_gpr_idx_off")
        for i in range(NT):
            a("v_fma_f32 v%d, v%d, %s, v%d" % (vT + i, vT + i, sC, vNmc))
        for i in range(NT):
            a("v_exp_f32 v%d, v%d" % (vT + i, vT + i))
        a("s_add_u32 %s, %s, %d" % (sI, sI, NT))
        a("s_cmp_lt_u32 %s, 64" % sI)
        for i in range(NT):
            a("v_add_f32 v%d, v%d, v%d" % (vL, vL, vT + i))
        for i in range(NT):
            a("v_cvt_pk_bf16_f32 v%d, v%d, v%d" % (vT + i, vT + i, vT + i))
        a("ds_write_b32 v%d, v%d" % (vWL, vL))
        for i in range(NT):
            x, p = vXY + 4 * i, vT + i
            a("v_and_b32 v%d, v%d, v%d" % (x, p, vMX))
            a("v_and_b32 v%d, v%d, v%d" % (x + 3, p, vMY))
            a("v_and_b32_dpp v%d, v%d, v%d row_ror:4 %s" % (x + 1, p, vMY, DPPF))
            a("v_and_b32_dpp v%d, v%d, v%d row_ror:4 %s" % (x + 2, p, vMX, DPPF))
        a("s_waitcnt lgkmcnt(0)")

    a("v_max_f32_dpp v%d, v%d, v%d row_ror:4 %s" % (vM, vM, vM, DPPF))
    rows_reduce("v_max_f32", vM, vB)
    a("v_lshl_add_u32 v%d, %s, 2, v%d" % (vA, sW, vWM))
    a("ds_write_b32 v%d, v%d" % (vA, vM))
    a("s_mov_b32 %s, 0" % sI)
    a("s_waitcnt lgkmcnt(0)")
    a("s_barrier")
    a("ds_read_b128 %s, v%d" % (vr(vD, 4), vWM))
    a("s_waitcnt lgkmcnt(0)")
    a("v_max3_f32 v%d, v%d, v%d, v%d" % (vM, vD, vD + 1, vD + 2))
    a("v_max_f32 v%d, v%d, v%d" % (vM, vM, vD + 3))
    a("v_mul_f32 v%d, %s, v%d" % (vNmc, f32(-CS), vM))
    a("v_fma_f32 v%d, v%d, %s, v%d" % (vA, vSt, sC, vNmc))
    a("v_exp_f32 v%d, v%d" % (vA, vA))
    a("v_cmp_ne_u32 vcc, 0, v%d" % vMX)
    a("v_and_b32 v%d, v%d, v%d" % (vA, vA, vOwn))
    a("v_cvt_pk_bf16_f32 v%d, v%d, v%d" % (vB, vA, vA))
    a("v_cndmask_b32 v%d, 0, v%d, vcc" % (vL, vA))
    a("v_and_b32 v%d, v%d, v%d" % (vXY, vB, vMX))
    a("v_and_b32 v%d, v%d, v%d" % (vXY + 1, vB, vMY))
    for k in range(2):
        a("v_mfma_f32_16x16x16_bf16 %s, %s, %s, 0"
          % (vr(vO + 4 * k, 4), vr(vXY, 2), vr(vVt + 2 * k, 2)))
    prep()
    a("s_branch L_v_in")
    if warm:
        a("L_hop2:")
        a("s_branch L_back")

    a("L_v:")
    l0 = a.mark()
    prep()
    a("s_barrier")
    a("L_v_in:")
    for j in range(G):
        a("ds_read_b128 %s, v%d offset:%d" % (vr(vK + 4 * j, 4), vRd, j * 1024))
    advance(vRd)
    for j in range(G):
        a("s_waitcnt lgkmcnt(%d)" % (G - 1 - j))
        for k in range(2):
            a("v_mfma_f32_16x16x16_bf16 %s, %s, %s, %s"
              % (vr(vO + 4 * k, 4), vr(vXY + 2 * j, 2), vr(vK + 4 * j + 2 * k, 2),
                 vr(vO + 4 * k, 4)))
    a("s_cbranch_scc1 L_v")
    a.loop_check(l0)
    for r in range(8):
        a("ds_write_b32 v%d, v%d offset:%d"
          % (vWO1 if r >= 4 else vWO0, vO + r, (r % 4) * 512 + (r // 4) * 256))
    a("s_waitcnt lgkmcnt(0)")
    a("s_barrier")
    a("L_last:")
    a("s_endpgm")

    nvg = max(a.max_v(), vS + 64)
    acc = (nvg + 3) // 4 * 4
    out = HEADER
    out += "; @launch grid=(%d,1,1) block=(%d,1,1) lds=%d\n" % (NWG, 64 * (C + 1), LDS)
    out += '.amdgcn_target "amdgcn-amd-amdhsa--gfx950"\n.text\n'
    out += ".globl %s_kernel\n.p2align 8\n.type %s_kernel,@function\n" % (NAME, NAME)
    out += a.text()
    out += """.section .rodata,"a"
.p2align 6
.amdhsa_kernel %s_kernel
  .amdhsa_next_free_vgpr %d
  .amdhsa_next_free_sgpr 64
  .amdhsa_accum_offset %d
  .amdhsa_group_segment_fixed_size 0
  .amdhsa_kernarg_size 72
  .amdhsa_user_sgpr_count 2
  .amdhsa_user_sgpr_kernarg_segment_ptr 1
  .amdhsa_system_sgpr_workgroup_id_x 1
.end_amdhsa_kernel
""" % (NAME, nvg, acc)
    return out


if __name__ == "__main__":
    kw = {}
    for arg in sys.argv[2:]:
        k, v = arg.split("=")
        kw[k] = int(v) if v.lstrip("-").isdigit() else v
    open(sys.argv[1], "w").write(gen(**kw))
```

```python
import math
import struct
import sys

from asmlib import Asm

NAME = "standalone__tree_speculative_verify_tree_attention_over_candidate_token_tree__decode"
HEADER = open("cdna_kernels/%s.s.ref" % NAME).read().split("; Override launch")[0]
DPPF = "row_mask:0xf bank_mask:0xf"

ORDERS = {
    "seq": ((19, 20, 21, 22), (14, 15, 16, 17, 18), ()),
    "rowset": ((14, 15, 16, 21), (19, 20, 17, 18, 22), ((1, 12), (2, 11))),
    "2set": ((14, 15, 21, 17), (16, 19, 20, 18, 22), ((1, 12), (3, 11))),
    "2setb": ((14, 15, 21, 18), (16, 19, 20, 17, 22), ((1, 12),)),
    "2c": ((15, 16, 21, 17), (14, 19, 20, 18, 22), ((0, 12), (1, 14), (3, 11))),
    "2d": ((15, 16, 21, 18), (14, 19, 20, 17, 22), ((0, 12), (1, 14))),
    "2e": ((15, 16, 21, 19), (14, 20, 17, 18, 22), ((0, 12), (1, 11))),
    "4c": ((16, 21, 17, 18), (14, 15, 19, 20, 22), ((0, 12), (2, 14))),
    "4d": ((16, 21, 19, 20), (14, 15, 17, 18, 22), ((0, 11),)),
    "4e": ((16, 21, 18, 19), (14, 15, 20, 17, 22), ((0, 12),)),
    "4set": ((14, 21, 17, 18), (15, 16, 19, 20, 22), ((2, 12),)),
}


def f32(x):
    return "0x%08x" % struct.unpack("<I", struct.pack("<f", x))[0]


def vr(a, n):
    return "v[%d:%d]" % (a, a + n - 1)


def gen(D=26, D0=19, fb=8, bias=2, order="2set", pre=1, stamp=0, diagpad=0, diagx=-1,
        force=0, NS=16, warm=1, padwg=-1, diagg=None, diagsub=0):
    N, C, S = 16, 4, 16
    G = NS // C
    NWG = 16 * S
    T = 32
    RING = 65536
    assert RING // 1024 - 2 * NS > D - 1 and N + 2 <= D <= 2 * N
    CS = 128 ** -0.5 * math.log2(math.e)
    timed = stamp or diagpad
    sbits, tbits, xs = ORDERS[order]
    a = Asm()

    ldsO = RING
    ldsL = ldsO + C * 2048
    ldsM = ldsL + C * 256
    LDS = ldsM + 64
    WS_ML = 0x100000
    DBG_PROG = 128
    READY = 2

    sW, sP, sS, sK, sCnt, sC, sT0, sT1, sIdx, sMask = (
        "s3", "s6", "s7", "s20", "s22", "s23", "s32", "s33", "s34", "s35")
    sBase, sTile, sTK, sTV = "s36", "s37", "s38", "s39"
    sProg, sKd, sRnd, sSlow = "s4", "s5", "s8", "s9"

    def stamp_at(i):
        if timed:
            a("s_memrealtime s[%d:%d]" % (40 + 2 * i, 41 + 2 * i))

    def swap_add(op, swap, x, y, dst):
        a("%s v%d, v%d" % (swap, x, y))
        a("%s v%d, v%d, v%d" % (op, dst, x, y))

    def rows_reduce(op, x, tmp):
        for swap in ("v_permlane16_swap_b32", "v_permlane32_swap_b32"):
            a("v_mov_b32 v%d, v%d" % (tmp, x))
            swap_add(op, swap, x, tmp, x)

    def scatter(dst, src, bits, first):
        i = 0
        while i < len(bits):
            n = 1
            while (i + n < len(bits) and bits[i + n][0] == bits[i][0] + n
                   and bits[i + n][1] == bits[i][1] + n):
                n += 1
            a("s_bfe_u32 %s, %s, 0x%x" % (sT0, src, n << 16 | bits[i][0]))
            a("s_lshl_b32 %s, %s, %d" % (sT0, sT0, bits[i][1]))
            a("s_xor_b32 %s, %s, %s" % (dst, first, sT0))
            first = dst
            i += n

    a("%s_kernel:" % NAME)
    a("s_load_dwordx2 s[24:25], s[0:1], 8")
    a("s_load_dwordx2 s[28:29], s[0:1], 16")
    a("s_load_dwordx8 s[12:19], s[0:1], 40")
    stamp_at(0)
    a("v_readfirstlane_b32 %s, v0" % sW)
    a("s_cmp_ge_u32 s2, %d" % NWG)
    a("s_cbranch_scc1 L_end")
    a("s_and_b32 %s, s2, 15" % sP)
    a("s_lshr_b32 %s, s2, 4" % sS)
    a("s_cmp_eq_u32 %s, 0" % sW)
    a("s_cbranch_scc1 L_loader")
    if pre:
        a("; the first workgroups pull the code into L2")
        a("s_sub_u32 %s, %s, 64" % (sT0, sW))
        a("s_or_b32 %s, %s, %s" % (sT0, sT0, sS))
        a("s_cbranch_scc1 L_cons")
        a("s_getpc_b64 s[36:37]")
        a("L_pc:")
        a("v_lshlrev_b32 v1, 7, v0")
        a("v_and_b32 v1, 0x1fff, v1")
        a("v_min_u32 v1, L_last-L_pc, v1")
        a("global_load_dword v2, v1, s[36:37]")
    a("s_branch L_cons")

    vOff, vA, vB = [1, 2], 3, 4
    vCntA, vCnt, vMLrd, vOrd0, vOrd1, vPubO, vPubML, vInO, vInML, vOut, vF = range(5, 16)
    vML, vMLi, vX, vAcc, vBuf = 16, 18, 20, 28, 36
    vOob, vSlot, vPeerA, vVal, vPeer, vDum = 68, 69, 70, 71, 72, 74
    vMrd, vSt = 75, 76
    a("L_loader:")
    a("s_setprio 3")
    a("s_lshl_b32 %s, %s, 23" % (sBase, sP))
    scatter(sBase, sS, list(enumerate(sbits)) + [x for x in xs if x[1] >= 12], sBase)
    a("s_mov_b32 %s, 1" % sTile)
    a("s_xor_b32 %s, %s, %d" % (sTV, sBase, 1 << tbits[0]))
    a("s_mov_b32 %s, %s" % (sTK, sBase))
    a("s_mov_b32 %s, %s" % (sK, sBase))
    a("s_mov_b32 s26, 0x8000000")
    a("s_mov_b32 s27, 0x00020000")
    a("s_mov_b32 m0, 0")
    a("v_lshlrev_b32 v%d, 4, v0" % vA)
    a("v_and_b32 v%d, 32, v0" % vB)
    a("v_lshlrev_b32 v%d, 2, v%d" % (vB, vB))
    a("v_xor_b32 v%d, v%d, v%d" % (vOff[0], vA, vB))
    x11 = [b for b, ab in xs if ab == 11]
    if x11:
        a("s_bfe_u32 %s, %s, 0x%x" % (sT0, sS, 1 << 16 | x11[0]))
        a("s_lshl_b32 %s, %s, 11" % (sT0, sT0))
        a("v_add_u32 v%d, %s, v%d" % (vOff[0], sT0, vOff[0]))
        a("v_xor_b32 v%d, 0x800, v%d" % (vOff[1], vOff[0]))
    else:
        vOff = [vOff[0], vOff[0]]
    per = 2 if x11 else 4

    def load(i, burst=False):
        j = i % N
        a("buffer_load_dwordx4 v%d, s[24:27], %s offen offset:%d nt lds"
          % (vOff[(j % 4) // 2], sK, (j % per) * 1024))
        if i % per == per - 1:
            a("s_add_u32 m0, m0, %d" % (per * 1024))
            if (i + 1) % (2 * N) == 0:
                a("s_and_b32 m0, m0, %d" % (RING - 1))
            if i % 4 != 3 and burst:
                a("s_nop 0")
        if j == 4 and i >= N:
            a("s_add_u32 %s, %s, 1" % (sTile, sTile))
            scatter(sTV, sTile, list(enumerate(tbits)), sBase)
        if i % 4 == 3:
            if j + 1 < N:
                a("s_xor_b32 %s, %s, %d" % (sK, sTK, ((j + 1) // 4) * 4096))
            else:
                a("s_mov_b32 %s, %s" % (sTK, sTV))
                if (i // N) % 2 == 1:
                    a("s_cmp_eq_u32 %s, %d" % (sTile, T))
                    a("s_cselect_b64 s[24:25], s[28:29], s[24:25]")
                a("s_mov_b32 %s, %s" % (sK, sTV))

    def dummy():
        a("buffer_load_dword v%d, v%d, s[24:27], 0 offen" % (vDum, vOob))

    a("s_waitcnt lgkmcnt(0)")
    stamp_at(1)
    for i in range(D0):
        load(i, True)
    a("v_and_b32 v%d, 31, v0" % vPeerA)
    a("v_lshlrev_b32 v%d, 2, v%d" % (vPeerA, vPeerA))
    a("global_load_dword v%d, v%d, s[16:17] offset:%d" % (vDum, vPeerA, DBG_PROG))
    a("s_getreg_b32 %s, hwreg(HW_REG_XCC_ID, 0, 4)" % sT0)
    a("s_and_b32 %s, %s, 1" % (sRnd, sT0))
    a("s_mul_i32 %s, %s, %d" % (sRnd, sRnd, 2 * bias))
    a("s_add_u32 %s, %s, %d" % (sRnd, sRnd, 32 // fb - bias))
    a("s_lshl_b32 %s, %s, 3" % (sT0, sT0))
    a("s_and_b32 %s, s2, 7" % sProg)
    a("s_or_b32 %s, %s, %s" % (sProg, sProg, sT0))
    a("s_mov_b32 %s, %d" % (sKd, fb // 2))
    a("s_lshr_b32 %s, s2, 3" % sT0)
    a("s_lshl_b32 %s, %s, 2" % (sT0, sT0))
    a("v_mov_b32 v%d, %s" % (vSlot, sT0))
    a("v_mov_b32 v%d, 0x7f000000" % vOob)
    a("v_lshlrev_b32 v%d, 31, v0" % vPeer)
    a("v_or_b32 v%d, 0xff, v%d" % (vPeer, vPeer))
    a("v_mov_b32 v%d, v%d" % (vPeer + 1, vPeer))
    a("s_lshl_b32 %s, %s, 4" % (sIdx, sP))
    a("s_add_u32 %s, %s, %s" % (sIdx, sIdx, sS))
    a("s_mov_b32 %s, %s" % (sC, f32(CS)))
    a("s_lshl_b32 %s, %s, 2" % (sT0, sP))
    a("v_mov_b32 v%d, %s" % (vCntA, sT0))
    a("v_lshrrev_b32 v%d, 4, v0" % vA)
    a("v_and_b32 v%d, 15, v0" % vB)
    a("v_lshlrev_b32 v%d, 6, v%d" % (vMLrd, vB))
    a("v_lshl_add_u32 v%d, v%d, 2, v%d" % (vMLrd, vA, vMLrd))
    a("v_add_u32 v%d, %d, v%d" % (vMLrd, ldsL, vMLrd))
    a("v_lshlrev_b32 v%d, 4, v%d" % (vMrd, vA))
    a("v_add_u32 v%d, %d, v%d" % (vMrd, ldsM, vMrd))
    a("v_and_b32 v%d, 1, v0" % vOrd0)
    a("v_mul_u32_u24 v%d, 24, v%d" % (vOrd0, vOrd0))
    a("v_bfe_u32 v%d, v0, 1, 3" % vOrd1)
    a("v_add_u32 v%d, v%d, v%d" % (vOrd0, vOrd0, vOrd1))
    a("v_lshl_add_u32 v%d, v%d, 5, v%d" % (vOrd0, vA, vOrd0))
    a("v_lshlrev_b32 v%d, 4, v%d" % (vOrd0, vOrd0))
    a("v_add_u32 v%d, %d, v%d" % (vOrd0, ldsO, vOrd0))
    a("v_xor_b32 v%d, 0x80, v%d" % (vOrd1, vOrd0))
    a("s_lshl_b32 %s, %s, 11" % (sT0, sIdx))
    a("v_lshl_add_u32 v%d, v%d, 5, v%d" % (vPubO, vA, vB))
    a("v_lshl_add_u32 v%d, v%d, 4, %s" % (vPubO, vPubO, sT0))
    a("s_lshl_b32 %s, %s, 7" % (sT0, sIdx))
    a("s_add_u32 %s, %s, %d" % (sT0, sT0, WS_ML))
    a("v_lshl_add_u32 v%d, v%d, 3, %s" % (vPubML, vA, sT0))
    a("v_lshrrev_b32 v%d, 2, v0" % vA)
    a("v_and_b32 v%d, 3, v0" % vB)
    a("s_lshl_b32 %s, %s, 8" % (sT0, sP))
    a("s_add_u32 %s, %s, %s" % (sT0, sT0, sS))
    a("s_lshl_b32 %s, %s, 7" % (sT0, sT0))
    a("v_lshl_add_u32 v%d, v%d, 7, v%d" % (vInO, vA, vB))
    a("v_lshl_add_u32 v%d, v%d, 4, %s" % (vInO, vInO, sT0))
    a("s_lshl_b32 %s, %s, 11" % (sT0, sP))
    a("s_lshr_b32 %s, %s, 2" % (sT1, sS))
    a("s_lshl_b32 %s, %s, 3" % (sT1, sT1))
    a("s_add_u32 %s, %s, %s" % (sT0, sT0, sT1))
    a("s_add_u32 %s, %s, %d" % (sT0, sT0, WS_ML))
    a("v_lshl_add_u32 v%d, v%d, 7, %s" % (vInML, vA, sT0))
    a("v_lshrrev_b32 v%d, 5, v0" % vA)
    a("v_lshl_add_u32 v%d, v%d, 2, v%d" % (vA, vA, vB))
    a("v_bfe_u32 v%d, v0, 4, 1" % vB)
    a("v_lshl_add_u32 v%d, v%d, 1, v%d" % (vA, vA, vB))
    a("s_lshl_b32 %s, %s, 6" % (sT0, sIdx))
    a("v_lshl_add_u32 v%d, v%d, 2, %s" % (vOut, vA, sT0))
    a("s_mov_b32 %s, %d" % (sCnt, T - 1))
    if timed:
        a("s_waitcnt vmcnt(%d)" % D0)
        stamp_at(2)
    for i in range(D0, D):
        a("s_waitcnt vmcnt(%d)" % i)
        load(i)
        if i + 1 < D:
            dummy()

    order_k = {4: (0, 2, 1, 3), 8: (0, 4, 2, 6, 1, 5, 3, 7)}[fb]
    nlab = [0]

    def step(i):
        pos, half = (i - D) % N, ((i - D) // N) % 2
        a("s_waitcnt vmcnt(%d)" % (D - 1))
        load(i)
        if pos % NS == NS - 1:
            a("s_barrier")
        if pos == N - 1:
            a("s_add_u32 %s, %s, 0x100" % (sProg, sProg))
            a("v_mov_b32 v%d, %s" % (vVal, sProg))
            a("global_store_dword v%d, v%d, s[16:17] offset:%d" % (vSlot, vVal, DBG_PROG))
            a("global_load_dword v%d, v%d, s[16:17] offset:%d nt"
              % (vPeer + half, vPeerA, DBG_PROG))
        if pos == D - N - 2:
            a("s_sub_u32 %s, %s, 0x100" % (sT0, sProg))
            a("v_cmp_le_i32 vcc, %s, v%d" % (sT0, vPeer + half))
            a("s_nop 1")
            a("s_bcnt0_i32_b64 %s, vcc" % sKd)
            a("s_add_u32 %s, %s, %s" % (sKd, sKd, sRnd))
            a("s_lshr_b32 %s, %s, %d" % (sKd, sKd, {4: 4, 8: 3}[fb]))
        gap = N // fb
        if pos % gap == 0:
            nlab[0] += 1
            a("s_cmp_gt_u32 %s, %d" % (sKd, order_k[pos // gap]))
            a("s_cbranch_scc0 L_nd%d" % nlab[0])
            dummy()
            a("L_nd%d:" % nlab[0])

    a("L_load:")
    for i in range(D, D + 2 * N):
        step(i)
        if stamp and i == D + 2:
            a("s_memrealtime s[60:61]")
        if stamp and i == D + 8:
            a("s_waitcnt lgkmcnt(0)")
            a("s_mov_b32 s62, m0")
            a("s_mov_b32 m0, %s" % sCnt)
            a("s_nop 0")
            a("v_writelane_b32 v%d, s60, m0" % vSt)
            a("s_mov_b32 m0, s62")
    a("s_sub_u32 %s, %s, 1" % (sCnt, sCnt))
    a("s_cmp_lg_u32 %s, 0" % sCnt)
    a("s_cbranch_scc1 L_load")
    for i in range(D + 2 * N * (T - 1), 2 * N * T):
        step(i)
    a("ds_read_b128 %s, v%d" % (vr(vX, 4), vMrd))
    left = 2 * N * T // NS - (2 * N * T - D) // NS
    for h in range(left - 1, 0, -1):
        a("s_waitcnt vmcnt(%d)" % (h * NS))
        a("s_barrier")
    a("s_and_b32 %s, %s, 0xff" % (sT0, sProg))
    a("v_xor_b32 v%d, %s, v%d" % (vA, sT0, vPeer))
    a("v_and_b32 v%d, 0xff, v%d" % (vB, vA))
    a("v_cmp_eq_u32 vcc, 0, v%d" % vB)
    a("s_lshr_b32 %s, %s, 3" % (sT0, sP))
    a("s_lshl_b32 %s, 0x55555555, %s" % (sT0, sT0))
    a("s_and_b32 %s, %s, vcc_lo" % (sT1, sT0))
    a("v_cmp_le_i32 vcc, 0x%x, v%d" % (READY << 8, vA))
    a("s_mov_b32 %s, 0x200000" % sCnt)
    a("s_nop 0")
    a("s_and_b32 %s, %s, vcc_lo" % (sT1, sT1))
    if force:
        a("s_and_b32 s10, s2, %d" % force)
        a("s_cselect_b32 %s, 0, %s" % (sT1, sT1))
    a("s_cmp_eq_u32 %s, %s" % (sT0, sT1))
    a("s_cselect_b32 %s, 0, 0x80000000" % sSlow)
    a("s_waitcnt lgkmcnt(0)")
    a("v_max3_f32 v%d, v%d, v%d, v%d" % (vML, vX, vX + 1, vX + 2))
    a("v_max_f32 v%d, v%d, v%d" % (vML, vML, vX + 3))
    a("v_min_u32 v%d, -2, v%d" % (vML, vML))
    a("s_waitcnt vmcnt(0)")
    a("s_barrier")
    stamp_at(3)

    a("ds_read2_b32 %s, v%d offset0:0 offset1:4" % (vr(vX, 2), vMLrd))
    a("s_waitcnt lgkmcnt(0)")
    a("v_add_f32 v%d, v%d, v%d" % (vML + 1, vX, vX + 1))
    if warm:
        a("L_hop0:")
        a("s_cbranch_execz L_back")
    for sh in (8, 4, 2, 1):
        a("v_add_f32_dpp v%d, v%d, v%d row_ror:%d %s" % (vML + 1, vML + 1, vML + 1, sh, DPPF))
    a("v_or_b32 v%d, %s, v%d" % (vML + 1, sSlow, vML + 1))
    a("v_min_u32 v%d, -2, v%d" % (vML + 1, vML + 1))

    def pub_ml(flags):
        a("s_mov_b32 exec_lo, 0x00010001")
        a("s_mov_b32 exec_hi, 0x00010001")
        a("global_store_dwordx2 v%d, %s, s[18:19] %s" % (vPubML, vr(vML, 2), flags))
        a("s_mov_b64 exec, -1")

    def pub_o(k, flags):
        a("global_store_dwordx4 v%d, %s, s[18:19] offset:%d %s"
          % (vPubO, vr(vAcc + 4 * k, 4), 256 * k, flags))

    pub_ml("")
    a("s_cmp_lg_u32 %s, 0" % sSlow)
    a("s_barrier")
    for k in range(2):
        for c in range(C):
            a("ds_read_b128 %s, v%d offset:%d"
              % (vr(vBuf + 16 * k + 4 * c, 4), vOrd1 if k else vOrd0, c * 2048))
    for k in range(2):
        for c in range(1, C):
            a("s_waitcnt lgkmcnt(%d)" % (7 - 4 * k - c))
            for r in (0, 2):
                prev = vBuf + 16 * k + r if c == 1 else vAcc + 4 * k + r
                a("v_pk_add_f32 %s, %s, %s"
                  % (vr(vAcc + 4 * k + r, 2), vr(prev, 2), vr(vBuf + 16 * k + 4 * c + r, 2)))
        for r in range(4):
            a("v_min_u32 v%d, -2, v%d" % (vAcc + 4 * k + r, vAcc + 4 * k + r))
        pub_o(k, "")
    stamp_at(4)
    a("s_cbranch_scc1 L_slow")
    a("L_poll:")
    a("global_load_dwordx2 %s, v%d, s[18:19] sc1" % (vr(vMLi, 2), vInML))
    a("global_load_dwordx4 %s, v%d, s[18:19] sc1" % (vr(vX, 4), vInO))
    a("global_load_dwordx4 %s, v%d, s[18:19] offset:64 sc1" % (vr(vX + 4, 4), vInO))
    a("s_sub_u32 %s, %s, 1" % (sCnt, sCnt))
    a("s_cbranch_scc1 L_end")
    a("s_waitcnt vmcnt(1)")
    a("v_max3_u32 v%d, v%d, v%d, v%d" % (vA, vMLi, vMLi + 1, vX))
    a("v_max3_u32 v%d, v%d, v%d, v%d" % (vB, vX + 1, vX + 2, vX + 3))
    a("s_waitcnt vmcnt(0)")
    a("v_max3_u32 v%d, v%d, v%d, v%d" % (vA, vA, vX + 4, vX + 5))
    a("v_max3_u32 v%d, v%d, v%d, v%d" % (vB, vB, vX + 6, vX + 7))
    a("v_max_u32 v%d, v%d, v%d" % (vA, vA, vB))
    a("v_cmp_eq_u32 vcc, -1, v%d" % vA)
    a("s_nop 1")
    a("s_and_b64 exec, exec, vcc")
    a("s_cbranch_scc1 L_poll")
    a("s_mov_b64 exec, -1")
    stamp_at(5)
    a("v_max_f32_dpp v%d, v%d, v%d row_ror:4 %s" % (vA, vMLi, vMLi, DPPF))
    a("v_cmp_gt_i32 vcc, 0, v%d" % (vMLi + 1))
    if warm:
        a("L_hop1:")
        a("s_cbranch_execz L_back")
    a("v_max_f32_dpp v%d, v%d, v%d row_ror:8 %s" % (vA, vA, vA, DPPF))
    rows_reduce("v_max_f32", vA, vB)
    a("v_sub_f32 v%d, v%d, v%d" % (vF, vMLi, vA))
    a("v_mul_f32 v%d, %s, v%d" % (vF, sC, vF))
    a("v_exp_f32 v%d, v%d" % (vF, vF))
    a("v_mul_f32 v%d, v%d, abs(v%d)" % (vA, vF, vMLi + 1))
    a("v_mul_f32 v%d, v%d, abs(v%d)" % (vB, vF, vMLi + 1))
    for r in range(8):
        a("v_mul_f32 v%d, v%d, v%d" % (vX + r, vF, vX + r))
    swap_add("v_add_f32", "v_permlane32_swap_b32", vA, vB, vA)
    for e in range(4):
        a("v_permlane32_swap_b32 v%d, v%d" % (vX + e, vX + 4 + e))
    a("v_mov_b32 v%d, v%d" % (vB, vA))
    for e in range(4):
        a("v_add_f32 v%d, v%d, v%d" % (vX + e, vX + e, vX + 4 + e))
    swap_add("v_add_f32", "v_permlane16_swap_b32", vA, vB, vA)
    for e in range(2):
        a("v_permlane16_swap_b32 v%d, v%d" % (vX + e, vX + 2 + e))
    for e in range(2):
        a("v_add_f32 v%d, v%d, v%d" % (vX + e, vX + e, vX + 2 + e))
    for sh in (4, 8):
        for x in (vA, vX, vX + 1):
            a("v_add_f32_dpp v%d, v%d, v%d row_ror:%d %s" % (x, x, x, sh, DPPF))
    a("v_rcp_f32 v%d, v%d" % (vA, vA))
    a("s_mov_b32 exec_lo, 0x000f000f")
    a("s_mov_b32 exec_hi, 0x000f000f")
    a("v_mul_f32 v%d, v%d, v%d" % (vX, vX, vA))
    a("v_mul_f32 v%d, v%d, v%d" % (vX + 1, vX + 1, vA))
    a("v_cvt_pk_bf16_f32 v%d, v%d, v%d" % (vX, vX, vX + 1))
    a("global_store_dword v%d, v%d, s[14:15]" % (vOut, vX))
    a("s_cbranch_vccnz L_help")
    a("L_fin:")
    if timed:
        a("s_waitcnt vmcnt(0)")
        stamp_at(6)
        a("s_waitcnt lgkmcnt(0)")
    if stamp:
        a("s_mov_b64 exec, -1")
        a("s_getreg_b32 s54, hwreg(HW_REG_XCC_ID)")
        a("s_or_b32 s54, s54, %s" % sSlow)
        a("s_lshl_b32 %s, s2, 6" % sT1)
        a("s_add_u32 %s, %s, 0x200000" % (sT1, sT1))
        a("v_mov_b32 v%d, %s" % (vA, sT1))
        for i in range(8):
            a("v_mov_b32 v%d, s%d" % (vBuf + i, 40 + 2 * i))
        a("s_lshl_b32 %s, s2, 8" % sT1)
        a("s_add_u32 %s, %s, 0x300000" % (sT1, sT1))
        a("v_lshl_add_u32 v%d, v0, 2, %s" % (vB, sT1))
        a("global_store_dword v%d, v%d, s[18:19]" % (vB, vSt))
        a("s_mov_b64 exec, 1")
        a("global_store_dwordx4 v%d, %s, s[18:19]" % (vA, vr(vBuf, 4)))
        a("global_store_dwordx4 v%d, %s, s[18:19] offset:16" % (vA, vr(vBuf + 4, 4)))
    if diagpad:
        if diagx >= 0:
            lo, hi = diagx // 10, diagx % 10
            a("s_sub_u32 s56, s%d, s%d" % (40 + 2 * hi, 40 + 2 * lo))
            a("s_mul_i32 s56, s56, 10")
            a("s_add_u32 s56, s56, %d" % (diagpad * 100))
        else:
            a("s_mov_b32 s56, %d" % (diagpad * 100))
        if diagg:
            lo, hi = int(diagg[1]), int(diagg[2])
            a("s_mov_b64 exec, 1")
            a("v_mov_b32 v%d, 64" % vA)
            a("v_mov_b32 v%d, s%d" % (vBuf, 40 + 2 * hi))
            a("v_mov_b32 v%d, s%d" % (vBuf + 1, 40 + 2 * lo))
            if diagg[0] == "m":
                a("v_not_b32 v%d, v%d" % (vBuf + 1, vBuf + 1))
            a("global_atomic_umax v%d, v%d, s[16:17]" % (vA, vBuf))
            a("global_atomic_umax v%d, v%d, s[16:17] offset:4" % (vA, vBuf + 1))
        if padwg >= 0:
            a("s_cmp_lg_u32 s2, %d" % padwg)
            a("s_cbranch_scc1 L_end")
        a("L_pad:")
        a("s_memrealtime s[58:59]")
        a("s_waitcnt lgkmcnt(0)")
        a("s_sub_u32 s58, s58, s40")
        a("s_cmp_lt_u32 s58, s56")
        a("s_cbranch_scc1 L_pad")
        if diagg:
            a("global_load_dwordx2 %s, v%d, s[16:17] sc1" % (vr(vBuf, 2), vA))
            a("s_waitcnt vmcnt(0)")
            a("v_readfirstlane_b32 s10, v%d" % vBuf)
            a("v_readfirstlane_b32 s11, v%d" % (vBuf + 1))
            a("s_nop 3")
            if diagg[0] == "m":
                a("s_not_b32 s11, s11")
            a("s_sub_u32 s10, s10, s11")
            a("s_sub_u32 s10, s10, %d" % (diagsub * 100))
            a("s_max_i32 s10, s10, 0")
            a("s_min_u32 s10, s10, 2000")
            a("s_mul_i32 s10, s10, 10")
            a("s_add_u32 s56, s56, s10")
            a("L_pad2:")
            a("s_memrealtime s[58:59]")
            a("s_waitcnt lgkmcnt(0)")
            a("s_sub_u32 s58, s58, s40")
            a("s_cmp_lt_u32 s58, s56")
            a("s_cbranch_scc1 L_pad2")
    a("L_end:")
    a("s_endpgm")

    a("L_help:")
    a("s_cmp_lg_u32 %s, 0" % sSlow)
    a("s_cbranch_scc1 L_fin")
    a("s_mov_b64 exec, 1")
    a("v_mov_b32 v%d, 1" % vCnt)
    a("global_atomic_add v%d, v%d, s[16:17]" % (vCntA, vCnt))
    a("s_branch L_fin")

    a("L_slow:")
    pub_ml("sc1")
    pub_o(0, "sc1")
    pub_o(1, "sc1")
    a("s_mov_b64 exec, 1")
    a("v_mov_b32 v%d, 1" % vCnt)
    a("s_waitcnt vmcnt(0)")
    a("global_atomic_add v%d, v%d, s[16:17]" % (vCntA, vCnt))
    a("L_cnt:")
    a("s_sub_u32 %s, %s, 1" % (sCnt, sCnt))
    a("s_cbranch_scc1 L_end")
    a("global_load_dword v%d, v%d, s[16:17] sc1" % (vVal, vCntA))
    a("s_waitcnt vmcnt(0)")
    a("v_readfirstlane_b32 %s, v%d" % (sT0, vVal))
    a("s_nop 1")
    a("s_cmp_ge_u32 %s, %d" % (sT0, S))
    a("s_cbranch_scc0 L_cnt")
    a("s_mov_b64 exec, -1")
    a("s_branch L_poll")

    vLane, vRd, vMX, vMY, vAl, vNmc, vA, vB, vWO0, vWO1, vWL = range(3, 14)
    vM, vL = 14, 15
    vQ, vO, vT, vXY, vD, vK = 16, 20, 28, 30, 40, 56
    vRdK, vOwn, vVt, vS = 38, 39, 72, 76
    vSt, vWM = 1, vAl
    vCl0, vCl1 = vXY, vXY + 1
    sI = "s21"

    def fold(part, t, da, db):
        src, own, ror, bank = ((da + 1, da, 12, 1), (da + 3, da + 2, 12, 4),
                               (db, db + 1, 4, 2), (db + 2, db + 3, 4, 8))[part]
        a("v_add_f32_dpp v%d, v%d, v%d row_ror:%d row_mask:0xf bank_mask:0x%x"
          % (t, src, own, ror, bank))

    def fold_c(t):
        a("v_add_f32_dpp v%d, v%d, v%d row_ror:8 %s" % (t, t, t, DPPF))

    a("L_cons:")
    a("s_load_dwordx2 s[4:5], s[0:1], 0")
    a("s_load_dwordx4 s[8:11], s[0:1], 24")
    a("v_and_b32 v%d, 63, v0" % vLane)
    a("s_lshr_b32 %s, %s, 6" % (sW, sW))
    a("s_sub_u32 %s, %s, 1" % (sW, sW))
    a("s_lshl_b32 %s, %s, 4" % (sIdx, sP))
    a("s_add_u32 %s, %s, %s" % (sIdx, sIdx, sS))
    a("s_mov_b32 %s, %s" % (sC, f32(CS)))
    a("v_lshrrev_b32 v%d, 4, v%d" % (vA, vLane))
    a("v_lshlrev_b32 v%d, 6, v%d" % (vA, vA))
    a("v_and_b32 v%d, 3, v%d" % (vB, vLane))
    a("v_bfe_u32 v%d, v%d, 2, 2" % (vAl, vLane))
    a("v_lshl_add_u32 v%d, v%d, 4, v%d" % (vNmc, vB, vA))
    a("v_lshl_add_u32 v%d, v%d, 8, v%d" % (vRdK, vAl, vNmc))
    a("v_lshl_add_u32 v%d, v%d, 8, v%d" % (vA, vB, vA))
    a("v_lshl_add_u32 v%d, v%d, 4, v%d" % (vA, vAl, vA))
    a("v_lshlrev_b32 v%d, 4, v%d" % (vRd, vLane))
    a("s_lshl_b32 %s, %s, 10" % (sT0, sP))
    a("s_lshl_b32 %s, %s, 8" % (sT1, sP))
    a("v_add_u32 v%d, %s, v%d" % (vA, sT0, vA))
    a("v_add_u32 v%d, %s, v%d" % (vNmc, sT1, vNmc))
    a("v_and_b32 v%d, 0xf0, v%d" % (vB, vRd))
    a("v_add_u32 v%d, %s, v%d" % (vB, sT1, vB))
    a("s_lshl_b32 %s, %s, 11" % (sT0, sIdx))
    a("v_add_u32 v%d, %s, v%d" % (vCl0, sT0, vRd))
    a("s_lshl_b32 %s, %s, 7" % (sT0, sIdx))
    a("s_add_u32 %s, %s, %d" % (sT0, sT0, WS_ML))
    a("v_and_b32 v%d, 0x70, v%d" % (vCl1, vRd))
    a("v_add_u32 v%d, %s, v%d" % (vCl1, sT0, vCl1))
    for r in range(4):
        a("v_mov_b32 v%d, -1" % (vO + r))
    a("s_waitcnt lgkmcnt(0)")
    a("global_load_dwordx4 %s, v%d, s[4:5]" % (vr(vQ, 4), vA))
    a("global_load_dwordx4 %s, v%d, s[8:9]" % (vr(vK, 4), vNmc))
    a("global_load_dwordx4 %s, v%d, s[10:11]" % (vr(vVt, 4), vB))
    a("s_load_dword %s, s[12:13], 0" % sMask)
    a("s_cmp_lg_u32 %s, %d" % (sW, C - 1))
    a("s_cbranch_scc1 L_noclear")
    a("global_load_dwordx4 %s, v%d, s[18:19]" % (vr(vK + 4, 4), vCl0))
    a("global_load_dwordx4 %s, v%d, s[18:19] offset:1024" % (vr(vK + 8, 4), vCl0))
    a("global_load_dwordx4 %s, v%d, s[18:19]" % (vr(vK + 12, 4), vCl1))
    a("L_noclear:")
    if warm:
        a("; touch code that first runs late, one region per wave")
        a("s_mov_b64 exec, 0")
        for c in range(C - 1):
            a("s_cmp_eq_u32 %s, %d" % (sW, c))
            a("s_cbranch_scc1 L_hop%d" % c)
        a("L_back:")
        a("s_mov_b64 exec, -1")
    a("s_mul_i32 %s, %s, %d" % (sT0, sW, G * 1024))
    a("v_and_b32 v%d, 32, v%d" % (vA, vLane))
    a("v_lshlrev_b32 v%d, 2, v%d" % (vA, vA))
    a("v_xor_b32 v%d, v%d, v%d" % (vRd, vRd, vA))
    a("v_add_u32 v%d, %s, v%d" % (vRd, sT0, vRd))
    a("v_and_b32 v%d, 8, v%d" % (vA, vLane))
    a("v_lshlrev_b32 v%d, 4, v%d" % (vA, vA))
    a("v_xor_b32 v%d, v%d, v%d" % (vRdK, vRdK, vA))
    a("v_add_u32 v%d, %s, v%d" % (vRdK, sT0, vRdK))
    a("s_lshl_b32 %s, %s, 8" % (sT0, sW))
    a("s_add_u32 %s, %s, %d" % (sT0, sT0, ldsL))
    a("v_lshl_add_u32 v%d, v%d, 2, %s" % (vWL, vLane, sT0))
    a("v_and_b32 v%d, 3, v%d" % (vWM, vLane))
    a("v_lshlrev_b32 v%d, 4, v%d" % (vWM, vWM))
    a("v_add_u32 v%d, %d, v%d" % (vWM, ldsM, vWM))
    a("v_bfe_u32 v%d, v%d, 4, 1" % (vA, vLane))
    a("v_bfe_u32 v%d, v%d, 5, 1" % (vB, vLane))
    a("v_lshl_add_u32 v%d, v%d, 1, v%d" % (vA, vA, vB))
    a("v_and_b32 v%d, 15, v%d" % (vB, vLane))
    a("v_lshl_add_u32 v%d, v%d, 2, v%d" % (vA, vB, vA))
    a("s_lshl_b32 %s, %s, 11" % (sT0, sW))
    a("s_add_u32 %s, %s, %d" % (sT0, sT0, ldsO))
    a("v_lshl_add_u32 v%d, v%d, 2, %s" % (vWO0, vA, sT0))
    a("v_xor_b32 v%d, 0x80, v%d" % (vWO1, vWO0))
    a("v_and_b32 v%d, 8, v%d" % (vA, vLane))
    a("v_lshlrev_b32 v%d, 1, v%d" % (vA, vA))
    a("v_mov_b32 v%d, 0xffff" % vB)
    a("v_lshlrev_b32 v%d, v%d, v%d" % (vA, vA, vB))
    a("v_bfe_i32 v%d, v%d, 2, 1" % (vB, vLane))
    a("v_and_b32 v%d, v%d, v%d" % (vMY, vA, vB))
    a("v_xor_b32 v%d, v%d, v%d" % (vMX, vA, vMY))
    a("s_or_b32 %s, %s, %s" % (sT0, sS, sW))
    a("s_cselect_b32 %s, 0, 16" % sT0)
    a("v_cmp_gt_u32 vcc, %s, v%d" % (sT0, vLane))
    a("s_lshr_b32 %s, %s, 3" % (sT0, sP))
    a("s_lshl_b32 %s, %s, 4" % (sT0, sT0))
    a("v_cndmask_b32 v%d, 0, -1, vcc" % vOwn)
    a("s_mov_b32 %s, 0" % sI)
    a("s_barrier")
    a("s_cmp_lg_u32 %s, %d" % (sW, C - 1))
    a("s_waitcnt vmcnt(0) lgkmcnt(0)")
    a("s_cbranch_scc1 L_noreset")
    a("; reset the messages; acknowledged before barrier %d" % READY)
    a("global_store_dwordx4 v%d, %s, s[18:19]" % (vCl0, vr(vO, 4)))
    a("global_store_dwordx4 v%d, %s, s[18:19] offset:1024" % (vCl0, vr(vO, 4)))
    a("global_store_dwordx4 v%d, %s, s[18:19]" % (vCl1, vr(vO, 4)))
    a("L_noreset:")
    a("v_mfma_f32_16x16x32_bf16 %s, %s, %s, 0" % (vr(vD, 4), vr(vK, 4), vr(vQ, 4)))
    a("s_lshr_b32 %s, %s, %s" % (sMask, sMask, sT0))
    a("s_lshl_b32 %s, %s, 16" % (sMask, sMask))
    a("v_mov_b32 v%d, %s" % (vA, sMask))
    a("v_sub_f32 v%d, 1.0, v%d" % (vA, vA))
    a("v_mul_f32 v%d, %s, v%d" % (vA, f32(-1e9 * 128 ** 0.5), vA))
    for part in range(4):
        fold(part, vM, vD, vD)
    fold_c(vM)
    a("v_add_f32 v%d, v%d, v%d" % (vM, vM, vA))
    a("v_mov_b32 v%d, v%d" % (vSt, vM))
    a("s_branch L_k_in")

    NT = G // 2

    def advance(rd):
        a("v_add_u32 v%d, %d, v%d" % (rd, NS * 1024, rd))
        a("v_and_b32 v%d, %d, v%d" % (rd, RING - 1, rd))

    a("L_k:")
    l0 = a.mark()
    a("s_waitcnt vmcnt(0)")
    a("s_barrier")
    a("L_k_in:")
    for j in range(G):
        a("ds_read_b128 %s, v%d offset:%d" % (vr(vK + 4 * j, 4), vRdK, j * 1024))
    advance(vRdK)
    for j in range(G):
        a("s_waitcnt lgkmcnt(%d)" % (G - 1 - j))
        a("v_mfma_f32_16x16x32_bf16 %s, %s, %s, 0"
          % (vr(vD + 4 * j, 4), vr(vK + 4 * j, 4), vr(vQ, 4)))
    for part in range(4):
        for i in range(NT):
            fold(part, vT + i, vD + 8 * i, vD + 8 * i + 4)
    for i in range(NT):
        fold_c(vT + i)
    a("s_set_gpr_idx_on %s, gpr_idx(DST)" % sI)
    for i in range(NT):
        a("v_mov_b32 v%d, v%d" % (vS + i, vT + i))
    a("s_set_gpr_idx_off")
    a("v_max3_f32 v%d, v%d, v%d, v%d" % (vM, vM, vT, vT + NT - 1))
    a("s_add_u32 %s, %s, %d" % (sI, sI, NT))
    a("s_cmp_lt_u32 %s, 64" % sI)
    a("s_cbranch_scc1 L_k")
    a.loop_check(l0)

    def prep():
        a("s_set_gpr_idx_on %s, gpr_idx(SRC0)" % sI)
        for i in range(NT):
            a("v_mov_b32 v%d, v%d" % (vT + i, vS + i))
        a("s_set_gpr_idx_off")
        for i in range(NT):
            a("v_fma_f32 v%d, v%d, %s, v%d" % (vT + i, vT + i, sC, vNmc))
        for i in range(NT):
            a("v_exp_f32 v%d, v%d" % (vT + i, vT + i))
        a("s_add_u32 %s, %s, %d" % (sI, sI, NT))
        a("s_cmp_lt_u32 %s, 64" % sI)
        for i in range(NT):
            a("v_add_f32 v%d, v%d, v%d" % (vL, vL, vT + i))
        for i in range(NT):
            a("v_cvt_pk_bf16_f32 v%d, v%d, v%d" % (vT + i, vT + i, vT + i))
        a("ds_write_b32 v%d, v%d" % (vWL, vL))
        for i in range(NT):
            x, p = vXY + 4 * i, vT + i
            a("v_and_b32 v%d, v%d, v%d" % (x, p, vMX))
            a("v_and_b32 v%d, v%d, v%d" % (x + 3, p, vMY))
            a("v_and_b32_dpp v%d, v%d, v%d row_ror:4 %s" % (x + 1, p, vMY, DPPF))
            a("v_and_b32_dpp v%d, v%d, v%d row_ror:4 %s" % (x + 2, p, vMX, DPPF))
        a("s_waitcnt lgkmcnt(0)")

    a("v_max_f32_dpp v%d, v%d, v%d row_ror:4 %s" % (vM, vM, vM, DPPF))
    rows_reduce("v_max_f32", vM, vB)
    a("v_lshl_add_u32 v%d, %s, 2, v%d" % (vA, sW, vWM))
    a("ds_write_b32 v%d, v%d" % (vA, vM))
    a("s_mov_b32 %s, 0" % sI)
    a("s_waitcnt lgkmcnt(0)")
    a("s_barrier")
    a("ds_read_b128 %s, v%d" % (vr(vD, 4), vWM))
    a("s_waitcnt lgkmcnt(0)")
    a("v_max3_f32 v%d, v%d, v%d, v%d" % (vM, vD, vD + 1, vD + 2))
    a("v_max_f32 v%d, v%d, v%d" % (vM, vM, vD + 3))
    a("v_mul_f32 v%d, %s, v%d" % (vNmc, f32(-CS), vM))
    a("v_fma_f32 v%d, v%d, %s, v%d" % (vA, vSt, sC, vNmc))
    a("v_exp_f32 v%d, v%d" % (vA, vA))
    a("v_cmp_ne_u32 vcc, 0, v%d" % vMX)
    a("v_and_b32 v%d, v%d, v%d" % (vA, vA, vOwn))
    a("v_cvt_pk_bf16_f32 v%d, v%d, v%d" % (vB, vA, vA))
    a("v_cndmask_b32 v%d, 0, v%d, vcc" % (vL, vA))
    a("v_and_b32 v%d, v%d, v%d" % (vXY, vB, vMX))
    a("v_and_b32 v%d, v%d, v%d" % (vXY + 1, vB, vMY))
    for k in range(2):
        a("v_mfma_f32_16x16x16_bf16 %s, %s, %s, 0"
          % (vr(vO + 4 * k, 4), vr(vXY, 2), vr(vVt + 2 * k, 2)))
    prep()
    a("s_branch L_v_in")
    if warm:
        a("L_hop2:")
        a("s_branch L_back")

    a("L_v:")
    l0 = a.mark()
    prep()
    a("s_barrier")
    a("L_v_in:")
    for j in range(G):
        a("ds_read_b128 %s, v%d offset:%d" % (vr(vK + 4 * j, 4), vRd, j * 1024))
    advance(vRd)
    for j in range(G):
        a("s_waitcnt lgkmcnt(%d)" % (G - 1 - j))
        for k in range(2):
            a("v_mfma_f32_16x16x16_bf16 %s, %s, %s, %s"
              % (vr(vO + 4 * k, 4), vr(vXY + 2 * j, 2), vr(vK + 4 * j + 2 * k, 2),
                 vr(vO + 4 * k, 4)))
    a("s_cbranch_scc1 L_v")
    a.loop_check(l0)
    for r in range(8):
        a("ds_write_b32 v%d, v%d offset:%d"
          % (vWO1 if r >= 4 else vWO0, vO + r, (r % 4) * 512 + (r // 4) * 256))
    a("s_waitcnt lgkmcnt(0)")
    a("s_barrier")
    a("L_last:")
    a("s_endpgm")

    nvg = max(a.max_v(), vS + 64)
    acc = (nvg + 3) // 4 * 4
    out = HEADER
    out += "; @launch grid=(%d,1,1) block=(%d,1,1) lds=%d\n" % (NWG, 64 * (C + 1), LDS)
    out += '.amdgcn_target "amdgcn-amd-amdhsa--gfx950"\n.text\n'
    out += ".globl %s_kernel\n.p2align 8\n.type %s_kernel,@function\n" % (NAME, NAME)
    out += a.text()
    out += """.section .rodata,"a"
.p2align 6
.amdhsa_kernel %s_kernel
  .amdhsa_next_free_vgpr %d
  .amdhsa_next_free_sgpr 64
  .amdhsa_accum_offset %d
  .amdhsa_group_segment_fixed_size 0
  .amdhsa_kernarg_size 72
  .amdhsa_user_sgpr_count 2
  .amdhsa_user_sgpr_kernarg_segment_ptr 1
  .amdhsa_system_sgpr_workgroup_id_x 1
.end_amdhsa_kernel
""" % (NAME, nvg, acc)
    return out


if __name__ == "__main__":
    kw = {}
    for arg in sys.argv[2:]:
        k, v = arg.split("=")
        kw[k] = int(v) if v.lstrip("-").isdigit() else v
    open(sys.argv[1], "w").write(gen(**kw))
```

```python
import math
import struct
import sys

from asmlib import Asm

NAME = "standalone__tree_speculative_verify_tree_attention_over_candidate_token_tree__decode"
HEADER = open("cdna_kernels/%s.s.ref" % NAME).read().split("; Override launch")[0]
DPPF = "row_mask:0xf bank_mask:0xf"

ORDERS = {
    "seq": ((19, 20, 21, 22), (14, 15, 16, 17, 18), ()),
    "rowset": ((14, 15, 16, 21), (19, 20, 17, 18, 22), ((1, 12), (2, 11))),
    "2set": ((14, 15, 21, 17), (16, 19, 20, 18, 22), ((1, 12), (3, 11))),
    "2setb": ((14, 15, 21, 18), (16, 19, 20, 17, 22), ((1, 12),)),
    "2c": ((15, 16, 21, 17), (14, 19, 20, 18, 22), ((0, 12), (1, 14), (3, 11))),
    "2d": ((15, 16, 21, 18), (14, 19, 20, 17, 22), ((0, 12), (1, 14))),
    "2e": ((15, 16, 21, 19), (14, 20, 17, 18, 22), ((0, 12), (1, 11))),
    "4c": ((16, 21, 17, 18), (14, 15, 19, 20, 22), ((0, 12), (2, 14))),
    "4d": ((16, 21, 19, 20), (14, 15, 17, 18, 22), ((0, 11),)),
    "4e": ((16, 21, 18, 19), (14, 15, 20, 17, 22), ((0, 12),)),
    "h18": ((14, 15, 16, 18), (21, 19, 20, 22, 17), ((1, 12), (2, 13))),
    "4set": ((14, 21, 17, 18), (15, 16, 19, 20, 22), ((2, 12),)),
}


def f32(x):
    return "0x%08x" % struct.unpack("<I", struct.pack("<f", x))[0]


def vr(a, n):
    return "v[%d:%d]" % (a, a + n - 1)


def gen(D=27, D0=22, fb=8, bias=2, order="h18", pre=1, stamp=0, diagpad=0, diagx=-1,
        force=0, NS=16, warm=1, padwg=-1, diagg=None, diagsub=0, gm=(26, 14, 7), gg=2):
    N, C, S = 16, 4, 16
    G = NS // C
    NWG = 16 * S
    T = 32
    RING = 65536
    assert RING // 1024 - 2 * NS > D - 1 and N + 2 <= D <= 2 * N
    CS = 128 ** -0.5 * math.log2(math.e)
    timed = stamp or diagpad
    if isinstance(gm, str):
        gm = tuple(int(x) for x in gm.split("."))
    sbits, tbits, xs = ORDERS[order]
    a = Asm()

    ldsO = RING
    ldsL = ldsO + C * 2048
    ldsM = ldsL + C * 256
    LDS = ldsM + 64
    WS_ML = 0x100000
    DBG_PROG = 128
    READY = 2

    sW, sP, sS, sK, sCnt, sC, sT0, sT1, sIdx, sMask = (
        "s3", "s6", "s7", "s20", "s22", "s23", "s32", "s33", "s34", "s35")
    sBase, sTile, sTK, sTV = "s36", "s37", "s38", "s39"
    sProg, sKd, sRnd, sSlow = "s4", "s5", "s8", "s9"

    def stamp_at(i):
        if timed:
            a("s_memrealtime s[%d:%d]" % (40 + 2 * i, 41 + 2 * i))

    def swap_add(op, swap, x, y, dst):
        a("%s v%d, v%d" % (swap, x, y))
        a("%s v%d, v%d, v%d" % (op, dst, x, y))

    def rows_reduce(op, x, tmp):
        for swap in ("v_permlane16_swap_b32", "v_permlane32_swap_b32"):
            a("v_mov_b32 v%d, v%d" % (tmp, x))
            swap_add(op, swap, x, tmp, x)

    def scatter(dst, src, bits, first):
        i = 0
        while i < len(bits):
            n = 1
            while (i + n < len(bits) and bits[i + n][0] == bits[i][0] + n
                   and bits[i + n][1] == bits[i][1] + n):
                n += 1
            a("s_bfe_u32 %s, %s, 0x%x" % (sT0, src, n << 16 | bits[i][0]))
            a("s_lshl_b32 %s, %s, %d" % (sT0, sT0, bits[i][1]))
            a("s_xor_b32 %s, %s, %s" % (dst, first, sT0))
            first = dst
            i += n

    a("%s_kernel:" % NAME)
    a("s_load_dwordx2 s[24:25], s[0:1], 8")
    a("s_load_dwordx2 s[28:29], s[0:1], 16")
    a("s_load_dwordx8 s[12:19], s[0:1], 40")
    stamp_at(0)
    a("v_readfirstlane_b32 %s, v0" % sW)
    a("s_cmp_ge_u32 s2, %d" % NWG)
    a("s_cbranch_scc1 L_end")
    a("s_and_b32 %s, s2, 15" % sP)
    a("s_lshr_b32 %s, s2, 4" % sS)
    a("s_cmp_eq_u32 %s, 0" % sW)
    a("s_cbranch_scc1 L_loader")
    if pre:
        a("; the first workgroups pull the code into L2")
        a("s_sub_u32 %s, %s, 64" % (sT0, sW))
        a("s_or_b32 %s, %s, %s" % (sT0, sT0, sS))
        a("s_cbranch_scc1 L_cons")
        a("s_getpc_b64 s[36:37]")
        a("L_pc:")
        a("v_lshlrev_b32 v1, 7, v0")
        a("v_and_b32 v1, 0x1fff, v1")
        a("v_min_u32 v1, L_last-L_pc, v1")
        a("global_load_dword v2, v1, s[36:37]")
    a("s_branch L_cons")

    vOff, vA, vB = [1, 2], 3, 4
    vCntA, vCnt, vMLrd, vOrd0, vOrd1, vPubO, vPubML, vInO, vInML, vOut, vF = range(5, 16)
    vML, vMLi, vX, vAcc, vBuf = 16, 18, 20, 28, 36
    vOob, vSlot, vPeerA, vVal, vPeer, vDum = 68, 69, 70, 71, 72, 74
    vMrd, vSt, vTk, vTkA, vTwo = 75, 76, 77, 78, 79
    sRep = "s10"
    a("L_loader:")
    a("s_setprio 3")
    a("s_lshl_b32 %s, %s, 23" % (sBase, sP))
    scatter(sBase, sS, list(enumerate(sbits)) + [x for x in xs if x[1] >= 12], sBase)
    a("s_mov_b32 %s, 1" % sTile)
    a("s_xor_b32 %s, %s, %d" % (sTV, sBase, 1 << tbits[0]))
    a("s_mov_b32 %s, %s" % (sTK, sBase))
    a("s_mov_b32 %s, %s" % (sK, sBase))
    a("s_mov_b32 s26, 0x8000000")
    a("s_mov_b32 s27, 0x00020000")
    a("s_mov_b32 m0, 0")
    a("v_lshlrev_b32 v%d, 4, v0" % vA)
    a("v_and_b32 v%d, 32, v0" % vB)
    a("v_lshlrev_b32 v%d, 2, v%d" % (vB, vB))
    a("v_xor_b32 v%d, v%d, v%d" % (vOff[0], vA, vB))
    x11 = [b for b, ab in xs if ab == 11]
    if x11:
        a("s_bfe_u32 %s, %s, 0x%x" % (sT0, sS, 1 << 16 | x11[0]))
        a("s_lshl_b32 %s, %s, 11" % (sT0, sT0))
        a("v_add_u32 v%d, %s, v%d" % (vOff[0], sT0, vOff[0]))
        a("v_xor_b32 v%d, 0x800, v%d" % (vOff[1], vOff[0]))
    else:
        vOff = [vOff[0], vOff[0]]
    per = 2 if x11 else 4

    def load(i, burst=False):
        j = i % N
        a("buffer_load_dwordx4 v%d, s[24:27], %s offen offset:%d nt lds"
          % (vOff[(j % 4) // 2], sK, (j % per) * 1024))
        if i % per == per - 1:
            a("s_add_u32 m0, m0, %d" % (per * 1024))
            if (i + 1) % (2 * N) == 0:
                a("s_and_b32 m0, m0, %d" % (RING - 1))
            if i % 4 != 3 and burst:
                a("s_nop 0")
        if j == 4 and i >= N:
            a("s_add_u32 %s, %s, 1" % (sTile, sTile))
            scatter(sTV, sTile, list(enumerate(tbits)), sBase)
        if i % 4 == 3:
            if j + 1 < N:
                a("s_xor_b32 %s, %s, %d" % (sK, sTK, ((j + 1) // 4) * 4096))
            else:
                a("s_mov_b32 %s, %s" % (sTK, sTV))
                if (i // N) % 2 == 1:
                    a("s_cmp_eq_u32 %s, %d" % (sTile, T))
                    a("s_cselect_b64 s[24:25], s[28:29], s[24:25]")
                a("s_mov_b32 %s, %s" % (sK, sTV))

    def dummy():
        a("buffer_load_dword v%d, v%d, s[24:27], 0 offen" % (vDum, vOob))

    a("s_waitcnt lgkmcnt(0)")
    stamp_at(1)
    for i in range(D0):
        load(i, True)
    a("v_and_b32 v%d, 31, v0" % vPeerA)
    a("v_lshlrev_b32 v%d, 2, v%d" % (vPeerA, vPeerA))
    a("global_load_dword v%d, v%d, s[16:17] offset:%d" % (vDum, vPeerA, DBG_PROG))
    a("s_getreg_b32 %s, hwreg(HW_REG_XCC_ID, 0, 4)" % sT0)
    a("s_and_b32 %s, %s, 1" % (sRnd, sT0))
    a("s_mul_i32 %s, %s, %d" % (sRnd, sRnd, 2 * bias))
    a("s_add_u32 %s, %s, %d" % (sRnd, sRnd, 32 // fb - bias))
    a("s_lshl_b32 %s, %s, 3" % (sT0, sT0))
    a("s_and_b32 %s, s2, 7" % sProg)
    a("s_or_b32 %s, %s, %s" % (sProg, sProg, sT0))
    a("s_mov_b32 %s, %d" % (sKd, fb // 2))
    a("s_lshr_b32 %s, s2, 3" % sT0)
    a("s_lshl_b32 %s, %s, 2" % (sT0, sT0))
    a("v_mov_b32 v%d, %s" % (vSlot, sT0))
    a("v_mov_b32 v%d, 0x7f000000" % vOob)
    if gm:
        a("s_cmp_lt_u32 s2, 8")
        a("s_cselect_b32 %s, 0x%x, 0" % (sRep, sum(1 << c for c in gm)))
        a("s_add_u32 %s, %s, %d" % (sRnd, sRnd, 7 * gg // 2))
        a("v_mov_b32 v%d, 7" % vTk)
        a("v_mov_b32 v%d, 64" % vTkA)
        a("v_mov_b32 v%d, 2" % vTwo)
    a("v_lshlrev_b32 v%d, 31, v0" % vPeer)
    a("v_or_b32 v%d, 0x7ff, v%d" % (vPeer, vPeer))
    a("v_mov_b32 v%d, v%d" % (vPeer + 1, vPeer))
    a("s_lshl_b32 %s, %s, 4" % (sIdx, sP))
    a("s_add_u32 %s, %s, %s" % (sIdx, sIdx, sS))
    a("s_mov_b32 %s, %s" % (sC, f32(CS)))
    a("s_lshl_b32 %s, %s, 2" % (sT0, sP))
    a("v_mov_b32 v%d, %s" % (vCntA, sT0))
    a("v_lshrrev_b32 v%d, 4, v0" % vA)
    a("v_and_b32 v%d, 15, v0" % vB)
    a("v_lshlrev_b32 v%d, 6, v%d" % (vMLrd, vB))
    a("v_lshl_add_u32 v%d, v%d, 2, v%d" % (vMLrd, vA, vMLrd))
    a("v_add_u32 v%d, %d, v%d" % (vMLrd, ldsL, vMLrd))
    a("v_lshlrev_b32 v%d, 4, v%d" % (vMrd, vA))
    a("v_add_u32 v%d, %d, v%d" % (vMrd, ldsM, vMrd))
    a("v_and_b32 v%d, 1, v0" % vOrd0)
    a("v_mul_u32_u24 v%d, 24, v%d" % (vOrd0, vOrd0))
    a("v_bfe_u32 v%d, v0, 1, 3" % vOrd1)
    a("v_add_u32 v%d, v%d, v%d" % (vOrd0, vOrd0, vOrd1))
    a("v_lshl_add_u32 v%d, v%d, 5, v%d" % (vOrd0, vA, vOrd0))
    a("v_lshlrev_b32 v%d, 4, v%d" % (vOrd0, vOrd0))
    a("v_add_u32 v%d, %d, v%d" % (vOrd0, ldsO, vOrd0))
    a("v_xor_b32 v%d, 0x80, v%d" % (vOrd1, vOrd0))
    a("s_lshl_b32 %s, %s, 11" % (sT0, sIdx))
    a("v_lshl_add_u32 v%d, v%d, 5, v%d" % (vPubO, vA, vB))
    a("v_lshl_add_u32 v%d, v%d, 4, %s" % (vPubO, vPubO, sT0))
    a("s_lshl_b32 %s, %s, 7" % (sT0, sIdx))
    a("s_add_u32 %s, %s, %d" % (sT0, sT0, WS_ML))
    a("v_lshl_add_u32 v%d, v%d, 3, %s" % (vPubML, vA, sT0))
    a("v_lshrrev_b32 v%d, 2, v0" % vA)
    a("v_and_b32 v%d, 3, v0" % vB)
    a("s_lshl_b32 %s, %s, 8" % (sT0, sP))
    a("s_add_u32 %s, %s, %s" % (sT0, sT0, sS))
    a("s_lshl_b32 %s, %s, 7" % (sT0, sT0))
    a("v_lshl_add_u32 v%d, v%d, 7, v%d" % (vInO, vA, vB))
    a("v_lshl_add_u32 v%d, v%d, 4, %s" % (vInO, vInO, sT0))
    a("s_lshl_b32 %s, %s, 11" % (sT0, sP))
    a("s_lshr_b32 %s, %s, 2" % (sT1, sS))
    a("s_lshl_b32 %s, %s, 3" % (sT1, sT1))
    a("s_add_u32 %s, %s, %s" % (sT0, sT0, sT1))
    a("s_add_u32 %s, %s, %d" % (sT0, sT0, WS_ML))
    a("v_lshl_add_u32 v%d, v%d, 7, %s" % (vInML, vA, sT0))
    a("v_lshrrev_b32 v%d, 5, v0" % vA)
    a("v_lshl_add_u32 v%d, v%d, 2, v%d" % (vA, vA, vB))
    a("v_bfe_u32 v%d, v0, 4, 1" % vB)
    a("v_lshl_add_u32 v%d, v%d, 1, v%d" % (vA, vA, vB))
    a("s_lshl_b32 %s, %s, 6" % (sT0, sIdx))
    a("v_lshl_add_u32 v%d, v%d, 2, %s" % (vOut, vA, sT0))
    a("s_mov_b32 %s, %d" % (sCnt, T - 1))
    if timed:
        a("s_waitcnt vmcnt(%d)" % D0)
        stamp_at(2)
    for i in range(D0, D):
        a("s_waitcnt vmcnt(%d)" % i)
        load(i)
        if i + 1 < D:
            dummy()

    order_k = {4: (0, 2, 1, 3), 8: (0, 4, 2, 6, 1, 5, 3, 7)}[fb]
    nlab = [0]

    def step(i):
        pos, half = (i - D) % N, ((i - D) // N) % 2
        a("s_waitcnt vmcnt(%d)" % (D - 1))
        load(i)
        if pos % NS == NS - 1:
            a("s_barrier")
        if pos == N - 1:
            a("s_add_u32 %s, %s, 0x10000" % (sProg, sProg))
            if gm:
                a("s_mov_b64 exec, 1")
                a("v_lshl_or_b32 v%d, v%d, 8, %s" % (vVal, vTk, sProg))
            else:
                a("v_mov_b32 v%d, %s" % (vVal, sProg))
            a("global_store_dword v%d, v%d, s[16:17] offset:%d" % (vSlot, vVal, DBG_PROG))
            if gm and half == 0:
                a("s_bitcmp1_b32 %s, %s" % (sRep, sCnt))
                a("s_cbranch_scc0 L_norank")
                a("global_atomic_add v%d, v%d, v%d, s[16:17] sc0" % (vTk, vTkA, vTwo))
                a("v_add_u32 v%d, 4, v%d" % (vTkA, vTkA))
                a("L_norank:")
            if gm:
                a("s_mov_b64 exec, -1")
            a("global_load_dword v%d, v%d, s[16:17] offset:%d nt"
              % (vPeer + half, vPeerA, DBG_PROG))
        if pos == D - N - 2:
            a("s_sub_u32 %s, %s, 0x10000" % (sT0, sProg))
            a("v_cmp_le_i32 vcc, %s, v%d" % (sT0, vPeer + half))
            if gm:
                a("v_readfirstlane_b32 %s, v%d" % (sT1, vPeer + half))
            a("s_nop 1")
            a("s_bcnt0_i32_b64 %s, vcc" % sKd)
            a("s_add_u32 %s, %s, %s" % (sKd, sKd, sRnd))
            if gm:
                a("s_bfe_u32 %s, %s, 0x40008" % (sT1, sT1))
                if gg != 2:
                    a("s_mul_i32 %s, %s, %d" % (sT1, sT1, gg))
                    a("s_lshr_b32 %s, %s, 1" % (sT1, sT1))
                a("s_sub_i32 %s, %s, %s" % (sKd, sKd, sT1))
                a("s_max_i32 %s, %s, 0" % (sKd, sKd))
            a("s_lshr_b32 %s, %s, %d" % (sKd, sKd, {4: 4, 8: 3}[fb]))
        gap = N // fb
        if pos % gap == 0:
            nlab[0] += 1
            a("s_cmp_gt_u32 %s, %d" % (sKd, order_k[pos // gap]))
            a("s_cbranch_scc0 L_nd%d" % nlab[0])
            dummy()
            a("L_nd%d:" % nlab[0])

    a("L_load:")
    for i in range(D, D + 2 * N):
        step(i)
        if stamp and i == D + 2:
            a("s_memrealtime s[60:61]")
        if stamp and i == D + 8:
            a("s_waitcnt lgkmcnt(0)")
            a("s_mov_b32 s62, m0")
            a("s_mov_b32 m0, %s" % sCnt)
            a("s_nop 0")
            a("v_writelane_b32 v%d, s60, m0" % vSt)
            a("s_mov_b32 m0, s62")
    a("s_sub_u32 %s, %s, 1" % (sCnt, sCnt))
    a("s_cmp_lg_u32 %s, 0" % sCnt)
    a("s_cbranch_scc1 L_load")
    for i in range(D + 2 * N * (T - 1), 2 * N * T):
        step(i)
    a("ds_read_b128 %s, v%d" % (vr(vX, 4), vMrd))
    left = 2 * N * T // NS - (2 * N * T - D) // NS
    for h in range(left - 1, 0, -1):
        a("s_waitcnt vmcnt(%d)" % (h * NS))
        a("s_barrier")
    a("s_and_b32 %s, %s, 0xff" % (sT0, sProg))
    a("v_xor_b32 v%d, %s, v%d" % (vA, sT0, vPeer))
    a("v_and_b32 v%d, 0xff, v%d" % (vB, vA))
    a("v_cmp_eq_u32 vcc, 0, v%d" % vB)
    a("s_lshr_b32 %s, %s, 3" % (sT0, sP))
    a("s_lshl_b32 %s, 0x55555555, %s" % (sT0, sT0))
    a("s_and_b32 %s, %s, vcc_lo" % (sT1, sT0))
    a("v_cmp_le_i32 vcc, 0x%x, v%d" % (READY << 16, vA))
    a("s_mov_b32 %s, 0x200000" % sCnt)
    a("s_nop 0")
    a("s_and_b32 %s, %s, vcc_lo" % (sT1, sT1))
    if force:
        a("s_and_b32 s11, s2, %d" % force)
        a("s_cselect_b32 %s, 0, %s" % (sT1, sT1))
    a("s_cmp_eq_u32 %s, %s" % (sT0, sT1))
    a("s_cselect_b32 %s, 0, 0x80000000" % sSlow)
    a("s_waitcnt lgkmcnt(0)")
    a("v_max3_f32 v%d, v%d, v%d, v%d" % (vML, vX, vX + 1, vX + 2))
    a("v_max_f32 v%d, v%d, v%d" % (vML, vML, vX + 3))
    a("v_min_u32 v%d, -2, v%d" % (vML, vML))
    a("s_waitcnt vmcnt(0)")
    a("s_barrier")
    stamp_at(3)

    a("ds_read2_b32 %s, v%d offset0:0 offset1:4" % (vr(vX, 2), vMLrd))
    a("s_waitcnt lgkmcnt(0)")
    a("v_add_f32 v%d, v%d, v%d" % (vML + 1, vX, vX + 1))
    if warm:
        a("L_hop0:")
        a("s_cbranch_execz L_back")
    for sh in (8, 4, 2, 1):
        a("v_add_f32_dpp v%d, v%d, v%d row_ror:%d %s" % (vML + 1, vML + 1, vML + 1, sh, DPPF))
    a("v_or_b32 v%d, %s, v%d" % (vML + 1, sSlow, vML + 1))
    a("v_min_u32 v%d, -2, v%d" % (vML + 1, vML + 1))

    def pub_ml(flags):
        a("s_mov_b32 exec_lo, 0x00010001")
        a("s_mov_b32 exec_hi, 0x00010001")
        a("global_store_dwordx2 v%d, %s, s[18:19] %s" % (vPubML, vr(vML, 2), flags))
        a("s_mov_b64 exec, -1")

    def pub_o(k, flags):
        a("global_store_dwordx4 v%d, %s, s[18:19] offset:%d %s"
          % (vPubO, vr(vAcc + 4 * k, 4), 256 * k, flags))

    pub_ml("")
    a("s_cmp_lg_u32 %s, 0" % sSlow)
    a("s_barrier")
    for k in range(2):
        for c in range(C):
            a("ds_read_b128 %s, v%d offset:%d"
              % (vr(vBuf + 16 * k + 4 * c, 4), vOrd1 if k else vOrd0, c * 2048))
    for k in range(2):
        for c in range(1, C):
            a("s_waitcnt lgkmcnt(%d)" % (7 - 4 * k - c))
            for r in (0, 2):
                prev = vBuf + 16 * k + r if c == 1 else vAcc + 4 * k + r
                a("v_pk_add_f32 %s, %s, %s"
                  % (vr(vAcc + 4 * k + r, 2), vr(prev, 2), vr(vBuf + 16 * k + 4 * c + r, 2)))
        for r in range(4):
            a("v_min_u32 v%d, -2, v%d" % (vAcc + 4 * k + r, vAcc + 4 * k + r))
        pub_o(k, "")
    stamp_at(4)
    a("s_cbranch_scc1 L_slow")
    a("L_poll:")
    a("global_load_dwordx2 %s, v%d, s[18:19] sc1" % (vr(vMLi, 2), vInML))
    a("global_load_dwordx4 %s, v%d, s[18:19] sc1" % (vr(vX, 4), vInO))
    a("global_load_dwordx4 %s, v%d, s[18:19] offset:64 sc1" % (vr(vX + 4, 4), vInO))
    a("s_sub_u32 %s, %s, 1" % (sCnt, sCnt))
    a("s_cbranch_scc1 L_end")
    a("s_waitcnt vmcnt(1)")
    a("v_max3_u32 v%d, v%d, v%d, v%d" % (vA, vMLi, vMLi + 1, vX))
    a("v_max3_u32 v%d, v%d, v%d, v%d" % (vB, vX + 1, vX + 2, vX + 3))
    a("s_waitcnt vmcnt(0)")
    a("v_max3_u32 v%d, v%d, v%d, v%d" % (vA, vA, vX + 4, vX + 5))
    a("v_max3_u32 v%d, v%d, v%d, v%d" % (vB, vB, vX + 6, vX + 7))
    a("v_max_u32 v%d, v%d, v%d" % (vA, vA, vB))
    a("v_cmp_eq_u32 vcc, -1, v%d" % vA)
    a("s_nop 1")
    a("s_and_b64 exec, exec, vcc")
    a("s_cbranch_scc1 L_poll")
    a("s_mov_b64 exec, -1")
    stamp_at(5)
    a("v_max_f32_dpp v%d, v%d, v%d row_ror:4 %s" % (vA, vMLi, vMLi, DPPF))
    a("v_cmp_gt_i32 vcc, 0, v%d" % (vMLi + 1))
    if warm:
        a("L_hop1:")
        a("s_cbranch_execz L_back")
    a("v_max_f32_dpp v%d, v%d, v%d row_ror:8 %s" % (vA, vA, vA, DPPF))
    rows_reduce("v_max_f32", vA, vB)
    a("v_sub_f32 v%d, v%d, v%d" % (vF, vMLi, vA))
    a("v_mul_f32 v%d, %s, v%d" % (vF, sC, vF))
    a("v_exp_f32 v%d, v%d" % (vF, vF))
    a("v_mul_f32 v%d, v%d, abs(v%d)" % (vA, vF, vMLi + 1))
    a("v_mul_f32 v%d, v%d, abs(v%d)" % (vB, vF, vMLi + 1))
    for r in range(8):
        a("v_mul_f32 v%d, v%d, v%d" % (vX + r, vF, vX + r))
    swap_add("v_add_f32", "v_permlane32_swap_b32", vA, vB, vA)
    for e in range(4):
        a("v_permlane32_swap_b32 v%d, v%d" % (vX + e, vX + 4 + e))
    a("v_mov_b32 v%d, v%d" % (vB, vA))
    for e in range(4):
        a("v_add_f32 v%d, v%d, v%d" % (vX + e, vX + e, vX + 4 + e))
    swap_add("v_add_f32", "v_permlane16_swap_b32", vA, vB, vA)
    for e in range(2):
        a("v_permlane16_swap_b32 v%d, v%d" % (vX + e, vX + 2 + e))
    for e in range(2):
        a("v_add_f32 v%d, v%d, v%d" % (vX + e, vX + e, vX + 2 + e))
    for sh in (4, 8):
        for x in (vA, vX, vX + 1):
            a("v_add_f32_dpp v%d, v%d, v%d row_ror:%d %s" % (x, x, x, sh, DPPF))
    a("v_rcp_f32 v%d, v%d" % (vA, vA))
    a("s_mov_b32 exec_lo, 0x000f000f")
    a("s_mov_b32 exec_hi, 0x000f000f")
    a("v_mul_f32 v%d, v%d, v%d" % (vX, vX, vA))
    a("v_mul_f32 v%d, v%d, v%d" % (vX + 1, vX + 1, vA))
    a("v_cvt_pk_bf16_f32 v%d, v%d, v%d" % (vX, vX, vX + 1))
    a("global_store_dword v%d, v%d, s[14:15]" % (vOut, vX))
    a("s_cbranch_vccnz L_help")
    a("L_fin:")
    if timed:
        a("s_waitcnt vmcnt(0)")
        stamp_at(6)
        a("s_waitcnt lgkmcnt(0)")
    if stamp:
        a("s_mov_b64 exec, -1")
        a("s_getreg_b32 s54, hwreg(HW_REG_XCC_ID)")
        a("s_or_b32 s54, s54, %s" % sSlow)
        a("s_lshl_b32 %s, s2, 6" % sT1)
        a("s_add_u32 %s, %s, 0x200000" % (sT1, sT1))
        a("v_mov_b32 v%d, %s" % (vA, sT1))
        for i in range(8):
            a("v_mov_b32 v%d, s%d" % (vBuf + i, 40 + 2 * i))
        a("s_lshl_b32 %s, s2, 8" % sT1)
        a("s_add_u32 %s, %s, 0x300000" % (sT1, sT1))
        a("v_lshl_add_u32 v%d, v0, 2, %s" % (vB, sT1))
        a("global_store_dword v%d, v%d, s[18:19]" % (vB, vSt))
        a("s_mov_b64 exec, 1")
        a("global_store_dwordx4 v%d, %s, s[18:19]" % (vA, vr(vBuf, 4)))
        a("global_store_dwordx4 v%d, %s, s[18:19] offset:16" % (vA, vr(vBuf + 4, 4)))
    if diagpad:
        if diagx >= 0:
            lo, hi = diagx // 10, diagx % 10
            a("s_sub_u32 s56, s%d, s%d" % (40 + 2 * hi, 40 + 2 * lo))
            a("s_mul_i32 s56, s56, 10")
            a("s_add_u32 s56, s56, %d" % (diagpad * 100))
        else:
            a("s_mov_b32 s56, %d" % (diagpad * 100))
        if diagg:
            lo, hi = int(diagg[1]), int(diagg[2])
            a("s_mov_b64 exec, 1")
            a("v_mov_b32 v%d, 120" % vA)
            a("v_mov_b32 v%d, s%d" % (vBuf, 40 + 2 * hi))
            a("v_mov_b32 v%d, s%d" % (vBuf + 1, 40 + 2 * lo))
            if diagg[0] == "m":
                a("v_not_b32 v%d, v%d" % (vBuf + 1, vBuf + 1))
            a("global_atomic_umax v%d, v%d, s[16:17]" % (vA, vBuf))
            a("global_atomic_umax v%d, v%d, s[16:17] offset:4" % (vA, vBuf + 1))
        if padwg >= 0:
            a("s_cmp_lg_u32 s2, %d" % padwg)
            a("s_cbranch_scc1 L_end")
        a("L_pad:")
        a("s_memrealtime s[58:59]")
        a("s_waitcnt lgkmcnt(0)")
        a("s_sub_u32 s58, s58, s40")
        a("s_cmp_lt_u32 s58, s56")
        a("s_cbranch_scc1 L_pad")
        if diagg:
            a("global_load_dwordx2 %s, v%d, s[16:17] sc1" % (vr(vBuf, 2), vA))
            a("s_waitcnt vmcnt(0)")
            a("v_readfirstlane_b32 s10, v%d" % vBuf)
            a("v_readfirstlane_b32 s11, v%d" % (vBuf + 1))
            a("s_nop 3")
            if diagg[0] == "m":
                a("s_not_b32 s11, s11")
            a("s_sub_u32 s10, s10, s11")
            a("s_sub_u32 s10, s10, %d" % (diagsub * 100))
            a("s_max_i32 s10, s10, 0")
            a("s_min_u32 s10, s10, 2000")
            a("s_mul_i32 s10, s10, 10")
            a("s_add_u32 s56, s56, s10")
            a("L_pad2:")
            a("s_memrealtime s[58:59]")
            a("s_waitcnt lgkmcnt(0)")
            a("s_sub_u32 s58, s58, s40")
            a("s_cmp_lt_u32 s58, s56")
            a("s_cbranch_scc1 L_pad2")
    a("L_end:")
    a("s_endpgm")

    a("L_help:")
    a("s_cmp_lg_u32 %s, 0" % sSlow)
    a("s_cbranch_scc1 L_fin")
    a("s_mov_b64 exec, 1")
    a("v_mov_b32 v%d, 1" % vCnt)
    a("global_atomic_add v%d, v%d, s[16:17]" % (vCntA, vCnt))
    a("s_branch L_fin")

    a("L_slow:")
    pub_ml("sc1")
    pub_o(0, "sc1")
    pub_o(1, "sc1")
    a("s_mov_b64 exec, 1")
    a("v_mov_b32 v%d, 1" % vCnt)
    a("s_waitcnt vmcnt(0)")
    a("global_atomic_add v%d, v%d, s[16:17]" % (vCntA, vCnt))
    a("L_cnt:")
    a("s_sub_u32 %s, %s, 1" % (sCnt, sCnt))
    a("s_cbranch_scc1 L_end")
    a("global_load_dword v%d, v%d, s[16:17] sc1" % (vVal, vCntA))
    a("s_waitcnt vmcnt(0)")
    a("v_readfirstlane_b32 %s, v%d" % (sT0, vVal))
    a("s_nop 1")
    a("s_cmp_ge_u32 %s, %d" % (sT0, S))
    a("s_cbranch_scc0 L_cnt")
    a("s_mov_b64 exec, -1")
    a("s_branch L_poll")

    vLane, vRd, vMX, vMY, vAl, vNmc, vA, vB, vWO0, vWO1, vWL = range(3, 14)
    vM, vL = 14, 15
    vQ, vO, vT, vXY, vD, vK = 16, 20, 28, 30, 40, 56
    vRdK, vOwn, vVt, vS = 38, 39, 72, 76
    vSt, vWM = 1, vAl
    vCl0, vCl1 = vXY, vXY + 1
    sI = "s21"

    def fold(part, t, da, db):
        src, own, ror, bank = ((da + 1, da, 12, 1), (da + 3, da + 2, 12, 4),
                               (db, db + 1, 4, 2), (db + 2, db + 3, 4, 8))[part]
        a("v_add_f32_dpp v%d, v%d, v%d row_ror:%d row_mask:0xf bank_mask:0x%x"
          % (t, src, own, ror, bank))

    def fold_c(t):
        a("v_add_f32_dpp v%d, v%d, v%d row_ror:8 %s" % (t, t, t, DPPF))

    a("L_cons:")
    a("s_load_dwordx2 s[4:5], s[0:1], 0")
    a("s_load_dwordx4 s[8:11], s[0:1], 24")
    a("v_and_b32 v%d, 63, v0" % vLane)
    a("s_lshr_b32 %s, %s, 6" % (sW, sW))
    a("s_sub_u32 %s, %s, 1" % (sW, sW))
    a("s_lshl_b32 %s, %s, 4" % (sIdx, sP))
    a("s_add_u32 %s, %s, %s" % (sIdx, sIdx, sS))
    a("s_mov_b32 %s, %s" % (sC, f32(CS)))
    a("v_lshrrev_b32 v%d, 4, v%d" % (vA, vLane))
    a("v_lshlrev_b32 v%d, 6, v%d" % (vA, vA))
    a("v_and_b32 v%d, 3, v%d" % (vB, vLane))
    a("v_bfe_u32 v%d, v%d, 2, 2" % (vAl, vLane))
    a("v_lshl_add_u32 v%d, v%d, 4, v%d" % (vNmc, vB, vA))
    a("v_lshl_add_u32 v%d, v%d, 8, v%d" % (vRdK, vAl, vNmc))
    a("v_lshl_add_u32 v%d, v%d, 8, v%d" % (vA, vB, vA))
    a("v_lshl_add_u32 v%d, v%d, 4, v%d" % (vA, vAl, vA))
    a("v_lshlrev_b32 v%d, 4, v%d" % (vRd, vLane))
    a("s_lshl_b32 %s, %s, 10" % (sT0, sP))
    a("s_lshl_b32 %s, %s, 8" % (sT1, sP))
    a("v_add_u32 v%d, %s, v%d" % (vA, sT0, vA))
    a("v_add_u32 v%d, %s, v%d" % (vNmc, sT1, vNmc))
    a("v_and_b32 v%d, 0xf0, v%d" % (vB, vRd))
    a("v_add_u32 v%d, %s, v%d" % (vB, sT1, vB))
    a("s_lshl_b32 %s, %s, 11" % (sT0, sIdx))
    a("v_add_u32 v%d, %s, v%d" % (vCl0, sT0, vRd))
    a("s_lshl_b32 %s, %s, 7" % (sT0, sIdx))
    a("s_add_u32 %s, %s, %d" % (sT0, sT0, WS_ML))
    a("v_and_b32 v%d, 0x70, v%d" % (vCl1, vRd))
    a("v_add_u32 v%d, %s, v%d" % (vCl1, sT0, vCl1))
    for r in range(4):
        a("v_mov_b32 v%d, -1" % (vO + r))
    a("s_waitcnt lgkmcnt(0)")
    a("global_load_dwordx4 %s, v%d, s[4:5]" % (vr(vQ, 4), vA))
    a("global_load_dwordx4 %s, v%d, s[8:9]" % (vr(vK, 4), vNmc))
    a("global_load_dwordx4 %s, v%d, s[10:11]" % (vr(vVt, 4), vB))
    a("s_load_dword %s, s[12:13], 0" % sMask)
    a("s_cmp_lg_u32 %s, %d" % (sW, C - 1))
    a("s_cbranch_scc1 L_noclear")
    a("global_load_dwordx4 %s, v%d, s[18:19]" % (vr(vK + 4, 4), vCl0))
    a("global_load_dwordx4 %s, v%d, s[18:19] offset:1024" % (vr(vK + 8, 4), vCl0))
    a("global_load_dwordx4 %s, v%d, s[18:19]" % (vr(vK + 12, 4), vCl1))
    a("L_noclear:")
    if warm:
        a("; touch code that first runs late, one region per wave")
        a("s_mov_b64 exec, 0")
        for c in range(C - 1):
            a("s_cmp_eq_u32 %s, %d" % (sW, c))
            a("s_cbranch_scc1 L_hop%d" % c)
        a("L_back:")
        a("s_mov_b64 exec, -1")
    a("s_mul_i32 %s, %s, %d" % (sT0, sW, G * 1024))
    a("v_and_b32 v%d, 32, v%d" % (vA, vLane))
    a("v_lshlrev_b32 v%d, 2, v%d" % (vA, vA))
    a("v_xor_b32 v%d, v%d, v%d" % (vRd, vRd, vA))
    a("v_add_u32 v%d, %s, v%d" % (vRd, sT0, vRd))
    a("v_and_b32 v%d, 8, v%d" % (vA, vLane))
    a("v_lshlrev_b32 v%d, 4, v%d" % (vA, vA))
    a("v_xor_b32 v%d, v%d, v%d" % (vRdK, vRdK, vA))
    a("v_add_u32 v%d, %s, v%d" % (vRdK, sT0, vRdK))
    a("s_lshl_b32 %s, %s, 8" % (sT0, sW))
    a("s_add_u32 %s, %s, %d" % (sT0, sT0, ldsL))
    a("v_lshl_add_u32 v%d, v%d, 2, %s" % (vWL, vLane, sT0))
    a("v_and_b32 v%d, 3, v%d" % (vWM, vLane))
    a("v_lshlrev_b32 v%d, 4, v%d" % (vWM, vWM))
    a("v_add_u32 v%d, %d, v%d" % (vWM, ldsM, vWM))
    a("v_bfe_u32 v%d, v%d, 4, 1" % (vA, vLane))
    a("v_bfe_u32 v%d, v%d, 5, 1" % (vB, vLane))
    a("v_lshl_add_u32 v%d, v%d, 1, v%d" % (vA, vA, vB))
    a("v_and_b32 v%d, 15, v%d" % (vB, vLane))
    a("v_lshl_add_u32 v%d, v%d, 2, v%d" % (vA, vB, vA))
    a("s_lshl_b32 %s, %s, 11" % (sT0, sW))
    a("s_add_u32 %s, %s, %d" % (sT0, sT0, ldsO))
    a("v_lshl_add_u32 v%d, v%d, 2, %s" % (vWO0, vA, sT0))
    a("v_xor_b32 v%d, 0x80, v%d" % (vWO1, vWO0))
    a("v_and_b32 v%d, 8, v%d" % (vA, vLane))
    a("v_lshlrev_b32 v%d, 1, v%d" % (vA, vA))
    a("v_mov_b32 v%d, 0xffff" % vB)
    a("v_lshlrev_b32 v%d, v%d, v%d" % (vA, vA, vB))
    a("v_bfe_i32 v%d, v%d, 2, 1" % (vB, vLane))
    a("v_and_b32 v%d, v%d, v%d" % (vMY, vA, vB))
    a("v_xor_b32 v%d, v%d, v%d" % (vMX, vA, vMY))
    a("s_or_b32 %s, %s, %s" % (sT0, sS, sW))
    a("s_cselect_b32 %s, 0, 16" % sT0)
    a("v_cmp_gt_u32 vcc, %s, v%d" % (sT0, vLane))
    a("s_lshr_b32 %s, %s, 3" % (sT0, sP))
    a("s_lshl_b32 %s, %s, 4" % (sT0, sT0))
    a("v_cndmask_b32 v%d, 0, -1, vcc" % vOwn)
    a("s_mov_b32 %s, 0" % sI)
    a("s_barrier")
    a("s_cmp_lg_u32 %s, %d" % (sW, C - 1))
    a("s_waitcnt vmcnt(0) lgkmcnt(0)")
    a("s_cbranch_scc1 L_noreset")
    a("; reset the messages; acknowledged before barrier %d" % READY)
    a("global_store_dwordx4 v%d, %s, s[18:19]" % (vCl0, vr(vO, 4)))
    a("global_store_dwordx4 v%d, %s, s[18:19] offset:1024" % (vCl0, vr(vO, 4)))
    a("global_store_dwordx4 v%d, %s, s[18:19]" % (vCl1, vr(vO, 4)))
    a("L_noreset:")
    a("v_mfma_f32_16x16x32_bf16 %s, %s, %s, 0" % (vr(vD, 4), vr(vK, 4), vr(vQ, 4)))
    a("s_lshr_b32 %s, %s, %s" % (sMask, sMask, sT0))
    a("s_lshl_b32 %s, %s, 16" % (sMask, sMask))
    a("v_mov_b32 v%d, %s" % (vA, sMask))
    a("v_sub_f32 v%d, 1.0, v%d" % (vA, vA))
    a("v_mul_f32 v%d, %s, v%d" % (vA, f32(-1e9 * 128 ** 0.5), vA))
    for part in range(4):
        fold(part, vM, vD, vD)
    fold_c(vM)
    a("v_add_f32 v%d, v%d, v%d" % (vM, vM, vA))
    a("v_mov_b32 v%d, v%d" % (vSt, vM))
    a("s_branch L_k_in")

    NT = G // 2

    def advance(rd):
        a("v_add_u32 v%d, %d, v%d" % (rd, NS * 1024, rd))
        a("v_and_b32 v%d, %d, v%d" % (rd, RING - 1, rd))

    a("L_k:")
    l0 = a.mark()
    a("s_waitcnt vmcnt(0)")
    a("s_barrier")
    a("L_k_in:")
    for j in range(G):
        a("ds_read_b128 %s, v%d offset:%d" % (vr(vK + 4 * j, 4), vRdK, j * 1024))
    advance(vRdK)
    for j in range(G):
        a("s_waitcnt lgkmcnt(%d)" % (G - 1 - j))
        a("v_mfma_f32_16x16x32_bf16 %s, %s, %s, 0"
          % (vr(vD + 4 * j, 4), vr(vK + 4 * j, 4), vr(vQ, 4)))
    for part in range(4):
        for i in range(NT):
            fold(part, vT + i, vD + 8 * i, vD + 8 * i + 4)
    for i in range(NT):
        fold_c(vT + i)
    a("s_set_gpr_idx_on %s, gpr_idx(DST)" % sI)
    for i in range(NT):
        a("v_mov_b32 v%d, v%d" % (vS + i, vT + i))
    a("s_set_gpr_idx_off")
    a("v_max3_f32 v%d, v%d, v%d, v%d" % (vM, vM, vT, vT + NT - 1))
    a("s_add_u32 %s, %s, %d" % (sI, sI, NT))
    a("s_cmp_lt_u32 %s, 64" % sI)
    a("s_cbranch_scc1 L_k")
    a.loop_check(l0)

    def prep():
        a("s_set_gpr_idx_on %s, gpr_idx(SRC0)" % sI)
        for i in range(NT):
            a("v_mov_b32 v%d, v%d" % (vT + i, vS + i))
        a("s_set_gpr_idx_off")
        for i in range(NT):
            a("v_fma_f32 v%d, v%d, %s, v%d" % (vT + i, vT + i, sC, vNmc))
        for i in range(NT):
            a("v_exp_f32 v%d, v%d" % (vT + i, vT + i))
        a("s_add_u32 %s, %s, %d" % (sI, sI, NT))
        a("s_cmp_lt_u32 %s, 64" % sI)
        for i in range(NT):
            a("v_add_f32 v%d, v%d, v%d" % (vL, vL, vT + i))
        for i in range(NT):
            a("v_cvt_pk_bf16_f32 v%d, v%d, v%d" % (vT + i, vT + i, vT + i))
        a("ds_write_b32 v%d, v%d" % (vWL, vL))
        for i in range(NT):
            x, p = vXY + 4 * i, vT + i
            a("v_and_b32 v%d, v%d, v%d" % (x, p, vMX))
            a("v_and_b32 v%d, v%d, v%d" % (x + 3, p, vMY))
            a("v_and_b32_dpp v%d, v%d, v%d row_ror:4 %s" % (x + 1, p, vMY, DPPF))
            a("v_and_b32_dpp v%d, v%d, v%d row_ror:4 %s" % (x + 2, p, vMX, DPPF))
        a("s_waitcnt lgkmcnt(0)")

    a("v_max_f32_dpp v%d, v%d, v%d row_ror:4 %s" % (vM, vM, vM, DPPF))
    rows_reduce("v_max_f32", vM, vB)
    a("v_lshl_add_u32 v%d, %s, 2, v%d" % (vA, sW, vWM))
    a("ds_write_b32 v%d, v%d" % (vA, vM))
    a("s_mov_b32 %s, 0" % sI)
    a("s_waitcnt lgkmcnt(0)")
    a("s_barrier")
    a("ds_read_b128 %s, v%d" % (vr(vD, 4), vWM))
    a("s_waitcnt lgkmcnt(0)")
    a("v_max3_f32 v%d, v%d, v%d, v%d" % (vM, vD, vD + 1, vD + 2))
    a("v_max_f32 v%d, v%d, v%d" % (vM, vM, vD + 3))
    a("v_mul_f32 v%d, %s, v%d" % (vNmc, f32(-CS), vM))
    a("v_fma_f32 v%d, v%d, %s, v%d" % (vA, vSt, sC, vNmc))
    a("v_exp_f32 v%d, v%d" % (vA, vA))
    a("v_cmp_ne_u32 vcc, 0, v%d" % vMX)
    a("v_and_b32 v%d, v%d, v%d" % (vA, vA, vOwn))
    a("v_cvt_pk_bf16_f32 v%d, v%d, v%d" % (vB, vA, vA))
    a("v_cndmask_b32 v%d, 0, v%d, vcc" % (vL, vA))
    a("v_and_b32 v%d, v%d, v%d" % (vXY, vB, vMX))
    a("v_and_b32 v%d, v%d, v%d" % (vXY + 1, vB, vMY))
    for k in range(2):
        a("v_mfma_f32_16x16x16_bf16 %s, %s, %s, 0"
          % (vr(vO + 4 * k, 4), vr(vXY, 2), vr(vVt + 2 * k, 2)))
    prep()
    a("s_branch L_v_in")
    if warm:
        a("L_hop2:")
        a("s_branch L_back")

    a("L_v:")
    l0 = a.mark()
    prep()
    a("s_barrier")
    a("L_v_in:")
    for j in range(G):
        a("ds_read_b128 %s, v%d offset:%d" % (vr(vK + 4 * j, 4), vRd, j * 1024))
    advance(vRd)
    for j in range(G):
        a("s_waitcnt lgkmcnt(%d)" % (G - 1 - j))
        for k in range(2):
            a("v_mfma_f32_16x16x16_bf16 %s, %s, %s, %s"
              % (vr(vO + 4 * k, 4), vr(vXY + 2 * j, 2), vr(vK + 4 * j + 2 * k, 2),
                 vr(vO + 4 * k, 4)))
    a("s_cbranch_scc1 L_v")
    a.loop_check(l0)
    for r in range(8):
        a("ds_write_b32 v%d, v%d offset:%d"
          % (vWO1 if r >= 4 else vWO0, vO + r, (r % 4) * 512 + (r // 4) * 256))
    a("s_waitcnt lgkmcnt(0)")
    a("s_barrier")
    a("L_last:")
    a("s_endpgm")

    nvg = max(a.max_v(), vS + 64)
    acc = (nvg + 3) // 4 * 4
    out = HEADER
    out += "; @launch grid=(%d,1,1) block=(%d,1,1) lds=%d\n" % (NWG, 64 * (C + 1), LDS)
    out += '.amdgcn_target "amdgcn-amd-amdhsa--gfx950"\n.text\n'
    out += ".globl %s_kernel\n.p2align 8\n.type %s_kernel,@function\n" % (NAME, NAME)
    out += a.text()
    out += """.section .rodata,"a"
.p2align 6
.amdhsa_kernel %s_kernel
  .amdhsa_next_free_vgpr %d
  .amdhsa_next_free_sgpr 64
  .amdhsa_accum_offset %d
  .amdhsa_group_segment_fixed_size 0
  .amdhsa_kernarg_size 72
  .amdhsa_user_sgpr_count 2
  .amdhsa_user_sgpr_kernarg_segment_ptr 1
  .amdhsa_system_sgpr_workgroup_id_x 1
.end_amdhsa_kernel
""" % (NAME, nvg, acc)
    return out


if __name__ == "__main__":
    kw = {}
    for arg in sys.argv[2:]:
        k, v = arg.split("=")
        kw[k] = int(v) if v.lstrip("-").isdigit() else v
    open(sys.argv[1], "w").write(gen(**kw))
```

```python
import math
import struct
import sys

from asmlib import Asm

NAME = "standalone__tree_speculative_verify_tree_attention_over_candidate_token_tree__decode"
HEADER = open("cdna_kernels/%s.s.ref" % NAME).read().split("; Override launch")[0]
DPPF = "row_mask:0xf bank_mask:0xf"

ORDERS = {
    "seq": ((19, 20, 21, 22), (14, 15, 16, 17, 18), ()),
    "rowset": ((14, 15, 16, 21), (19, 20, 17, 18, 22), ((1, 12), (2, 11))),
    "2set": ((14, 15, 21, 17), (16, 19, 20, 18, 22), ((1, 12), (3, 11))),
    "2setb": ((14, 15, 21, 18), (16, 19, 20, 17, 22), ((1, 12),)),
    "2c": ((15, 16, 21, 17), (14, 19, 20, 18, 22), ((0, 12), (1, 14), (3, 11))),
    "2d": ((15, 16, 21, 18), (14, 19, 20, 17, 22), ((0, 12), (1, 14))),
    "2e": ((15, 16, 21, 19), (14, 20, 17, 18, 22), ((0, 12), (1, 11))),
    "4c": ((16, 21, 17, 18), (14, 15, 19, 20, 22), ((0, 12), (2, 14))),
    "4d": ((16, 21, 19, 20), (14, 15, 17, 18, 22), ((0, 11),)),
    "4e": ((16, 21, 18, 19), (14, 15, 20, 17, 22), ((0, 12),)),
    "h18": ((14, 15, 16, 18), (21, 19, 20, 22, 17), ((1, 12), (2, 13))),
    "4set": ((14, 21, 17, 18), (15, 16, 19, 20, 22), ((2, 12),)),
}


def f32(x):
    return "0x%08x" % struct.unpack("<I", struct.pack("<f", x))[0]


def vr(a, n):
    return "v[%d:%d]" % (a, a + n - 1)


def gen(D=27, D0=22, fb=8, bias=2, order="h18", pre=1, stamp=0, diagpad=0, diagx=-1,
        force=0, NS=16, warm=1, padwg=-1, diagg=None, diagsub=0, gm=(26, 14, 7), gg=2, tlb=0):
    N, C, S = 16, 4, 16
    G = NS // C
    NWG = 16 * S
    T = 32
    RING = 65536
    assert RING // 1024 - 2 * NS > D - 1 and N + 2 <= D <= 2 * N
    CS = 128 ** -0.5 * math.log2(math.e)
    timed = stamp or diagpad
    if isinstance(gm, str):
        gm = tuple(int(x) for x in gm.split("."))
    sbits, tbits, xs = ORDERS[order]
    a = Asm()

    ldsO = RING
    ldsL = ldsO + C * 2048
    ldsM = ldsL + C * 256
    LDS = ldsM + 64
    WS_ML = 0x100000
    DBG_PROG = 128
    READY = 2

    sW, sP, sS, sK, sCnt, sC, sT0, sT1, sIdx, sMask = (
        "s3", "s6", "s7", "s20", "s22", "s23", "s32", "s33", "s34", "s35")
    sBase, sTile, sTK, sTV = "s36", "s37", "s38", "s39"
    sProg, sKd, sRnd, sSlow = "s4", "s5", "s8", "s9"

    def stamp_at(i):
        if timed:
            a("s_memrealtime s[%d:%d]" % (40 + 2 * i, 41 + 2 * i))

    def swap_add(op, swap, x, y, dst):
        a("%s v%d, v%d" % (swap, x, y))
        a("%s v%d, v%d, v%d" % (op, dst, x, y))

    def rows_reduce(op, x, tmp):
        for swap in ("v_permlane16_swap_b32", "v_permlane32_swap_b32"):
            a("v_mov_b32 v%d, v%d" % (tmp, x))
            swap_add(op, swap, x, tmp, x)

    def scatter(dst, src, bits, first):
        i = 0
        while i < len(bits):
            n = 1
            while (i + n < len(bits) and bits[i + n][0] == bits[i][0] + n
                   and bits[i + n][1] == bits[i][1] + n):
                n += 1
            a("s_bfe_u32 %s, %s, 0x%x" % (sT0, src, n << 16 | bits[i][0]))
            a("s_lshl_b32 %s, %s, %d" % (sT0, sT0, bits[i][1]))
            a("s_xor_b32 %s, %s, %s" % (dst, first, sT0))
            first = dst
            i += n

    a("%s_kernel:" % NAME)
    a("s_load_dwordx2 s[24:25], s[0:1], 8")
    a("s_load_dwordx2 s[28:29], s[0:1], 16")
    a("s_load_dwordx8 s[12:19], s[0:1], 40")
    stamp_at(0)
    a("v_readfirstlane_b32 %s, v0" % sW)
    a("s_cmp_ge_u32 s2, %d" % NWG)
    a("s_cbranch_scc1 L_end")
    a("s_and_b32 %s, s2, 15" % sP)
    a("s_lshr_b32 %s, s2, 4" % sS)
    a("s_cmp_eq_u32 %s, 0" % sW)
    a("s_cbranch_scc1 L_loader")
    if pre:
        a("; the first workgroups pull the code into L2")
        a("s_sub_u32 %s, %s, 64" % (sT0, sW))
        a("s_or_b32 %s, %s, %s" % (sT0, sT0, sS))
        a("s_cbranch_scc1 L_cons")
        a("s_getpc_b64 s[36:37]")
        a("L_pc:")
        a("v_lshlrev_b32 v1, 7, v0")
        a("v_and_b32 v1, 0x1fff, v1")
        a("v_min_u32 v1, L_last-L_pc, v1")
        a("global_load_dword v2, v1, s[36:37]")
    a("s_branch L_cons")

    vOff, vA, vB = [1, 2], 3, 4
    vCntA, vCnt, vMLrd, vOrd0, vOrd1, vPubO, vPubML, vInO, vInML, vOut, vF = range(5, 16)
    vML, vMLi, vX, vAcc, vBuf = 16, 18, 20, 28, 36
    vOob, vSlot, vPeerA, vVal, vPeer, vDum = 68, 69, 70, 71, 72, 74
    vMrd, vSt, vTk, vTkA, vTwo = 75, 76, 77, 78, 79
    sRep = "s10"
    a("L_loader:")
    a("s_setprio 3")
    a("s_lshl_b32 %s, %s, 23" % (sBase, sP))
    scatter(sBase, sS, list(enumerate(sbits)) + [x for x in xs if x[1] >= 12], sBase)
    a("s_mov_b32 %s, 1" % sTile)
    a("s_xor_b32 %s, %s, %d" % (sTV, sBase, 1 << tbits[0]))
    a("s_mov_b32 %s, %s" % (sTK, sBase))
    a("s_mov_b32 %s, %s" % (sK, sBase))
    a("s_mov_b32 s26, 0x8000000")
    a("s_mov_b32 s27, 0x00020000")
    a("s_mov_b32 m0, 0")
    a("v_lshlrev_b32 v%d, 4, v0" % vA)
    a("v_and_b32 v%d, 32, v0" % vB)
    a("v_lshlrev_b32 v%d, 2, v%d" % (vB, vB))
    a("v_xor_b32 v%d, v%d, v%d" % (vOff[0], vA, vB))
    x11 = [b for b, ab in xs if ab == 11]
    if x11:
        a("s_bfe_u32 %s, %s, 0x%x" % (sT0, sS, 1 << 16 | x11[0]))
        a("s_lshl_b32 %s, %s, 11" % (sT0, sT0))
        a("v_add_u32 v%d, %s, v%d" % (vOff[0], sT0, vOff[0]))
        a("v_xor_b32 v%d, 0x800, v%d" % (vOff[1], vOff[0]))
    else:
        vOff = [vOff[0], vOff[0]]
    per = 2 if x11 else 4

    def load(i, burst=False):
        j = i % N
        a("buffer_load_dwordx4 v%d, s[24:27], %s offen offset:%d nt lds"
          % (vOff[(j % 4) // 2], sK, (j % per) * 1024))
        if i % per == per - 1:
            a("s_add_u32 m0, m0, %d" % (per * 1024))
            if (i + 1) % (2 * N) == 0:
                a("s_and_b32 m0, m0, %d" % (RING - 1))
            if i % 4 != 3 and burst:
                a("s_nop 0")
        if j == 4 and i >= N:
            a("s_add_u32 %s, %s, 1" % (sTile, sTile))
            scatter(sTV, sTile, list(enumerate(tbits)), sBase)
        if i % 4 == 3:
            if j + 1 < N:
                a("s_xor_b32 %s, %s, %d" % (sK, sTK, ((j + 1) // 4) * 4096))
            else:
                a("s_mov_b32 %s, %s" % (sTK, sTV))
                if (i // N) % 2 == 1:
                    a("s_cmp_eq_u32 %s, %d" % (sTile, T))
                    a("s_cselect_b64 s[24:25], s[28:29], s[24:25]")
                a("s_mov_b32 %s, %s" % (sK, sTV))

    def dummy():
        a("buffer_load_dword v%d, v%d, s[24:27], 0 offen" % (vDum, vOob))

    a("s_waitcnt lgkmcnt(0)")
    stamp_at(1)
    for i in range(D0):
        load(i, True)
    a("v_and_b32 v%d, 31, v0" % vPeerA)
    a("v_lshlrev_b32 v%d, 2, v%d" % (vPeerA, vPeerA))
    a("global_load_dword v%d, v%d, s[16:17] offset:%d" % (vDum, vPeerA, DBG_PROG))
    a("s_getreg_b32 %s, hwreg(HW_REG_XCC_ID, 0, 4)" % sT0)
    a("s_and_b32 %s, %s, 1" % (sRnd, sT0))
    a("s_mul_i32 %s, %s, %d" % (sRnd, sRnd, 2 * bias))
    a("s_add_u32 %s, %s, %d" % (sRnd, sRnd, 32 // fb - bias))
    a("s_lshl_b32 %s, %s, 3" % (sT0, sT0))
    a("s_and_b32 %s, s2, 7" % sProg)
    a("s_or_b32 %s, %s, %s" % (sProg, sProg, sT0))
    a("s_mov_b32 %s, %d" % (sKd, fb // 2))
    a("s_lshr_b32 %s, s2, 3" % sT0)
    a("s_lshl_b32 %s, %s, 2" % (sT0, sT0))
    a("v_mov_b32 v%d, %s" % (vSlot, sT0))
    a("v_mov_b32 v%d, 0x7f000000" % vOob)
    if gm:
        a("s_cmp_lt_u32 s2, 8")
        a("s_cselect_b32 %s, 0x%x, 0" % (sRep, sum(1 << c for c in gm)))
        a("s_add_u32 %s, %s, %d" % (sRnd, sRnd, 7 * gg // 2))
        a("v_mov_b32 v%d, 7" % vTk)
        a("v_mov_b32 v%d, 64" % vTkA)
        a("v_mov_b32 v%d, 2" % vTwo)
    a("v_lshlrev_b32 v%d, 31, v0" % vPeer)
    a("v_or_b32 v%d, 0x7ff, v%d" % (vPeer, vPeer))
    a("v_mov_b32 v%d, v%d" % (vPeer + 1, vPeer))
    a("s_lshl_b32 %s, %s, 4" % (sIdx, sP))
    a("s_add_u32 %s, %s, %s" % (sIdx, sIdx, sS))
    a("s_mov_b32 %s, %s" % (sC, f32(CS)))
    a("s_lshl_b32 %s, %s, 2" % (sT0, sP))
    a("v_mov_b32 v%d, %s" % (vCntA, sT0))
    a("v_lshrrev_b32 v%d, 4, v0" % vA)
    a("v_and_b32 v%d, 15, v0" % vB)
    a("v_lshlrev_b32 v%d, 6, v%d" % (vMLrd, vB))
    a("v_lshl_add_u32 v%d, v%d, 2, v%d" % (vMLrd, vA, vMLrd))
    a("v_add_u32 v%d, %d, v%d" % (vMLrd, ldsL, vMLrd))
    a("v_lshlrev_b32 v%d, 4, v%d" % (vMrd, vA))
    a("v_add_u32 v%d, %d, v%d" % (vMrd, ldsM, vMrd))
    a("v_and_b32 v%d, 1, v0" % vOrd0)
    a("v_mul_u32_u24 v%d, 24, v%d" % (vOrd0, vOrd0))
    a("v_bfe_u32 v%d, v0, 1, 3" % vOrd1)
    a("v_add_u32 v%d, v%d, v%d" % (vOrd0, vOrd0, vOrd1))
    a("v_lshl_add_u32 v%d, v%d, 5, v%d" % (vOrd0, vA, vOrd0))
    a("v_lshlrev_b32 v%d, 4, v%d" % (vOrd0, vOrd0))
    a("v_add_u32 v%d, %d, v%d" % (vOrd0, ldsO, vOrd0))
    a("v_xor_b32 v%d, 0x80, v%d" % (vOrd1, vOrd0))
    a("s_lshl_b32 %s, %s, 11" % (sT0, sIdx))
    a("v_lshl_add_u32 v%d, v%d, 5, v%d" % (vPubO, vA, vB))
    a("v_lshl_add_u32 v%d, v%d, 4, %s" % (vPubO, vPubO, sT0))
    a("s_lshl_b32 %s, %s, 7" % (sT0, sIdx))
    a("s_add_u32 %s, %s, %d" % (sT0, sT0, WS_ML))
    a("v_lshl_add_u32 v%d, v%d, 3, %s" % (vPubML, vA, sT0))
    a("v_lshrrev_b32 v%d, 2, v0" % vA)
    a("v_and_b32 v%d, 3, v0" % vB)
    a("s_lshl_b32 %s, %s, 8" % (sT0, sP))
    a("s_add_u32 %s, %s, %s" % (sT0, sT0, sS))
    a("s_lshl_b32 %s, %s, 7" % (sT0, sT0))
    a("v_lshl_add_u32 v%d, v%d, 7, v%d" % (vInO, vA, vB))
    a("v_lshl_add_u32 v%d, v%d, 4, %s" % (vInO, vInO, sT0))
    a("s_lshl_b32 %s, %s, 11" % (sT0, sP))
    a("s_lshr_b32 %s, %s, 2" % (sT1, sS))
    a("s_lshl_b32 %s, %s, 3" % (sT1, sT1))
    a("s_add_u32 %s, %s, %s" % (sT0, sT0, sT1))
    a("s_add_u32 %s, %s, %d" % (sT0, sT0, WS_ML))
    a("v_lshl_add_u32 v%d, v%d, 7, %s" % (vInML, vA, sT0))
    a("v_lshrrev_b32 v%d, 5, v0" % vA)
    a("v_lshl_add_u32 v%d, v%d, 2, v%d" % (vA, vA, vB))
    a("v_bfe_u32 v%d, v0, 4, 1" % vB)
    a("v_lshl_add_u32 v%d, v%d, 1, v%d" % (vA, vA, vB))
    a("s_lshl_b32 %s, %s, 6" % (sT0, sIdx))
    a("v_lshl_add_u32 v%d, v%d, 2, %s" % (vOut, vA, sT0))
    a("s_mov_b32 %s, %d" % (sCnt, T - 1))
    if timed:
        a("s_waitcnt vmcnt(%d)" % D0)
        stamp_at(2)
    for i in range(D0, D):
        a("s_waitcnt vmcnt(%d)" % i)
        load(i)
        if i + 1 < D:
            dummy()

    order_k = {4: (0, 2, 1, 3), 8: (0, 4, 2, 6, 1, 5, 3, 7)}[fb]
    nlab = [0]

    def step(i):
        pos, half = (i - D) % N, ((i - D) // N) % 2
        a("s_waitcnt vmcnt(%d)" % (D - 1))
        load(i)
        if pos % NS == NS - 1:
            a("s_barrier")
        if pos == N - 1:
            a("s_add_u32 %s, %s, 0x10000" % (sProg, sProg))
            if gm:
                a("s_mov_b64 exec, 1")
                a("v_lshl_or_b32 v%d, v%d, 8, %s" % (vVal, vTk, sProg))
            else:
                a("v_mov_b32 v%d, %s" % (vVal, sProg))
            a("global_store_dword v%d, v%d, s[16:17] offset:%d" % (vSlot, vVal, DBG_PROG))
            if gm and half == 0:
                a("s_bitcmp1_b32 %s, %s" % (sRep, sCnt))
                a("s_cbranch_scc0 L_norank")
                a("global_atomic_add v%d, v%d, v%d, s[16:17] sc0" % (vTk, vTkA, vTwo))
                a("v_add_u32 v%d, 4, v%d" % (vTkA, vTkA))
                a("L_norank:")
            if gm:
                a("s_mov_b64 exec, -1")
            a("global_load_dword v%d, v%d, s[16:17] offset:%d nt"
              % (vPeer + half, vPeerA, DBG_PROG))
        if pos == D - N - 2:
            a("s_sub_u32 %s, %s, 0x10000" % (sT0, sProg))
            a("v_cmp_le_i32 vcc, %s, v%d" % (sT0, vPeer + half))
            if gm:
                a("v_readfirstlane_b32 %s, v%d" % (sT1, vPeer + half))
            a("s_nop 1")
            a("s_bcnt0_i32_b64 %s, vcc" % sKd)
            a("s_add_u32 %s, %s, %s" % (sKd, sKd, sRnd))
            if gm:
                a("s_bfe_u32 %s, %s, 0x40008" % (sT1, sT1))
                if gg != 2:
                    a("s_mul_i32 %s, %s, %d" % (sT1, sT1, gg))
                    a("s_lshr_b32 %s, %s, 1" % (sT1, sT1))
                a("s_sub_i32 %s, %s, %s" % (sKd, sKd, sT1))
                a("s_max_i32 %s, %s, 0" % (sKd, sKd))
            a("s_lshr_b32 %s, %s, %d" % (sKd, sKd, {4: 4, 8: 3}[fb]))
        gap = N // fb
        if pos % gap == 0:
            nlab[0] += 1
            a("s_cmp_gt_u32 %s, %d" % (sKd, order_k[pos // gap]))
            a("s_cbranch_scc0 L_nd%d" % nlab[0])
            dummy()
            a("L_nd%d:" % nlab[0])

    a("L_load:")
    for i in range(D, D + 2 * N):
        step(i)
        if stamp and i == D + 2:
            a("s_memrealtime s[60:61]")
        if stamp and i == D + 8:
            a("s_waitcnt lgkmcnt(0)")
            a("s_mov_b32 s62, m0")
            a("s_mov_b32 m0, %s" % sCnt)
            a("s_nop 0")
            a("v_writelane_b32 v%d, s60, m0" % vSt)
            a("s_mov_b32 m0, s62")
    a("s_sub_u32 %s, %s, 1" % (sCnt, sCnt))
    a("s_cmp_lg_u32 %s, 0" % sCnt)
    a("s_cbranch_scc1 L_load")
    for i in range(D + 2 * N * (T - 1), 2 * N * T):
        step(i)
    a("ds_read_b128 %s, v%d" % (vr(vX, 4), vMrd))
    left = 2 * N * T // NS - (2 * N * T - D) // NS
    for h in range(left - 1, 0, -1):
        a("s_waitcnt vmcnt(%d)" % (h * NS))
        a("s_barrier")
    a("s_and_b32 %s, %s, 0xff" % (sT0, sProg))
    a("v_xor_b32 v%d, %s, v%d" % (vA, sT0, vPeer))
    a("v_and_b32 v%d, 0xff, v%d" % (vB, vA))
    a("v_cmp_eq_u32 vcc, 0, v%d" % vB)
    a("s_lshr_b32 %s, %s, 3" % (sT0, sP))
    a("s_lshl_b32 %s, 0x55555555, %s" % (sT0, sT0))
    a("s_and_b32 %s, %s, vcc_lo" % (sT1, sT0))
    a("v_cmp_le_i32 vcc, 0x%x, v%d" % (READY << 16, vA))
    a("s_mov_b32 %s, 0x200000" % sCnt)
    a("s_nop 0")
    a("s_and_b32 %s, %s, vcc_lo" % (sT1, sT1))
    if force:
        a("s_and_b32 s11, s2, %d" % force)
        a("s_cselect_b32 %s, 0, %s" % (sT1, sT1))
    a("s_cmp_eq_u32 %s, %s" % (sT0, sT1))
    a("s_cselect_b32 %s, 0, 0x80000000" % sSlow)
    a("s_waitcnt lgkmcnt(0)")
    a("v_max3_f32 v%d, v%d, v%d, v%d" % (vML, vX, vX + 1, vX + 2))
    a("v_max_f32 v%d, v%d, v%d" % (vML, vML, vX + 3))
    a("v_min_u32 v%d, -2, v%d" % (vML, vML))
    a("s_waitcnt vmcnt(0)")
    a("s_barrier")
    stamp_at(3)

    a("ds_read2_b32 %s, v%d offset0:0 offset1:4" % (vr(vX, 2), vMLrd))
    a("s_waitcnt lgkmcnt(0)")
    a("v_add_f32 v%d, v%d, v%d" % (vML + 1, vX, vX + 1))
    if warm:
        a("L_hop0:")
        a("s_cbranch_execz L_back")
    for sh in (8, 4, 2, 1):
        a("v_add_f32_dpp v%d, v%d, v%d row_ror:%d %s" % (vML + 1, vML + 1, vML + 1, sh, DPPF))
    a("v_or_b32 v%d, %s, v%d" % (vML + 1, sSlow, vML + 1))
    a("v_min_u32 v%d, -2, v%d" % (vML + 1, vML + 1))

    def pub_ml(flags):
        a("s_mov_b32 exec_lo, 0x00010001")
        a("s_mov_b32 exec_hi, 0x00010001")
        a("global_store_dwordx2 v%d, %s, s[18:19] %s" % (vPubML, vr(vML, 2), flags))
        a("s_mov_b64 exec, -1")

    def pub_o(k, flags):
        a("global_store_dwordx4 v%d, %s, s[18:19] offset:%d %s"
          % (vPubO, vr(vAcc + 4 * k, 4), 256 * k, flags))

    pub_ml("")
    a("s_cmp_lg_u32 %s, 0" % sSlow)
    a("s_barrier")
    for k in range(2):
        for c in range(C):
            a("ds_read_b128 %s, v%d offset:%d"
              % (vr(vBuf + 16 * k + 4 * c, 4), vOrd1 if k else vOrd0, c * 2048))
    for k in range(2):
        for c in range(1, C):
            a("s_waitcnt lgkmcnt(%d)" % (7 - 4 * k - c))
            for r in (0, 2):
                prev = vBuf + 16 * k + r if c == 1 else vAcc + 4 * k + r
                a("v_pk_add_f32 %s, %s, %s"
                  % (vr(vAcc + 4 * k + r, 2), vr(prev, 2), vr(vBuf + 16 * k + 4 * c + r, 2)))
        for r in range(4):
            a("v_min_u32 v%d, -2, v%d" % (vAcc + 4 * k + r, vAcc + 4 * k + r))
        pub_o(k, "")
    stamp_at(4)
    a("s_cbranch_scc1 L_slow")
    a("L_poll:")
    a("global_load_dwordx2 %s, v%d, s[18:19] sc1" % (vr(vMLi, 2), vInML))
    a("global_load_dwordx4 %s, v%d, s[18:19] sc1" % (vr(vX, 4), vInO))
    a("global_load_dwordx4 %s, v%d, s[18:19] offset:64 sc1" % (vr(vX + 4, 4), vInO))
    a("s_sub_u32 %s, %s, 1" % (sCnt, sCnt))
    a("s_cbranch_scc1 L_end")
    a("s_waitcnt vmcnt(1)")
    a("v_max3_u32 v%d, v%d, v%d, v%d" % (vA, vMLi, vMLi + 1, vX))
    a("v_max3_u32 v%d, v%d, v%d, v%d" % (vB, vX + 1, vX + 2, vX + 3))
    a("s_waitcnt vmcnt(0)")
    a("v_max3_u32 v%d, v%d, v%d, v%d" % (vA, vA, vX + 4, vX + 5))
    a("v_max3_u32 v%d, v%d, v%d, v%d" % (vB, vB, vX + 6, vX + 7))
    a("v_max_u32 v%d, v%d, v%d" % (vA, vA, vB))
    a("v_cmp_eq_u32 vcc, -1, v%d" % vA)
    a("s_nop 1")
    a("s_and_b64 exec, exec, vcc")
    a("s_cbranch_scc1 L_poll")
    a("s_mov_b64 exec, -1")
    stamp_at(5)
    a("v_max_f32_dpp v%d, v%d, v%d row_ror:4 %s" % (vA, vMLi, vMLi, DPPF))
    a("v_cmp_gt_i32 vcc, 0, v%d" % (vMLi + 1))
    if warm:
        a("L_hop1:")
        a("s_cbranch_execz L_back")
    a("v_max_f32_dpp v%d, v%d, v%d row_ror:8 %s" % (vA, vA, vA, DPPF))
    rows_reduce("v_max_f32", vA, vB)
    a("v_sub_f32 v%d, v%d, v%d" % (vF, vMLi, vA))
    a("v_mul_f32 v%d, %s, v%d" % (vF, sC, vF))
    a("v_exp_f32 v%d, v%d" % (vF, vF))
    a("v_mul_f32 v%d, v%d, abs(v%d)" % (vA, vF, vMLi + 1))
    a("v_mul_f32 v%d, v%d, abs(v%d)" % (vB, vF, vMLi + 1))
    for r in range(8):
        a("v_mul_f32 v%d, v%d, v%d" % (vX + r, vF, vX + r))
    swap_add("v_add_f32", "v_permlane32_swap_b32", vA, vB, vA)
    for e in range(4):
        a("v_permlane32_swap_b32 v%d, v%d" % (vX + e, vX + 4 + e))
    a("v_mov_b32 v%d, v%d" % (vB, vA))
    for e in range(4):
        a("v_add_f32 v%d, v%d, v%d" % (vX + e, vX + e, vX + 4 + e))
    swap_add("v_add_f32", "v_permlane16_swap_b32", vA, vB, vA)
    for e in range(2):
        a("v_permlane16_swap_b32 v%d, v%d" % (vX + e, vX + 2 + e))
    for e in range(2):
        a("v_add_f32 v%d, v%d, v%d" % (vX + e, vX + e, vX + 2 + e))
    for sh in (4, 8):
        for x in (vA, vX, vX + 1):
            a("v_add_f32_dpp v%d, v%d, v%d row_ror:%d %s" % (x, x, x, sh, DPPF))
    a("v_rcp_f32 v%d, v%d" % (vA, vA))
    a("s_mov_b32 exec_lo, 0x000f000f")
    a("s_mov_b32 exec_hi, 0x000f000f")
    a("v_mul_f32 v%d, v%d, v%d" % (vX, vX, vA))
    a("v_mul_f32 v%d, v%d, v%d" % (vX + 1, vX + 1, vA))
    a("v_cvt_pk_bf16_f32 v%d, v%d, v%d" % (vX, vX, vX + 1))
    a("global_store_dword v%d, v%d, s[14:15]" % (vOut, vX))
    a("s_cbranch_vccnz L_help")
    a("L_fin:")
    if timed:
        a("s_waitcnt vmcnt(0)")
        stamp_at(6)
        a("s_waitcnt lgkmcnt(0)")
    if stamp:
        a("s_mov_b64 exec, -1")
        a("s_getreg_b32 s54, hwreg(HW_REG_XCC_ID)")
        a("s_or_b32 s54, s54, %s" % sSlow)
        a("s_lshl_b32 %s, s2, 6" % sT1)
        a("s_add_u32 %s, %s, 0x200000" % (sT1, sT1))
        a("v_mov_b32 v%d, %s" % (vA, sT1))
        for i in range(8):
            a("v_mov_b32 v%d, s%d" % (vBuf + i, 40 + 2 * i))
        a("s_lshl_b32 %s, s2, 8" % sT1)
        a("s_add_u32 %s, %s, 0x300000" % (sT1, sT1))
        a("v_lshl_add_u32 v%d, v0, 2, %s" % (vB, sT1))
        a("global_store_dword v%d, v%d, s[18:19]" % (vB, vSt))
        a("s_mov_b64 exec, 1")
        a("global_store_dwordx4 v%d, %s, s[18:19]" % (vA, vr(vBuf, 4)))
        a("global_store_dwordx4 v%d, %s, s[18:19] offset:16" % (vA, vr(vBuf + 4, 4)))
    if diagpad:
        if diagx >= 0:
            lo, hi = diagx // 10, diagx % 10
            a("s_sub_u32 s56, s%d, s%d" % (40 + 2 * hi, 40 + 2 * lo))
            a("s_mul_i32 s56, s56, 10")
            a("s_add_u32 s56, s56, %d" % (diagpad * 100))
        else:
            a("s_mov_b32 s56, %d" % (diagpad * 100))
        if diagg:
            lo, hi = int(diagg[1]), int(diagg[2])
            a("s_mov_b64 exec, 1")
            a("v_mov_b32 v%d, 120" % vA)
            a("v_mov_b32 v%d, s%d" % (vBuf, 40 + 2 * hi))
            a("v_mov_b32 v%d, s%d" % (vBuf + 1, 40 + 2 * lo))
            if diagg[0] == "m":
                a("v_not_b32 v%d, v%d" % (vBuf + 1, vBuf + 1))
            a("global_atomic_umax v%d, v%d, s[16:17]" % (vA, vBuf))
            a("global_atomic_umax v%d, v%d, s[16:17] offset:4" % (vA, vBuf + 1))
        if padwg >= 0:
            a("s_cmp_lg_u32 s2, %d" % padwg)
            a("s_cbranch_scc1 L_end")
        a("L_pad:")
        a("s_memrealtime s[58:59]")
        a("s_waitcnt lgkmcnt(0)")
        a("s_sub_u32 s58, s58, s40")
        a("s_cmp_lt_u32 s58, s56")
        a("s_cbranch_scc1 L_pad")
        if diagg:
            a("global_load_dwordx2 %s, v%d, s[16:17] sc1" % (vr(vBuf, 2), vA))
            a("s_waitcnt vmcnt(0)")
            a("v_readfirstlane_b32 s10, v%d" % vBuf)
            a("v_readfirstlane_b32 s11, v%d" % (vBuf + 1))
            a("s_nop 3")
            if diagg[0] == "m":
                a("s_not_b32 s11, s11")
            a("s_sub_u32 s10, s10, s11")
            a("s_sub_u32 s10, s10, %d" % (diagsub * 100))
            a("s_max_i32 s10, s10, 0")
            a("s_min_u32 s10, s10, 2000")
            a("s_mul_i32 s10, s10, 10")
            a("s_add_u32 s56, s56, s10")
            a("L_pad2:")
            a("s_memrealtime s[58:59]")
            a("s_waitcnt lgkmcnt(0)")
            a("s_sub_u32 s58, s58, s40")
            a("s_cmp_lt_u32 s58, s56")
            a("s_cbranch_scc1 L_pad2")
    a("L_end:")
    a("s_endpgm")

    a("L_help:")
    a("s_cmp_lg_u32 %s, 0" % sSlow)
    a("s_cbranch_scc1 L_fin")
    a("s_mov_b64 exec, 1")
    a("v_mov_b32 v%d, 1" % vCnt)
    a("global_atomic_add v%d, v%d, s[16:17]" % (vCntA, vCnt))
    a("s_branch L_fin")

    a("L_slow:")
    pub_ml("sc1")
    pub_o(0, "sc1")
    pub_o(1, "sc1")
    a("s_mov_b64 exec, 1")
    a("v_mov_b32 v%d, 1" % vCnt)
    a("s_waitcnt vmcnt(0)")
    a("global_atomic_add v%d, v%d, s[16:17]" % (vCntA, vCnt))
    a("L_cnt:")
    a("s_sub_u32 %s, %s, 1" % (sCnt, sCnt))
    a("s_cbranch_scc1 L_end")
    a("global_load_dword v%d, v%d, s[16:17] sc1" % (vVal, vCntA))
    a("s_waitcnt vmcnt(0)")
    a("v_readfirstlane_b32 %s, v%d" % (sT0, vVal))
    a("s_nop 1")
    a("s_cmp_ge_u32 %s, %d" % (sT0, S))
    a("s_cbranch_scc0 L_cnt")
    a("s_mov_b64 exec, -1")
    a("s_branch L_poll")

    vLane, vRd, vMX, vMY, vAl, vNmc, vA, vB, vWO0, vWO1, vWL = range(3, 14)
    vM, vL = 14, 15
    vQ, vO, vT, vXY, vD, vK = 16, 20, 28, 30, 40, 56
    vRdK, vOwn, vVt, vS = 38, 39, 72, 76
    vSt, vWM = 1, vAl
    vCl0, vCl1 = vXY, vXY + 1
    sI = "s21"

    def fold(part, t, da, db):
        src, own, ror, bank = ((da + 1, da, 12, 1), (da + 3, da + 2, 12, 4),
                               (db, db + 1, 4, 2), (db + 2, db + 3, 4, 8))[part]
        a("v_add_f32_dpp v%d, v%d, v%d row_ror:%d row_mask:0xf bank_mask:0x%x"
          % (t, src, own, ror, bank))

    def fold_c(t):
        a("v_add_f32_dpp v%d, v%d, v%d row_ror:8 %s" % (t, t, t, DPPF))

    a("L_cons:")
    a("s_load_dwordx2 s[4:5], s[0:1], 0")
    a("s_load_dwordx4 s[8:11], s[0:1], 24")
    a("v_and_b32 v%d, 63, v0" % vLane)
    a("s_lshr_b32 %s, %s, 6" % (sW, sW))
    a("s_sub_u32 %s, %s, 1" % (sW, sW))
    a("s_lshl_b32 %s, %s, 4" % (sIdx, sP))
    a("s_add_u32 %s, %s, %s" % (sIdx, sIdx, sS))
    a("s_mov_b32 %s, %s" % (sC, f32(CS)))
    a("v_lshrrev_b32 v%d, 4, v%d" % (vA, vLane))
    a("v_lshlrev_b32 v%d, 6, v%d" % (vA, vA))
    a("v_and_b32 v%d, 3, v%d" % (vB, vLane))
    a("v_bfe_u32 v%d, v%d, 2, 2" % (vAl, vLane))
    a("v_lshl_add_u32 v%d, v%d, 4, v%d" % (vNmc, vB, vA))
    a("v_lshl_add_u32 v%d, v%d, 8, v%d" % (vRdK, vAl, vNmc))
    a("v_lshl_add_u32 v%d, v%d, 8, v%d" % (vA, vB, vA))
    a("v_lshl_add_u32 v%d, v%d, 4, v%d" % (vA, vAl, vA))
    a("v_lshlrev_b32 v%d, 4, v%d" % (vRd, vLane))
    a("s_lshl_b32 %s, %s, 10" % (sT0, sP))
    a("s_lshl_b32 %s, %s, 8" % (sT1, sP))
    a("v_add_u32 v%d, %s, v%d" % (vA, sT0, vA))
    a("v_add_u32 v%d, %s, v%d" % (vNmc, sT1, vNmc))
    a("v_and_b32 v%d, 0xf0, v%d" % (vB, vRd))
    a("v_add_u32 v%d, %s, v%d" % (vB, sT1, vB))
    a("s_lshl_b32 %s, %s, 11" % (sT0, sIdx))
    a("v_add_u32 v%d, %s, v%d" % (vCl0, sT0, vRd))
    a("s_lshl_b32 %s, %s, 7" % (sT0, sIdx))
    a("s_add_u32 %s, %s, %d" % (sT0, sT0, WS_ML))
    a("v_and_b32 v%d, 0x70, v%d" % (vCl1, vRd))
    a("v_add_u32 v%d, %s, v%d" % (vCl1, sT0, vCl1))
    for r in range(4):
        a("v_mov_b32 v%d, -1" % (vO + r))
    a("s_waitcnt lgkmcnt(0)")
    a("global_load_dwordx4 %s, v%d, s[4:5]" % (vr(vQ, 4), vA))
    a("global_load_dwordx4 %s, v%d, s[8:9]" % (vr(vK, 4), vNmc))
    a("global_load_dwordx4 %s, v%d, s[10:11]" % (vr(vVt, 4), vB))
    a("s_load_dword %s, s[12:13], 0" % sMask)
    if tlb:
        a("; touch every 2 MiB page of this pair's K and V, and the output page")
        a("s_cmp_lg_u32 %s, 0" % sW)
        a("s_cbranch_scc1 L_notlb")
        a("s_lshl_b32 %s, %s, 23" % (sT0, sP))
        a("v_lshl_add_u32 v%d, v%d, 21, %s" % (vA, vLane, sT0))
        a("v_mov_b32 v%d, 0" % vB)
        a("s_mov_b64 exec, 15")
        a("global_load_dword v%d, v%d, s[24:25]" % (vK + 4, vA))
        a("global_load_dword v%d, v%d, s[28:29]" % (vK + 5, vA))
        if tlb > 1:
            a("global_load_dword v%d, v%d, s[14:15]" % (vK + 6, vB))
        a("s_mov_b64 exec, -1")
        a("L_notlb:")
    a("s_cmp_lg_u32 %s, %d" % (sW, C - 1))
    a("s_cbranch_scc1 L_noclear")
    a("global_load_dwordx4 %s, v%d, s[18:19]" % (vr(vK + 4, 4), vCl0))
    a("global_load_dwordx4 %s, v%d, s[18:19] offset:1024" % (vr(vK + 8, 4), vCl0))
    a("global_load_dwordx4 %s, v%d, s[18:19]" % (vr(vK + 12, 4), vCl1))
    a("L_noclear:")
    if warm:
        a("; touch code that first runs late, one region per wave")
        a("s_mov_b64 exec, 0")
        for c in range(C - 1):
            a("s_cmp_eq_u32 %s, %d" % (sW, c))
            a("s_cbranch_scc1 L_hop%d" % c)
        a("L_back:")
        a("s_mov_b64 exec, -1")
    a("s_mul_i32 %s, %s, %d" % (sT0, sW, G * 1024))
    a("v_and_b32 v%d, 32, v%d" % (vA, vLane))
    a("v_lshlrev_b32 v%d, 2, v%d" % (vA, vA))
    a("v_xor_b32 v%d, v%d, v%d" % (vRd, vRd, vA))
    a("v_add_u32 v%d, %s, v%d" % (vRd, sT0, vRd))
    a("v_and_b32 v%d, 8, v%d" % (vA, vLane))
    a("v_lshlrev_b32 v%d, 4, v%d" % (vA, vA))
    a("v_xor_b32 v%d, v%d, v%d" % (vRdK, vRdK, vA))
    a("v_add_u32 v%d, %s, v%d" % (vRdK, sT0, vRdK))
    a("s_lshl_b32 %s, %s, 8" % (sT0, sW))
    a("s_add_u32 %s, %s, %d" % (sT0, sT0, ldsL))
    a("v_lshl_add_u32 v%d, v%d, 2, %s" % (vWL, vLane, sT0))
    a("v_and_b32 v%d, 3, v%d" % (vWM, vLane))
    a("v_lshlrev_b32 v%d, 4, v%d" % (vWM, vWM))
    a("v_add_u32 v%d, %d, v%d" % (vWM, ldsM, vWM))
    a("v_bfe_u32 v%d, v%d, 4, 1" % (vA, vLane))
    a("v_bfe_u32 v%d, v%d, 5, 1" % (vB, vLane))
    a("v_lshl_add_u32 v%d, v%d, 1, v%d" % (vA, vA, vB))
    a("v_and_b32 v%d, 15, v%d" % (vB, vLane))
    a("v_lshl_add_u32 v%d, v%d, 2, v%d" % (vA, vB, vA))
    a("s_lshl_b32 %s, %s, 11" % (sT0, sW))
    a("s_add_u32 %s, %s, %d" % (sT0, sT0, ldsO))
    a("v_lshl_add_u32 v%d, v%d, 2, %s" % (vWO0, vA, sT0))
    a("v_xor_b32 v%d, 0x80, v%d" % (vWO1, vWO0))
    a("v_and_b32 v%d, 8, v%d" % (vA, vLane))
    a("v_lshlrev_b32 v%d, 1, v%d" % (vA, vA))
    a("v_mov_b32 v%d, 0xffff" % vB)
    a("v_lshlrev_b32 v%d, v%d, v%d" % (vA, vA, vB))
    a("v_bfe_i32 v%d, v%d, 2, 1" % (vB, vLane))
    a("v_and_b32 v%d, v%d, v%d" % (vMY, vA, vB))
    a("v_xor_b32 v%d, v%d, v%d" % (vMX, vA, vMY))
    a("s_or_b32 %s, %s, %s" % (sT0, sS, sW))
    a("s_cselect_b32 %s, 0, 16" % sT0)
    a("v_cmp_gt_u32 vcc, %s, v%d" % (sT0, vLane))
    a("s_lshr_b32 %s, %s, 3" % (sT0, sP))
    a("s_lshl_b32 %s, %s, 4" % (sT0, sT0))
    a("v_cndmask_b32 v%d, 0, -1, vcc" % vOwn)
    a("s_mov_b32 %s, 0" % sI)
    a("s_barrier")
    a("s_cmp_lg_u32 %s, %d" % (sW, C - 1))
    a("s_waitcnt vmcnt(0) lgkmcnt(0)")
    a("s_cbranch_scc1 L_noreset")
    a("; reset the messages; acknowledged before barrier %d" % READY)
    a("global_store_dwordx4 v%d, %s, s[18:19]" % (vCl0, vr(vO, 4)))
    a("global_store_dwordx4 v%d, %s, s[18:19] offset:1024" % (vCl0, vr(vO, 4)))
    a("global_store_dwordx4 v%d, %s, s[18:19]" % (vCl1, vr(vO, 4)))
    a("L_noreset:")
    a("v_mfma_f32_16x16x32_bf16 %s, %s, %s, 0" % (vr(vD, 4), vr(vK, 4), vr(vQ, 4)))
    a("s_lshr_b32 %s, %s, %s" % (sMask, sMask, sT0))
    a("s_lshl_b32 %s, %s, 16" % (sMask, sMask))
    a("v_mov_b32 v%d, %s" % (vA, sMask))
    a("v_sub_f32 v%d, 1.0, v%d" % (vA, vA))
    a("v_mul_f32 v%d, %s, v%d" % (vA, f32(-1e9 * 128 ** 0.5), vA))
    for part in range(4):
        fold(part, vM, vD, vD)
    fold_c(vM)
    a("v_add_f32 v%d, v%d, v%d" % (vM, vM, vA))
    a("v_mov_b32 v%d, v%d" % (vSt, vM))
    a("s_branch L_k_in")

    NT = G // 2

    def advance(rd):
        a("v_add_u32 v%d, %d, v%d" % (rd, NS * 1024, rd))
        a("v_and_b32 v%d, %d, v%d" % (rd, RING - 1, rd))

    a("L_k:")
    l0 = a.mark()
    a("s_waitcnt vmcnt(0)")
    a("s_barrier")
    a("L_k_in:")
    for j in range(G):
        a("ds_read_b128 %s, v%d offset:%d" % (vr(vK + 4 * j, 4), vRdK, j * 1024))
    advance(vRdK)
    for j in range(G):
        a("s_waitcnt lgkmcnt(%d)" % (G - 1 - j))
        a("v_mfma_f32_16x16x32_bf16 %s, %s, %s, 0"
          % (vr(vD + 4 * j, 4), vr(vK + 4 * j, 4), vr(vQ, 4)))
    for part in range(4):
        for i in range(NT):
            fold(part, vT + i, vD + 8 * i, vD + 8 * i + 4)
    for i in range(NT):
        fold_c(vT + i)
    a("s_set_gpr_idx_on %s, gpr_idx(DST)" % sI)
    for i in range(NT):
        a("v_mov_b32 v%d, v%d" % (vS + i, vT + i))
    a("s_set_gpr_idx_off")
    a("v_max3_f32 v%d, v%d, v%d, v%d" % (vM, vM, vT, vT + NT - 1))
    a("s_add_u32 %s, %s, %d" % (sI, sI, NT))
    a("s_cmp_lt_u32 %s, 64" % sI)
    a("s_cbranch_scc1 L_k")
    a.loop_check(l0)

    def prep():
        a("s_set_gpr_idx_on %s, gpr_idx(SRC0)" % sI)
        for i in range(NT):
            a("v_mov_b32 v%d, v%d" % (vT + i, vS + i))
        a("s_set_gpr_idx_off")
        for i in range(NT):
            a("v_fma_f32 v%d, v%d, %s, v%d" % (vT + i, vT + i, sC, vNmc))
        for i in range(NT):
            a("v_exp_f32 v%d, v%d" % (vT + i, vT + i))
        a("s_add_u32 %s, %s, %d" % (sI, sI, NT))
        a("s_cmp_lt_u32 %s, 64" % sI)
        for i in range(NT):
            a("v_add_f32 v%d, v%d, v%d" % (vL, vL, vT + i))
        for i in range(NT):
            a("v_cvt_pk_bf16_f32 v%d, v%d, v%d" % (vT + i, vT + i, vT + i))
        a("ds_write_b32 v%d, v%d" % (vWL, vL))
        for i in range(NT):
            x, p = vXY + 4 * i, vT + i
            a("v_and_b32 v%d, v%d, v%d" % (x, p, vMX))
            a("v_and_b32 v%d, v%d, v%d" % (x + 3, p, vMY))
            a("v_and_b32_dpp v%d, v%d, v%d row_ror:4 %s" % (x + 1, p, vMY, DPPF))
            a("v_and_b32_dpp v%d, v%d, v%d row_ror:4 %s" % (x + 2, p, vMX, DPPF))
        a("s_waitcnt lgkmcnt(0)")

    a("v_max_f32_dpp v%d, v%d, v%d row_ror:4 %s" % (vM, vM, vM, DPPF))
    rows_reduce("v_max_f32", vM, vB)
    a("v_lshl_add_u32 v%d, %s, 2, v%d" % (vA, sW, vWM))
    a("ds_write_b32 v%d, v%d" % (vA, vM))
    a("s_mov_b32 %s, 0" % sI)
    a("s_waitcnt lgkmcnt(0)")
    a("s_barrier")
    a("ds_read_b128 %s, v%d" % (vr(vD, 4), vWM))
    a("s_waitcnt lgkmcnt(0)")
    a("v_max3_f32 v%d, v%d, v%d, v%d" % (vM, vD, vD + 1, vD + 2))
    a("v_max_f32 v%d, v%d, v%d" % (vM, vM, vD + 3))
    a("v_mul_f32 v%d, %s, v%d" % (vNmc, f32(-CS), vM))
    a("v_fma_f32 v%d, v%d, %s, v%d" % (vA, vSt, sC, vNmc))
    a("v_exp_f32 v%d, v%d" % (vA, vA))
    a("v_cmp_ne_u32 vcc, 0, v%d" % vMX)
    a("v_and_b32 v%d, v%d, v%d" % (vA, vA, vOwn))
    a("v_cvt_pk_bf16_f32 v%d, v%d, v%d" % (vB, vA, vA))
    a("v_cndmask_b32 v%d, 0, v%d, vcc" % (vL, vA))
    a("v_and_b32 v%d, v%d, v%d" % (vXY, vB, vMX))
    a("v_and_b32 v%d, v%d, v%d" % (vXY + 1, vB, vMY))
    for k in range(2):
        a("v_mfma_f32_16x16x16_bf16 %s, %s, %s, 0"
          % (vr(vO + 4 * k, 4), vr(vXY, 2), vr(vVt + 2 * k, 2)))
    prep()
    a("s_branch L_v_in")
    if warm:
        a("L_hop2:")
        a("s_branch L_back")

    a("L_v:")
    l0 = a.mark()
    prep()
    a("s_barrier")
    a("L_v_in:")
    for j in range(G):
        a("ds_read_b128 %s, v%d offset:%d" % (vr(vK + 4 * j, 4), vRd, j * 1024))
    advance(vRd)
    for j in range(G):
        a("s_waitcnt lgkmcnt(%d)" % (G - 1 - j))
        for k in range(2):
            a("v_mfma_f32_16x16x16_bf16 %s, %s, %s, %s"
              % (vr(vO + 4 * k, 4), vr(vXY + 2 * j, 2), vr(vK + 4 * j + 2 * k, 2),
                 vr(vO + 4 * k, 4)))
    a("s_cbranch_scc1 L_v")
    a.loop_check(l0)
    for r in range(8):
        a("ds_write_b32 v%d, v%d offset:%d"
          % (vWO1 if r >= 4 else vWO0, vO + r, (r % 4) * 512 + (r // 4) * 256))
    a("s_waitcnt lgkmcnt(0)")
    a("s_barrier")
    a("L_last:")
    a("s_endpgm")

    nvg = max(a.max_v(), vS + 64)
    acc = (nvg + 3) // 4 * 4
    out = HEADER
    out += "; @launch grid=(%d,1,1) block=(%d,1,1) lds=%d\n" % (NWG, 64 * (C + 1), LDS)
    out += '.amdgcn_target "amdgcn-amd-amdhsa--gfx950"\n.text\n'
    out += ".globl %s_kernel\n.p2align 8\n.type %s_kernel,@function\n" % (NAME, NAME)
    out += a.text()
    out += """.section .rodata,"a"
.p2align 6
.amdhsa_kernel %s_kernel
  .amdhsa_next_free_vgpr %d
  .amdhsa_next_free_sgpr 64
  .amdhsa_accum_offset %d
  .amdhsa_group_segment_fixed_size 0
  .amdhsa_kernarg_size 72
  .amdhsa_user_sgpr_count 2
  .amdhsa_user_sgpr_kernarg_segment_ptr 1
  .amdhsa_system_sgpr_workgroup_id_x 1
.end_amdhsa_kernel
""" % (NAME, nvg, acc)
    return out


if __name__ == "__main__":
    kw = {}
    for arg in sys.argv[2:]:
        k, v = arg.split("=")
        kw[k] = int(v) if v.lstrip("-").isdigit() else v
    open(sys.argv[1], "w").write(gen(**kw))
```

```python
import math
import struct
import sys

from asmlib import Asm

NAME = "standalone__tree_speculative_verify_tree_attention_over_candidate_token_tree__decode"
HEADER = open("cdna_kernels/%s.s.ref" % NAME).read().split("; Override launch")[0]
DPPF = "row_mask:0xf bank_mask:0xf"

ORDERS = {
    "seq": ((19, 20, 21, 22), (14, 15, 16, 17, 18), ()),
    "rowset": ((14, 15, 16, 21), (19, 20, 17, 18, 22), ((1, 12), (2, 11))),
    "2set": ((14, 15, 21, 17), (16, 19, 20, 18, 22), ((1, 12), (3, 11))),
    "2setb": ((14, 15, 21, 18), (16, 19, 20, 17, 22), ((1, 12),)),
    "2c": ((15, 16, 21, 17), (14, 19, 20, 18, 22), ((0, 12), (1, 14), (3, 11))),
    "2d": ((15, 16, 21, 18), (14, 19, 20, 17, 22), ((0, 12), (1, 14))),
    "2e": ((15, 16, 21, 19), (14, 20, 17, 18, 22), ((0, 12), (1, 11))),
    "4c": ((16, 21, 17, 18), (14, 15, 19, 20, 22), ((0, 12), (2, 14))),
    "4d": ((16, 21, 19, 20), (14, 15, 17, 18, 22), ((0, 11),)),
    "4e": ((16, 21, 18, 19), (14, 15, 20, 17, 22), ((0, 12),)),
    "h18": ((14, 15, 16, 18), (21, 19, 20, 22, 17), ((1, 12), (2, 13))),
    "4set": ((14, 21, 17, 18), (15, 16, 19, 20, 22), ((2, 12),)),
}


def f32(x):
    return "0x%08x" % struct.unpack("<I", struct.pack("<f", x))[0]


def vr(a, n):
    return "v[%d:%d]" % (a, a + n - 1)


def gen(D=27, D0=20, fb=8, bias=2, order="h18", pre=1, stamp=0, diagpad=0, diagx=-1,
        force=0, NS=16, warm=1, padwg=-1, diagg=None, diagsub=0, gm=(28, 24, 20, 16, 12, 8, 4), gg=2, skip=0, ctouch=0, late=1, tpol="sc1", split=1, rounds=3, jb=(12, 13), gws=4352, rnd=0):
    N, C, S = 16, 4, 16
    G = NS // C
    NWG = 16 * S
    T = 32
    RING = 65536
    assert RING // 1024 - 2 * NS > D - 1 and N + 2 <= D <= 2 * N
    CS = 128 ** -0.5 * math.log2(math.e)
    timed = stamp or diagpad
    if isinstance(gm, str):
        gm = tuple(int(x) for x in gm.split("."))
    sbits, tbits, xs = ORDERS[order]
    assert sorted(list(jb) + list(sbits) + list(tbits)) == list(range(12, 23))
    assert all(b not in sbits for _, b in xs)
    a = Asm()

    ldsO = RING
    ldsL = ldsO + C * 2048
    ldsM = ldsL + C * 256
    LDS = ldsM + 64
    WS_ML = 0x100000
    DBG_PROG = 128
    READY = 2

    sW, sP, sS, sK, sCnt, sC, sT0, sT1, sIdx, sMask = (
        "s3", "s6", "s7", "s20", "s22", "s23", "s32", "s33", "s34", "s35")
    sBase, sTile, sTK, sTV = "s36", "s37", "s38", "s39"
    sProg, sKd, sRnd, sSlow = "s4", "s5", "s8", "s9"

    def stamp_at(i):
        if timed:
            a("s_memrealtime s[%d:%d]" % (40 + 2 * i, 41 + 2 * i))

    def swap_add(op, swap, x, y, dst):
        a("%s v%d, v%d" % (swap, x, y))
        a("%s v%d, v%d, v%d" % (op, dst, x, y))

    def rows_reduce(op, x, tmp):
        for swap in ("v_permlane16_swap_b32", "v_permlane32_swap_b32"):
            a("v_mov_b32 v%d, v%d" % (tmp, x))
            swap_add(op, swap, x, tmp, x)

    def scatter(dst, src, bits, first):
        i = 0
        while i < len(bits):
            n = 1
            while (i + n < len(bits) and bits[i + n][0] == bits[i][0] + n
                   and bits[i + n][1] == bits[i][1] + n):
                n += 1
            a("s_bfe_u32 %s, %s, 0x%x" % (sT0, src, n << 16 | bits[i][0]))
            a("s_lshl_b32 %s, %s, %d" % (sT0, sT0, bits[i][1]))
            a("s_xor_b32 %s, %s, %s" % (dst, first, sT0))
            first = dst
            i += n

    a("%s_kernel:" % NAME)
    a("s_load_dwordx2 s[24:25], s[0:1], 8")
    a("s_load_dwordx2 s[28:29], s[0:1], 16")
    a("s_load_dwordx8 s[12:19], s[0:1], 40")
    stamp_at(0)
    a("v_readfirstlane_b32 %s, v0" % sW)
    a("s_cmp_ge_u32 s2, %d" % NWG)
    a("s_cbranch_scc1 L_end")
    a("s_and_b32 %s, s2, 15" % sP)
    a("s_lshr_b32 %s, s2, 4" % sS)
    a("s_cmp_eq_u32 %s, 0" % sW)
    a("s_cbranch_scc1 L_loader")
    if pre:
        a("; the first workgroups pull the code into L2")
        a("s_sub_u32 %s, %s, 64" % (sT0, sW))
        a("s_or_b32 %s, %s, %s" % (sT0, sT0, sS))
        a("s_cbranch_scc1 L_cons")
        a("s_getpc_b64 s[36:37]")
        a("L_pc:")
        a("v_lshlrev_b32 v1, 7, v0")
        a("v_and_b32 v1, 0x1fff, v1")
        a("v_min_u32 v1, L_last-L_pc, v1")
        a("global_load_dword v2, v1, s[36:37]")
    a("s_branch L_cons")

    vOff, vA, vB = [1, 2], 3, 4
    vCntA, vCnt, vMLrd, vOrd0, vOrd1, vPubO, vPubML, vInO, vInML, vOut, vF = range(5, 16)
    vML, vMLi, vX, vAcc, vBuf = 16, 18, 20, 28, 36
    vOob, vSlot, vPeerA, vVal, vPeer, vDum = 68, 69, 70, 71, 72, 74
    vMrd, vSt, vTk, vTkA, vTwo, vIni = 75, 76, 77, 78, 79, 80
    sRep, sCk, sRank = "s10", "s11", "s21"
    WS_CK = 0x180000
    a("L_loader:")
    a("s_setprio 3")
    a("s_lshl_b32 %s, %s, 23" % (sBase, sP))
    scatter(sBase, sS, list(enumerate(sbits)) + [x for x in xs if x[1] >= 12], sBase)
    a("s_mov_b32 %s, 1" % sTile)
    a("s_xor_b32 %s, %s, %d" % (sTV, sBase, 1 << tbits[0]))
    a("s_mov_b32 %s, %s" % (sTK, sBase))
    a("s_mov_b32 %s, %s" % (sK, sBase))
    a("s_mov_b32 s26, 0x8000000")
    a("s_mov_b32 s27, 0x00020000")
    a("s_mov_b32 m0, 0")
    a("v_lshlrev_b32 v%d, 4, v0" % vA)
    a("v_and_b32 v%d, 32, v0" % vB)
    a("v_lshlrev_b32 v%d, 2, v%d" % (vB, vB))
    a("v_xor_b32 v%d, v%d, v%d" % (vOff[0], vA, vB))
    x11 = [b for b, ab in xs if ab == 11]
    if x11:
        a("s_bfe_u32 %s, %s, 0x%x" % (sT0, sS, 1 << 16 | x11[0]))
        a("s_lshl_b32 %s, %s, 11" % (sT0, sT0))
        a("v_add_u32 v%d, %s, v%d" % (vOff[0], sT0, vOff[0]))
        a("v_xor_b32 v%d, 0x800, v%d" % (vOff[1], vOff[0]))
    else:
        vOff = [vOff[0], vOff[0]]
    per = 2 if x11 else 4

    def load(i, burst=False):
        j = i % N
        a("buffer_load_dwordx4 v%d, s[24:27], %s offen offset:%d nt lds"
          % (vOff[(j % 4) // 2], sK, (j % per) * 1024))
        if i == 2 * N * T - 1:
            return
        if i % per == per - 1:
            a("s_add_u32 m0, m0, %d" % (per * 1024))
            if (i + 1) % (2 * N) == 0:
                a("s_and_b32 m0, m0, %d" % (RING - 1))
            if i % 4 != 3 and burst:
                a("s_nop 0")
        if j == 4 and i >= N:
            a("s_add_u32 %s, %s, 1" % (sTile, sTile))
            scatter(sTV, sTile, list(enumerate(tbits)), sBase)
        if i % 4 == 3:
            if j + 1 < N:
                q = (j + 1) // 4
                a("s_xor_b32 %s, %s, %d" % (sK, sTK, (q & 1) << jb[0] | (q >> 1) << jb[1]))
            else:
                a("s_mov_b32 %s, %s" % (sTK, sTV))
                if (i // N) % 2 == 1:
                    a("s_cmp_eq_u32 %s, %d" % (sTile, T))
                    a("s_cselect_b64 s[24:25], s[28:29], s[24:25]")
                a("s_mov_b32 %s, %s" % (sK, sTV))

    def dummy():
        a("buffer_load_dword v%d, v%d, s[24:27], 0 offen" % (vDum, vOob))

    a("s_waitcnt lgkmcnt(0)")
    stamp_at(1)
    for i in range(D0):
        load(i, True)
    a("v_and_b32 v%d, 31, v0" % vPeerA)
    a("v_lshlrev_b32 v%d, 2, v%d" % (vPeerA, vPeerA))
    if ctouch:
        a("v_mov_b32 v%d, 0x7f000000" % vOob)
        dummy()
    else:
        a("global_load_dword v%d, v%d, s[16:17] offset:%d" % (vDum, vPeerA, DBG_PROG))
    a("s_getreg_b32 %s, hwreg(HW_REG_XCC_ID, 0, 4)" % sT0)
    a("s_and_b32 %s, %s, 1" % (sRnd, sT0))
    a("s_mul_i32 %s, %s, %d" % (sRnd, sRnd, 2 * bias))
    a("s_add_u32 %s, %s, %d" % (sRnd, sRnd, 32 // fb - bias + rnd))
    a("s_lshl_b32 %s, %s, 3" % (sT0, sT0))
    a("s_and_b32 %s, s2, 7" % sProg)
    a("s_or_b32 %s, %s, %s" % (sProg, sProg, sT0))
    a("s_mov_b32 %s, %d" % (sKd, fb // 2))
    a("s_lshr_b32 %s, s2, 3" % sT0)
    a("s_lshl_b32 %s, %s, 2" % (sT0, sT0))
    a("v_mov_b32 v%d, %s" % (vSlot, sT0))
    a("v_mov_b32 v%d, 0x7f000000" % vOob)
    if gm:
        a("s_cmp_lt_u32 s2, 8")
        a("s_cselect_b32 %s, 0x%x, 0" % (sRep, sum(1 << c for c in gm)))
        a("s_add_u32 %s, %s, %d" % (sRnd, sRnd, 7 * gg // 2))
        a("v_mov_b32 v%d, 7" % vTk)
        a("v_mov_b32 v%d, 2" % vTwo)
        if gws:
            a("v_mul_u32_u24 v%d, %d, v0" % (vTkA, gws))
            a("v_add_u32 v%d, %d, v%d" % (vTkA, WS_CK, vTkA))
            a("v_mov_b32 v%d, 0" % vIni)
            a("s_mov_b32 %s, 0" % sCk)
            a("s_mov_b32 %s, 0x700" % sRank)
            a("s_cmp_lt_u32 s2, 8")
            a("s_cbranch_scc0 L_nosnap")
            a("s_mov_b64 exec, 0x%x" % ((2 << len(gm)) - 2))
            a("global_load_dword v%d, v%d, s[18:19] sc1" % (vIni, vTkA))
            a("s_mov_b64 exec, -1")
            a("L_nosnap:")
        else:
            a("v_mov_b32 v%d, 64" % vTkA)
    a("v_lshlrev_b32 v%d, 31, v0" % vPeer)
    a("v_or_b32 v%d, 0x7ff, v%d" % (vPeer, vPeer))
    a("v_mov_b32 v%d, v%d" % (vPeer + 1, vPeer))
    a("s_lshl_b32 %s, %s, 4" % (sIdx, sP))
    a("s_add_u32 %s, %s, %s" % (sIdx, sIdx, sS))
    a("s_mov_b32 %s, %s" % (sC, f32(CS)))
    a("s_lshl_b32 %s, %s, 2" % (sT0, sP))
    a("v_mov_b32 v%d, %s" % (vCntA, sT0))
    a("v_lshrrev_b32 v%d, 4, v0" % vA)
    a("v_and_b32 v%d, 15, v0" % vB)
    a("v_lshlrev_b32 v%d, 6, v%d" % (vMLrd, vB))
    a("v_lshl_add_u32 v%d, v%d, 2, v%d" % (vMLrd, vA, vMLrd))
    a("v_add_u32 v%d, %d, v%d" % (vMLrd, ldsL, vMLrd))
    a("v_lshlrev_b32 v%d, 4, v%d" % (vMrd, vA))
    a("v_add_u32 v%d, %d, v%d" % (vMrd, ldsM, vMrd))
    a("v_and_b32 v%d, 1, v0" % vOrd0)
    a("v_mul_u32_u24 v%d, 24, v%d" % (vOrd0, vOrd0))
    a("v_bfe_u32 v%d, v0, 1, 3" % vOrd1)
    a("v_add_u32 v%d, v%d, v%d" % (vOrd0, vOrd0, vOrd1))
    a("v_lshl_add_u32 v%d, v%d, 5, v%d" % (vOrd0, vA, vOrd0))
    a("v_lshlrev_b32 v%d, 4, v%d" % (vOrd0, vOrd0))
    a("v_add_u32 v%d, %d, v%d" % (vOrd0, ldsO, vOrd0))
    a("v_xor_b32 v%d, 0x80, v%d" % (vOrd1, vOrd0))
    a("s_lshl_b32 %s, %s, 11" % (sT0, sIdx))
    a("v_lshl_add_u32 v%d, v%d, 5, v%d" % (vPubO, vA, vB))
    a("v_lshl_add_u32 v%d, v%d, 4, %s" % (vPubO, vPubO, sT0))
    a("s_lshl_b32 %s, %s, 7" % (sT0, sIdx))
    a("s_add_u32 %s, %s, %d" % (sT0, sT0, WS_ML))
    a("v_lshl_add_u32 v%d, v%d, 3, %s" % (vPubML, vA, sT0))
    a("v_lshrrev_b32 v%d, 2, v0" % vA)
    a("v_and_b32 v%d, 3, v0" % vB)
    a("s_lshl_b32 %s, %s, 8" % (sT0, sP))
    a("s_add_u32 %s, %s, %s" % (sT0, sT0, sS))
    a("s_lshl_b32 %s, %s, 7" % (sT0, sT0))
    a("v_lshl_add_u32 v%d, v%d, 7, v%d" % (vInO, vA, vB))
    a("v_lshl_add_u32 v%d, v%d, 4, %s" % (vInO, vInO, sT0))
    a("s_lshl_b32 %s, %s, 11" % (sT0, sP))
    a("s_lshr_b32 %s, %s, 2" % (sT1, sS))
    a("s_lshl_b32 %s, %s, 3" % (sT1, sT1))
    a("s_add_u32 %s, %s, %s" % (sT0, sT0, sT1))
    a("s_add_u32 %s, %s, %d" % (sT0, sT0, WS_ML))
    a("v_lshl_add_u32 v%d, v%d, 7, %s" % (vInML, vA, sT0))
    a("v_lshrrev_b32 v%d, 5, v0" % vA)
    a("v_lshl_add_u32 v%d, v%d, 2, v%d" % (vA, vA, vB))
    a("v_bfe_u32 v%d, v0, 4, 1" % vB)
    a("v_lshl_add_u32 v%d, v%d, 1, v%d" % (vA, vA, vB))
    a("s_lshl_b32 %s, %s, 6" % (sT0, sIdx))
    a("v_lshl_add_u32 v%d, v%d, 2, %s" % (vOut, vA, sT0))
    a("s_mov_b32 %s, %d" % (sCnt, T - 1))
    if timed:
        a("s_waitcnt vmcnt(%d)" % D0)
        stamp_at(2)
    for i in range(D0, D):
        a("s_waitcnt vmcnt(%d)" % i)
        load(i)
        if i + 1 < D:
            dummy()

    order_k = {4: (0, 2, 1, 3), 8: (0, 4, 2, 6, 1, 5, 3, 7)}[fb]
    nlab = [0]

    def step(i):
        pos, half = (i - D) % N, ((i - D) // N) % 2
        a("s_waitcnt vmcnt(%d)" % (D - 1))
        load(i)
        if pos % NS == NS - 1:
            a("s_barrier")
        if pos == N - 1:
            a("s_add_u32 %s, %s, 0x10000" % (sProg, sProg))
            if gm and gws:
                if half == 0:
                    a("v_sub_u32 v%d, v%d, v%d" % (vVal, vTk, vIni))
                    a("v_min_u32 v%d, 14, v%d" % (vVal, vVal))
                    a("v_lshlrev_b32 v%d, 8, v%d" % (vVal, vVal))
                    a("v_readlane_b32 %s, v%d, %s" % (sRank, vVal, sCk))
                    a("s_bitcmp1_b32 %s, %s" % (sRep, sCnt))
                    a("s_cbranch_scc0 L_norank")
                    a("s_add_u32 %s, %s, 1" % (sCk, sCk))
                    a("s_lshl_b64 exec, 1, %s" % sCk)
                    a("global_atomic_add v%d, v%d, v%d, s[18:19] sc0" % (vTk, vTkA, vTwo))
                    a("s_mov_b64 exec, -1")
                    a("L_norank:")
                a("s_or_b32 %s, %s, %s" % (sT0, sProg, sRank))
                a("v_mov_b32 v%d, %s" % (vVal, sT0))
            elif gm:
                a("s_mov_b64 exec, 1")
                a("v_lshl_or_b32 v%d, v%d, 8, %s" % (vVal, vTk, sProg))
            else:
                a("v_mov_b32 v%d, %s" % (vVal, sProg))
            a("global_store_dword v%d, v%d, s[16:17] offset:%d" % (vSlot, vVal, DBG_PROG))
            if gm and not gws:
                if half == 0:
                    a("s_bitcmp1_b32 %s, %s" % (sRep, sCnt))
                    a("s_cbranch_scc0 L_norank")
                    a("global_atomic_add v%d, v%d, v%d, s[16:17] sc0" % (vTk, vTkA, vTwo))
                    a("v_add_u32 v%d, 4, v%d" % (vTkA, vTkA))
                    a("L_norank:")
                a("s_mov_b64 exec, -1")
            a("global_load_dword v%d, v%d, s[16:17] offset:%d nt"
              % (vPeer + half, vPeerA, DBG_PROG))
        if pos == D - N - 2:
            a("s_sub_u32 %s, %s, 0x10000" % (sT0, sProg))
            a("v_cmp_le_i32 vcc, %s, v%d" % (sT0, vPeer + half))
            if gm:
                a("v_readfirstlane_b32 %s, v%d" % (sT1, vPeer + half))
            a("s_nop 1")
            a("s_bcnt0_i32_b64 %s, vcc" % sKd)
            a("s_add_u32 %s, %s, %s" % (sKd, sKd, sRnd))
            if gm:
                a("s_bfe_u32 %s, %s, 0x40008" % (sT1, sT1))
                if gg != 2:
                    a("s_mul_i32 %s, %s, %d" % (sT1, sT1, gg))
                    a("s_lshr_b32 %s, %s, 1" % (sT1, sT1))
                a("s_sub_i32 %s, %s, %s" % (sKd, sKd, sT1))
                a("s_max_i32 %s, %s, 0" % (sKd, sKd))
            a("s_lshr_b32 %s, %s, %d" % (sKd, sKd, {4: 4, 8: 3}[fb]))
        gap = N // fb
        if pos % gap == 0 and i < 2 * N * T - 1:
            nlab[0] += 1
            a("s_cmp_gt_u32 %s, %d" % (sKd, order_k[pos // gap]))
            a("s_cbranch_scc0 L_nd%d" % nlab[0])
            dummy()
            a("L_nd%d:" % nlab[0])

    a("L_load:")
    for i in range(D, D + 2 * N):
        step(i)
        if stamp and i == D + 2:
            a("s_memrealtime s[60:61]")
        if stamp and i == D + 8:
            a("s_waitcnt lgkmcnt(0)")
            a("s_mov_b32 s62, m0")
            a("s_mov_b32 m0, %s" % sCnt)
            a("s_nop 0")
            a("v_writelane_b32 v%d, s60, m0" % vSt)
            a("s_mov_b32 m0, s62")
    a("s_sub_u32 %s, %s, 1" % (sCnt, sCnt))
    a("s_cmp_lg_u32 %s, 0" % sCnt)
    a("s_cbranch_scc1 L_load")
    for i in range(D + 2 * N * (T - 1), 2 * N * T):
        step(i)
    ext = 2 if late else 0
    if late:
        a("; read the incoming message lines once so that L2 holds them whole")
        a("global_load_dword v%d, v%d, s[18:19] %s" % (vDum, vInML, tpol))
        a("global_load_dword v%d, v%d, s[18:19] %s" % (vVal, vInO, tpol))
    a("ds_read_b128 %s, v%d" % (vr(vX, 4), vMrd))
    left = 2 * N * T // NS - (2 * N * T - D) // NS
    for h in range(left - 1, 0, -1):
        a("s_waitcnt vmcnt(%d)" % (h * NS + ext))
        a("s_barrier")
    a("s_and_b32 %s, %s, 0xff" % (sT0, sProg))
    a("v_xor_b32 v%d, %s, v%d" % (vA, sT0, vPeer))
    a("v_and_b32 v%d, 0xff, v%d" % (vB, vA))
    a("v_cmp_eq_u32 vcc, 0, v%d" % vB)
    a("s_lshr_b32 %s, %s, 3" % (sT0, sP))
    a("s_lshl_b32 %s, 0x55555555, %s" % (sT0, sT0))
    a("s_and_b32 %s, %s, vcc_lo" % (sT1, sT0))
    a("v_cmp_le_i32 vcc, 0x%x, v%d" % (READY << 16, vA))
    a("s_mov_b32 %s, 0x200000" % sCnt)
    a("s_nop 0")
    a("s_and_b32 %s, %s, vcc_lo" % (sT1, sT1))
    if force:
        a("s_and_b32 s11, s2, %d" % force)
        a("s_cselect_b32 %s, 0, %s" % (sT1, sT1))
    a("s_cmp_eq_u32 %s, %s" % (sT0, sT1))
    a("s_cselect_b32 %s, 0, 0x80000000" % sSlow)
    a("s_waitcnt lgkmcnt(0)")
    a("v_max3_f32 v%d, v%d, v%d, v%d" % (vML, vX, vX + 1, vX + 2))
    a("v_max_f32 v%d, v%d, v%d" % (vML, vML, vX + 3))
    a("v_min_u32 v%d, -2, v%d" % (vML, vML))
    a("v_mov_b32 v%d, -1" % vMLi)
    a("v_mov_b32 v%d, -1" % (vMLi + 1))
    def pub_ml(flags):
        a("s_mov_b32 exec_lo, 0x00010001")
        a("s_mov_b32 exec_hi, 0x00010001")
        a("global_store_dwordx2 v%d, %s, s[18:19] %s" % (vPubML, vr(vML, 2), flags))
        a("s_mov_b64 exec, -1")

    def pub_o(k, flags):
        a("global_store_dwordx4 v%d, %s, s[18:19] offset:%d %s"
          % (vPubO, vr(vAcc + 4 * k, 4), 256 * k, flags))

    def get_ml():
        a("global_load_dwordx2 %s, v%d, s[18:19] sc1" % (vr(vMLi, 2), vInML))

    def get_o():
        a("global_load_dwordx4 %s, v%d, s[18:19] sc1" % (vr(vX, 4), vInO))
        a("global_load_dwordx4 %s, v%d, s[18:19] offset:64 sc1" % (vr(vX + 4, 4), vInO))

    def bound():
        a("s_sub_u32 %s, %s, 1" % (sCnt, sCnt))
        a("s_cbranch_scc1 L_end")

    a("s_waitcnt vmcnt(%d)" % (ext + (C if split else 0)))
    a("s_barrier")
    if not split:
        stamp_at(3)
    a("ds_read2_b32 %s, v%d offset0:0 offset1:4" % (vr(vX, 2), vMLrd))
    a("s_waitcnt lgkmcnt(0)")
    a("v_add_f32 v%d, v%d, v%d" % (vML + 1, vX, vX + 1))
    if warm:
        a("L_hop0:")
        a("s_cbranch_execz L_back")
    for sh in (8, 4, 2, 1):
        a("v_add_f32_dpp v%d, v%d, v%d row_ror:%d %s" % (vML + 1, vML + 1, vML + 1, sh, DPPF))
    a("v_or_b32 v%d, %s, v%d" % (vML + 1, sSlow, vML + 1))
    a("v_min_u32 v%d, -2, v%d" % (vML + 1, vML + 1))
    if split:
        a("s_waitcnt vmcnt(%d)" % ext)
        a("s_barrier")
        stamp_at(3)
    pub_ml("")
    get_ml()
    for r in range(8):
        a("v_mov_b32 v%d, -1" % (vX + r))
    if timed:
        a("s_waitcnt lgkmcnt(0)")
    a("s_cmp_lg_u32 %s, 0" % sSlow)
    a("s_barrier")
    for k in range(2):
        for c in range(C):
            a("ds_read_b128 %s, v%d offset:%d"
              % (vr(vBuf + 16 * k + 4 * c, 4), vOrd1 if k else vOrd0, c * 2048))
    for k in range(2):
        for c in range(1, C):
            a("s_waitcnt lgkmcnt(%d)" % (7 - 4 * k - c))
            for r in (0, 2):
                prev = vBuf + 16 * k + r if c == 1 else vAcc + 4 * k + r
                a("v_pk_add_f32 %s, %s, %s"
                  % (vr(vAcc + 4 * k + r, 2), vr(prev, 2), vr(vBuf + 16 * k + 4 * c + r, 2)))
        for r in range(4):
            a("v_min_u32 v%d, -2, v%d" % (vAcc + 4 * k + r, vAcc + 4 * k + r))
        pub_o(k, "")
    stamp_at(4)
    a("s_cbranch_scc1 L_slow")
    a("s_waitcnt vmcnt(2)")
    a("L_ml:")
    a("v_max_u32 v%d, v%d, v%d" % (vA, vMLi, vMLi + 1))
    a("v_cmp_eq_u32 vcc, -1, v%d" % vA)
    a("s_nop 1")
    a("s_and_b64 exec, exec, vcc")
    a("s_cbranch_scc1 L_ml_again")
    a("s_mov_b64 exec, -1")
    get_o()
    a("v_max_f32_dpp v%d, v%d, v%d row_ror:4 %s" % (vA, vMLi, vMLi, DPPF))
    a("v_cmp_gt_i32 s[10:11], 0, v%d" % (vMLi + 1))
    if warm:
        a("L_hop1:")
        a("s_cbranch_execz L_back")
    a("v_max_f32_dpp v%d, v%d, v%d row_ror:8 %s" % (vA, vA, vA, DPPF))
    rows_reduce("v_max_f32", vA, vB)
    a("v_sub_f32 v%d, v%d, v%d" % (vF, vMLi, vA))
    a("v_mul_f32 v%d, %s, v%d" % (vF, sC, vF))
    a("v_exp_f32 v%d, v%d" % (vF, vF))
    if rounds >= 3:
        get_o()
    a("v_mul_f32 v%d, v%d, abs(v%d)" % (vA, vF, vMLi + 1))
    for sh in (4, 8):
        a("v_add_f32_dpp v%d, v%d, v%d row_ror:%d %s" % (vA, vA, vA, sh, DPPF))
    rows_reduce("v_add_f32", vA, vB)
    a("v_rcp_f32 v%d, v%d" % (vA, vA))
    a("v_mul_f32 v%d, v%d, v%d" % (vF, vF, vA))
    if rounds == 1:
        a("s_branch L_o_in")
    a("L_o:")
    get_o()
    bound()
    a("L_o_in:")
    a("s_waitcnt vmcnt(%d)" % (2 * rounds - 2))
    a("v_max3_u32 v%d, v%d, v%d, v%d" % (vA, vX, vX + 1, vX + 2))
    a("v_max3_u32 v%d, v%d, v%d, v%d" % (vB, vX + 3, vX + 4, vX + 5))
    a("v_max3_u32 v%d, v%d, v%d, v%d" % (vA, vA, vX + 6, vX + 7))
    a("v_max_u32 v%d, v%d, v%d" % (vA, vA, vB))
    a("v_cmp_eq_u32 vcc, -1, v%d" % vA)
    a("s_nop 1")
    a("s_and_b64 exec, exec, vcc")
    a("s_cbranch_scc1 L_o")
    a("s_mov_b64 exec, -1")
    stamp_at(5)
    vY = vBuf
    for r in range(0, 8, 2):
        a("v_pk_mul_f32 %s, %s, %s op_sel:[0,1] op_sel_hi:[1,1]"
          % (vr(vY + r, 2), vr(vX + r, 2), vr(vF - 1, 2)))
    for e in range(4):
        a("v_permlane32_swap_b32 v%d, v%d" % (vY + e, vY + 4 + e))
    for e in (0, 2):
        a("v_pk_add_f32 %s, %s, %s" % (vr(vY + e, 2), vr(vY + e, 2), vr(vY + 4 + e, 2)))
    for e in range(2):
        a("v_permlane16_swap_b32 v%d, v%d" % (vY + e, vY + 2 + e))
    a("v_pk_add_f32 %s, %s, %s" % (vr(vY, 2), vr(vY, 2), vr(vY + 2, 2)))
    a("s_cmp_lg_u64 s[10:11], 0")
    for sh in (4, 8):
        for x in (vY, vY + 1):
            a("v_add_f32_dpp v%d, v%d, v%d row_ror:%d %s" % (x, x, x, sh, DPPF))
    a("s_mov_b32 exec_lo, 0x000f000f")
    a("s_mov_b32 exec_hi, 0x000f000f")
    a("v_cvt_pk_bf16_f32 v%d, v%d, v%d" % (vY, vY, vY + 1))
    a("global_store_dword v%d, v%d, s[14:15]" % (vOut, vY))
    a("s_cbranch_scc1 L_help")
    a("L_fin:")
    if timed:
        a("s_waitcnt vmcnt(0)")
        stamp_at(6)
        a("s_waitcnt lgkmcnt(0)")
    if stamp:
        a("s_mov_b64 exec, -1")
        a("s_getreg_b32 s54, hwreg(HW_REG_XCC_ID)")
        a("s_or_b32 s54, s54, %s" % sSlow)
        a("s_lshl_b32 %s, s2, 6" % sT1)
        a("s_add_u32 %s, %s, 0x200000" % (sT1, sT1))
        a("v_mov_b32 v%d, %s" % (vA, sT1))
        for i in range(8):
            a("v_mov_b32 v%d, s%d" % (vBuf + i, 40 + 2 * i))
        a("s_lshl_b32 %s, s2, 8" % sT1)
        a("s_add_u32 %s, %s, 0x300000" % (sT1, sT1))
        a("v_lshl_add_u32 v%d, v0, 2, %s" % (vB, sT1))
        a("global_store_dword v%d, v%d, s[18:19]" % (vB, vSt))
        a("s_mov_b64 exec, 1")
        a("global_store_dwordx4 v%d, %s, s[18:19]" % (vA, vr(vBuf, 4)))
        a("global_store_dwordx4 v%d, %s, s[18:19] offset:16" % (vA, vr(vBuf + 4, 4)))
    if diagpad:
        if diagx >= 0:
            lo, hi = diagx // 10, diagx % 10
            a("s_sub_u32 s56, s%d, s%d" % (40 + 2 * hi, 40 + 2 * lo))
            a("s_mul_i32 s56, s56, 10")
            a("s_add_u32 s56, s56, %d" % (diagpad * 100))
        else:
            a("s_mov_b32 s56, %d" % (diagpad * 100))
        if diagg:
            lo, hi = int(diagg[1]), int(diagg[2])
            a("s_mov_b64 exec, 1")
            a("v_mov_b32 v%d, 120" % vA)
            a("v_mov_b32 v%d, s%d" % (vBuf, 40 + 2 * hi))
            a("v_mov_b32 v%d, s%d" % (vBuf + 1, 40 + 2 * lo))
            if diagg[0] == "m":
                a("v_not_b32 v%d, v%d" % (vBuf + 1, vBuf + 1))
            a("global_atomic_umax v%d, v%d, s[16:17]" % (vA, vBuf))
            a("global_atomic_umax v%d, v%d, s[16:17] offset:4" % (vA, vBuf + 1))
        if padwg >= 0:
            a("s_cmp_lg_u32 s2, %d" % padwg)
            a("s_cbranch_scc1 L_end")
        a("L_pad:")
        a("s_memrealtime s[58:59]")
        a("s_waitcnt lgkmcnt(0)")
        a("s_sub_u32 s58, s58, s40")
        a("s_cmp_lt_u32 s58, s56")
        a("s_cbranch_scc1 L_pad")
        if diagg:
            a("global_load_dwordx2 %s, v%d, s[16:17] sc1" % (vr(vBuf, 2), vA))
            a("s_waitcnt vmcnt(0)")
            a("v_readfirstlane_b32 s10, v%d" % vBuf)
            a("v_readfirstlane_b32 s11, v%d" % (vBuf + 1))
            a("s_nop 3")
            if diagg[0] == "m":
                a("s_not_b32 s11, s11")
            a("s_sub_u32 s10, s10, s11")
            a("s_sub_u32 s10, s10, %d" % (diagsub * 100))
            a("s_max_i32 s10, s10, 0")
            a("s_min_u32 s10, s10, 2000")
            a("s_mul_i32 s10, s10, 10")
            a("s_add_u32 s56, s56, s10")
            a("L_pad2:")
            a("s_memrealtime s[58:59]")
            a("s_waitcnt lgkmcnt(0)")
            a("s_sub_u32 s58, s58, s40")
            a("s_cmp_lt_u32 s58, s56")
            a("s_cbranch_scc1 L_pad2")
    a("L_end:")
    a("s_endpgm")

    a("L_help:")
    a("s_cmp_lg_u32 %s, 0" % sSlow)
    a("s_cbranch_scc1 L_fin")
    a("s_mov_b64 exec, 1")
    a("v_mov_b32 v%d, 1" % vCnt)
    a("s_waitcnt vmcnt(0)")
    a("global_atomic_add v%d, v%d, s[16:17]" % (vCntA, vCnt))
    a("s_branch L_fin")

    a("L_slow:")
    pub_ml("sc1")
    pub_o(0, "sc1")
    pub_o(1, "sc1")
    a("s_mov_b64 exec, 1")
    a("v_mov_b32 v%d, 1" % vCnt)
    a("s_waitcnt vmcnt(0)")
    a("global_atomic_add v%d, v%d, s[16:17]" % (vCntA, vCnt))
    a("L_cnt:")
    bound()
    a("global_load_dword v%d, v%d, s[16:17] sc1" % (vVal, vCntA))
    a("s_waitcnt vmcnt(0)")
    a("v_readfirstlane_b32 %s, v%d" % (sT0, vVal))
    a("s_nop 1")
    a("s_cmp_ge_u32 %s, %d" % (sT0, S))
    a("s_cbranch_scc0 L_cnt")
    a("s_mov_b64 exec, -1")
    a("L_ml_again:")
    get_ml()
    bound()
    a("s_waitcnt vmcnt(0)")
    a("s_branch L_ml")

    vLane, vRd, vMX, vMY, vAl, vNmc, vA, vB, vWO0, vWO1, vWL = range(3, 14)
    vM, vL = 14, 15
    vQ, vO, vT, vXY, vD, vK = 16, 20, 28, 30, 40, 56
    vRdK, vOwn, vVt, vS = 38, 39, 72, 76
    vSt, vWM = 1, vAl
    vCl0, vCl1 = vXY, vXY + 1
    sI, sOwn = "s21", "s36"

    def fold(part, t, da, db):
        src, own, ror, bank = ((da + 1, da, 12, 1), (da + 3, da + 2, 12, 4),
                               (db, db + 1, 4, 2), (db + 2, db + 3, 4, 8))[part]
        a("v_add_f32_dpp v%d, v%d, v%d row_ror:%d row_mask:0xf bank_mask:0x%x"
          % (t, src, own, ror, bank))

    def fold_c(t):
        a("v_add_f32_dpp v%d, v%d, v%d row_ror:8 %s" % (t, t, t, DPPF))

    def reset():
        a("global_store_dwordx4 v%d, %s, s[18:19]" % (vCl0, vr(vO, 4)))
        a("global_store_dwordx4 v%d, %s, s[18:19] offset:1024" % (vCl0, vr(vO, 4)))
        a("global_store_dwordx4 v%d, %s, s[18:19]" % (vCl1, vr(vO, 4)))

    a("L_cons:")
    a("s_load_dwordx2 s[4:5], s[0:1], 0")
    a("s_load_dwordx4 s[8:11], s[0:1], 24")
    a("v_and_b32 v%d, 63, v0" % vLane)
    a("s_lshr_b32 %s, %s, 6" % (sW, sW))
    a("s_sub_u32 %s, %s, 1" % (sW, sW))
    a("s_lshl_b32 %s, %s, 4" % (sIdx, sP))
    a("s_add_u32 %s, %s, %s" % (sIdx, sIdx, sS))
    a("s_mov_b32 %s, %s" % (sC, f32(CS)))
    a("v_lshrrev_b32 v%d, 4, v%d" % (vA, vLane))
    a("v_lshlrev_b32 v%d, 6, v%d" % (vA, vA))
    a("v_and_b32 v%d, 3, v%d" % (vB, vLane))
    a("v_bfe_u32 v%d, v%d, 2, 2" % (vAl, vLane))
    a("v_lshl_add_u32 v%d, v%d, 4, v%d" % (vNmc, vB, vA))
    a("v_lshl_add_u32 v%d, v%d, 8, v%d" % (vRdK, vAl, vNmc))
    a("v_lshl_add_u32 v%d, v%d, 8, v%d" % (vA, vB, vA))
    a("v_lshl_add_u32 v%d, v%d, 4, v%d" % (vA, vAl, vA))
    a("v_lshlrev_b32 v%d, 4, v%d" % (vRd, vLane))
    a("s_lshl_b32 %s, %s, 10" % (sT0, sP))
    a("s_lshl_b32 %s, %s, 8" % (sT1, sP))
    a("v_add_u32 v%d, %s, v%d" % (vA, sT0, vA))
    a("v_add_u32 v%d, %s, v%d" % (vNmc, sT1, vNmc))
    a("v_and_b32 v%d, 0xf0, v%d" % (vB, vRd))
    a("v_add_u32 v%d, %s, v%d" % (vB, sT1, vB))
    a("s_lshl_b32 %s, %s, 11" % (sT0, sIdx))
    a("v_add_u32 v%d, %s, v%d" % (vCl0, sT0, vRd))
    a("s_lshl_b32 %s, %s, 7" % (sT0, sIdx))
    a("s_add_u32 %s, %s, %d" % (sT0, sT0, WS_ML))
    a("v_and_b32 v%d, 0x70, v%d" % (vCl1, vRd))
    a("v_add_u32 v%d, %s, v%d" % (vCl1, sT0, vCl1))
    for r in range(4):
        a("v_mov_b32 v%d, -1" % (vO + r))
        a("v_mov_b32 v%d, 0" % (vVt + r))
    a("s_waitcnt lgkmcnt(0)")
    if ctouch:
        a("v_mov_b32 v%d, 0" % vM)
        a("global_load_dword v%d, v%d, s[16:17] offset:%d" % (vL, vM, DBG_PROG))
    if not skip & 1:
        a("global_load_dwordx4 %s, v%d, s[4:5]" % (vr(vQ, 4), vA))
    a("s_or_b32 %s, %s, %s" % (sOwn, sS, sW))
    a("s_cbranch_scc1 L_notree")
    a("global_load_dwordx4 %s, v%d, s[8:9]" % (vr(vK, 4), vNmc))
    a("global_load_dwordx4 %s, v%d, s[10:11]" % (vr(vVt, 4), vB))
    a("s_load_dword %s, s[12:13], 0" % sMask)
    a("L_notree:")
    a("s_cmp_lg_u32 %s, %d" % (sW, C - 1))
    a("s_cbranch_scc1 L_noclear")
    if late:
        a("; reset this workgroup's messages; acknowledged before barrier %d" % READY)
        reset()
    else:
        a("global_load_dwordx4 %s, v%d, s[18:19]" % (vr(vK + 4, 4), vCl0))
        a("global_load_dwordx4 %s, v%d, s[18:19] offset:1024" % (vr(vK + 8, 4), vCl0))
        a("global_load_dwordx4 %s, v%d, s[18:19]" % (vr(vK + 12, 4), vCl1))
    a("L_noclear:")
    if warm:
        a("; touch code that first runs late, one region per wave")
        a("s_mov_b64 exec, 0")
        for c in range(C - 1):
            a("s_cmp_eq_u32 %s, %d" % (sW, c))
            a("s_cbranch_scc1 L_hop%d" % c)
        a("L_back:")
        a("s_mov_b64 exec, -1")
    a("s_lshl_b32 %s, %s, 10" % (sT0, sW))
    a("v_and_b32 v%d, 32, v%d" % (vA, vLane))
    a("v_lshlrev_b32 v%d, 2, v%d" % (vA, vA))
    a("v_xor_b32 v%d, v%d, v%d" % (vRd, vRd, vA))
    a("v_add_u32 v%d, %s, v%d" % (vRd, sT0, vRd))
    a("v_and_b32 v%d, 8, v%d" % (vA, vLane))
    a("v_lshlrev_b32 v%d, 4, v%d" % (vA, vA))
    a("v_xor_b32 v%d, v%d, v%d" % (vRdK, vRdK, vA))
    a("v_add_u32 v%d, %s, v%d" % (vRdK, sT0, vRdK))
    a("s_lshl_b32 %s, %s, 8" % (sT0, sW))
    a("s_add_u32 %s, %s, %d" % (sT0, sT0, ldsL))
    a("v_lshl_add_u32 v%d, v%d, 2, %s" % (vWL, vLane, sT0))
    a("v_and_b32 v%d, 3, v%d" % (vWM, vLane))
    a("v_lshlrev_b32 v%d, 4, v%d" % (vWM, vWM))
    a("v_add_u32 v%d, %d, v%d" % (vWM, ldsM, vWM))
    a("v_bfe_u32 v%d, v%d, 4, 1" % (vA, vLane))
    a("v_bfe_u32 v%d, v%d, 5, 1" % (vB, vLane))
    a("v_lshl_add_u32 v%d, v%d, 1, v%d" % (vA, vA, vB))
    a("v_and_b32 v%d, 15, v%d" % (vB, vLane))
    a("v_lshl_add_u32 v%d, v%d, 2, v%d" % (vA, vB, vA))
    a("s_lshl_b32 %s, %s, 11" % (sT0, sW))
    a("s_add_u32 %s, %s, %d" % (sT0, sT0, ldsO))
    a("v_lshl_add_u32 v%d, v%d, 2, %s" % (vWO0, vA, sT0))
    a("v_xor_b32 v%d, 0x80, v%d" % (vWO1, vWO0))
    a("v_and_b32 v%d, 8, v%d" % (vA, vLane))
    a("v_lshlrev_b32 v%d, 1, v%d" % (vA, vA))
    a("v_mov_b32 v%d, 0xffff" % vB)
    a("v_lshlrev_b32 v%d, v%d, v%d" % (vA, vA, vB))
    a("v_bfe_i32 v%d, v%d, 2, 1" % (vB, vLane))
    a("v_and_b32 v%d, v%d, v%d" % (vMY, vA, vB))
    a("v_xor_b32 v%d, v%d, v%d" % (vMX, vA, vMY))
    a("v_mov_b32 v%d, 0xff800000" % vM)
    a("v_mov_b32 v%d, v%d" % (vSt, vM))
    a("s_mov_b32 %s, 0" % sI)
    a("s_barrier")
    if not late:
        a("s_cmp_lg_u32 %s, %d" % (sW, C - 1))
        a("s_waitcnt vmcnt(0)")
        a("s_cbranch_scc1 L_noreset")
        reset()
        a("L_noreset:")
    a("s_cmp_lg_u32 %s, 0" % sOwn)
    a("s_waitcnt %slgkmcnt(0)" % ("vmcnt(0) " if late else ""))
    a("s_cbranch_scc1 L_k_in")
    a("v_mfma_f32_16x16x32_bf16 %s, %s, %s, 0" % (vr(vD, 4), vr(vK, 4), vr(vQ, 4)))
    a("s_lshr_b32 %s, %s, 3" % (sT0, sP))
    a("s_lshl_b32 %s, %s, 4" % (sT0, sT0))
    a("s_lshr_b32 %s, %s, %s" % (sMask, sMask, sT0))
    a("s_lshl_b32 %s, %s, 16" % (sMask, sMask))
    a("v_mov_b32 v%d, %s" % (vA, sMask))
    a("v_sub_f32 v%d, 1.0, v%d" % (vA, vA))
    a("v_mul_f32 v%d, %s, v%d" % (vA, f32(-1e9 * 128 ** 0.5), vA))
    for part in range(4):
        fold(part, vM, vD, vD)
    fold_c(vM)
    a("v_add_f32 v%d, v%d, v%d" % (vM, vM, vA))
    a("s_mov_b64 exec, 0xffff")
    a("v_mov_b32 v%d, v%d" % (vSt, vM))
    a("s_mov_b64 exec, -1")
    a("s_branch L_k_in")

    NT = G // 2

    def advance(rd):
        a("v_add_u32 v%d, %d, v%d" % (rd, NS * 1024, rd))
        a("v_and_b32 v%d, %d, v%d" % (rd, RING - 1, rd))

    a("L_k:")
    l0 = a.mark()
    if not late:
        a("s_waitcnt vmcnt(0)")
    a("s_barrier")
    a("L_k_in:")
    for j in range(G):
        a("ds_read_b128 %s, v%d offset:%d" % (vr(vK + 4 * j, 4), vRdK, j * 4096))
    advance(vRdK)
    for j in range(G):
        a("s_waitcnt lgkmcnt(%d)" % (G - 1 - j))
        a("v_mfma_f32_16x16x32_bf16 %s, %s, %s, 0"
          % (vr(vD + 4 * j, 4), vr(vK + 4 * j, 4), vr(vQ, 4)))
    for part in range(4):
        for i in range(NT):
            fold(part, vT + i, vD + 8 * i, vD + 8 * i + 4)
    for i in range(NT):
        fold_c(vT + i)
    a("s_set_gpr_idx_on %s, gpr_idx(DST)" % sI)
    for i in range(NT):
        a("v_mov_b32 v%d, v%d" % (vS + i, vT + i))
    a("s_set_gpr_idx_off")
    a("v_max3_f32 v%d, v%d, v%d, v%d" % (vM, vM, vT, vT + NT - 1))
    a("s_add_u32 %s, %s, %d" % (sI, sI, NT))
    a("s_cmp_lt_u32 %s, 64" % sI)
    a("s_cbranch_scc1 L_k")
    a.loop_check(l0)

    def prep(lim=64):
        a("s_set_gpr_idx_on %s, gpr_idx(SRC0)" % sI)
        for i in range(NT):
            a("v_mov_b32 v%d, v%d" % (vT + i, vS + i))
        a("s_set_gpr_idx_off")
        for i in range(NT):
            a("v_fma_f32 v%d, v%d, %s, v%d" % (vT + i, vT + i, sC, vNmc))
        for i in range(NT):
            a("v_exp_f32 v%d, v%d" % (vT + i, vT + i))
        a("s_add_u32 %s, %s, %d" % (sI, sI, NT))
        a("s_cmp_lt_u32 %s, %d" % (sI, lim))
        for i in range(NT):
            a("v_add_f32 v%d, v%d, v%d" % (vL, vL, vT + i))
        for i in range(NT):
            a("v_cvt_pk_bf16_f32 v%d, v%d, v%d" % (vT + i, vT + i, vT + i))
        a("ds_write_b32 v%d, v%d" % (vWL, vL))
        for i in range(NT):
            x, p = vXY + 4 * i, vT + i
            a("v_and_b32 v%d, v%d, v%d" % (x, p, vMX))
            a("v_and_b32 v%d, v%d, v%d" % (x + 3, p, vMY))
            a("v_and_b32_dpp v%d, v%d, v%d row_ror:4 %s" % (x + 1, p, vMY, DPPF))
            a("v_and_b32_dpp v%d, v%d, v%d row_ror:4 %s" % (x + 2, p, vMX, DPPF))
        a("s_waitcnt lgkmcnt(0)")

    a("v_max_f32_dpp v%d, v%d, v%d row_ror:4 %s" % (vM, vM, vM, DPPF))
    rows_reduce("v_max_f32", vM, vB)
    a("v_lshl_add_u32 v%d, %s, 2, v%d" % (vA, sW, vWM))
    a("ds_write_b32 v%d, v%d" % (vA, vM))
    a("s_mov_b32 %s, 0" % sI)
    a("s_waitcnt lgkmcnt(0)")
    a("s_barrier")
    a("ds_read_b128 %s, v%d" % (vr(vD, 4), vWM))
    a("s_waitcnt lgkmcnt(0)")
    a("v_max3_f32 v%d, v%d, v%d, v%d" % (vM, vD, vD + 1, vD + 2))
    a("v_max_f32 v%d, v%d, v%d" % (vM, vM, vD + 3))
    a("v_mul_f32 v%d, %s, v%d" % (vNmc, f32(-CS), vM))
    a("v_fma_f32 v%d, v%d, %s, v%d" % (vA, vSt, sC, vNmc))
    a("v_exp_f32 v%d, v%d" % (vA, vA))
    a("v_cmp_ne_u32 vcc, 0, v%d" % vMX)
    a("v_cvt_pk_bf16_f32 v%d, v%d, v%d" % (vB, vA, vA))
    a("v_cndmask_b32 v%d, 0, v%d, vcc" % (vL, vA))
    a("v_and_b32 v%d, v%d, v%d" % (vXY, vB, vMX))
    a("v_and_b32 v%d, v%d, v%d" % (vXY + 1, vB, vMY))
    for k in range(2):
        a("v_mfma_f32_16x16x16_bf16 %s, %s, %s, 0"
          % (vr(vO + 4 * k, 4), vr(vXY, 2), vr(vVt + 2 * k, 2)))
    prep()
    a("s_branch L_v_in")
    if warm:
        a("L_hop2:")
        a("s_branch L_back")

    def pv(js, adv):
        for j in js:
            a("ds_read_b128 %s, v%d offset:%d" % (vr(vK + 4 * j, 4), vRd, j * 4096))
        if adv:
            advance(vRd)
        for j in js:
            a("s_waitcnt lgkmcnt(%d)" % (js[-1] - j))
            for k in range(2):
                a("v_mfma_f32_16x16x16_bf16 %s, %s, %s, %s"
                  % (vr(vO + 4 * k, 4), vr(vXY + 2 * j, 2), vr(vK + 4 * j + 2 * k, 2),
                     vr(vO + 4 * k, 4)))

    a("L_v:")
    l0 = a.mark()
    prep(64 - NT if split else 64)
    a("s_barrier")
    a("L_v_in:")
    pv(list(range(G)), True)
    a("s_cbranch_scc1 L_v")
    a.loop_check(l0)
    if split:
        prep()
        a("s_barrier")
        pv(list(range(G - 1)), False)
        a("s_barrier")
        pv([G - 1], False)
    for r in range(8):
        a("ds_write_b32 v%d, v%d offset:%d"
          % (vWO1 if r >= 4 else vWO0, vO + r, (r % 4) * 512 + (r // 4) * 256))
    a("s_waitcnt lgkmcnt(0)")
    a("s_barrier")
    a("L_last:")
    a("s_endpgm")

    nvg = max(a.max_v(), vS + 64)
    acc = (nvg + 3) // 4 * 4
    out = HEADER
    out += "; @launch grid=(%d,1,1) block=(%d,1,1) lds=%d\n" % (NWG, 64 * (C + 1), LDS)
    out += '.amdgcn_target "amdgcn-amd-amdhsa--gfx950"\n.text\n'
    out += ".globl %s_kernel\n.p2align 8\n.type %s_kernel,@function\n" % (NAME, NAME)
    out += a.text()
    out += """.section .rodata,"a"
.p2align 6
.amdhsa_kernel %s_kernel
  .amdhsa_next_free_vgpr %d
  .amdhsa_next_free_sgpr 64
  .amdhsa_accum_offset %d
  .amdhsa_group_segment_fixed_size 0
  .amdhsa_kernarg_size 72
  .amdhsa_user_sgpr_count 2
  .amdhsa_user_sgpr_kernarg_segment_ptr 1
  .amdhsa_system_sgpr_workgroup_id_x 1
.end_amdhsa_kernel
""" % (NAME, nvg, acc)
    return out


if __name__ == "__main__":
    kw = {}
    for arg in sys.argv[2:]:
        k, v = arg.split("=")
        kw[k] = int(v) if v.lstrip("-").isdigit() else v
    open(sys.argv[1], "w").write(gen(**kw))
```

```python
import math
import struct
import sys

from asmlib import Asm

NAME = "standalone__tree_speculative_verify_tree_attention_over_candidate_token_tree__decode"
HEADER = open("cdna_kernels/%s.s.ref" % NAME).read().split("; Override launch")[0]
DPPF = "row_mask:0xf bank_mask:0xf"

ORDERS = {
    "seq": ((19, 20, 21, 22), (14, 15, 16, 17, 18), ()),
    "rowset": ((14, 15, 16, 21), (19, 20, 17, 18, 22), ((1, 12), (2, 11))),
    "2set": ((14, 15, 21, 17), (16, 19, 20, 18, 22), ((1, 12), (3, 11))),
    "2setb": ((14, 15, 21, 18), (16, 19, 20, 17, 22), ((1, 12),)),
    "2c": ((15, 16, 21, 17), (14, 19, 20, 18, 22), ((0, 12), (1, 14), (3, 11))),
    "2d": ((15, 16, 21, 18), (14, 19, 20, 17, 22), ((0, 12), (1, 14))),
    "2e": ((15, 16, 21, 19), (14, 20, 17, 18, 22), ((0, 12), (1, 11))),
    "4c": ((16, 21, 17, 18), (14, 15, 19, 20, 22), ((0, 12), (2, 14))),
    "4d": ((16, 21, 19, 20), (14, 15, 17, 18, 22), ((0, 11),)),
    "4e": ((16, 21, 18, 19), (14, 15, 20, 17, 22), ((0, 12),)),
    "h18": ((14, 15, 16, 18), (21, 19, 20, 22, 17), ((1, 12), (2, 13))),
    "4set": ((14, 21, 17, 18), (15, 16, 19, 20, 22), ((2, 12),)),
}


def f32(x):
    return "0x%08x" % struct.unpack("<I", struct.pack("<f", x))[0]


def vr(a, n):
    return "v[%d:%d]" % (a, a + n - 1)


def gen(D=27, D0=20, fb=8, bias=2, order="h18", pre=1, stamp=0, diagpad=0, diagx=-1,
        force=0, NS=16, warm=1, padwg=-1, diagg=None, diagsub=0, gm=(29, 21, 13, 6), gg=2, skip=0, ctouch=0, late=1, tpol="sc1", split=1, rounds=3, jb=(12, 13), gws=0, rnd=4, opol="", nomsg=0, wb=0, vpad=0):
    N, C, S = 16, 4, 16
    G = NS // C
    NWG = 16 * S
    T = 32
    RING = 65536
    assert RING // 1024 - 2 * NS > D - 1 and N + 2 <= D <= 2 * N
    CS = 128 ** -0.5 * math.log2(math.e)
    timed = stamp or diagpad
    if isinstance(gm, str):
        gm = tuple(int(x) for x in gm.split("."))
    sbits, tbits, xs = ORDERS[order]
    assert sorted(list(jb) + list(sbits) + list(tbits)) == list(range(12, 23))
    assert all(b not in sbits for _, b in xs)
    a = Asm()

    ldsO = RING
    ldsL = ldsO + C * 2048
    ldsM = ldsL + C * 256
    LDS = ldsM + 64
    WS_ML = 0x100000
    DBG_PROG = 128
    READY = 2

    sW, sP, sS, sK, sCnt, sC, sT0, sT1, sIdx, sMask = (
        "s3", "s6", "s7", "s20", "s22", "s23", "s32", "s33", "s34", "s35")
    sBase, sTile, sTK, sTV = "s36", "s37", "s38", "s39"
    sProg, sKd, sRnd, sSlow = "s4", "s5", "s8", "s9"

    def stamp_at(i):
        if timed:
            a("s_memrealtime s[%d:%d]" % (40 + 2 * i, 41 + 2 * i))

    def swap_add(op, swap, x, y, dst):
        a("%s v%d, v%d" % (swap, x, y))
        a("%s v%d, v%d, v%d" % (op, dst, x, y))

    def rows_reduce(op, x, tmp):
        for swap in ("v_permlane16_swap_b32", "v_permlane32_swap_b32"):
            a("v_mov_b32 v%d, v%d" % (tmp, x))
            swap_add(op, swap, x, tmp, x)

    def scatter(dst, src, bits, first):
        i = 0
        while i < len(bits):
            n = 1
            while (i + n < len(bits) and bits[i + n][0] == bits[i][0] + n
                   and bits[i + n][1] == bits[i][1] + n):
                n += 1
            a("s_bfe_u32 %s, %s, 0x%x" % (sT0, src, n << 16 | bits[i][0]))
            a("s_lshl_b32 %s, %s, %d" % (sT0, sT0, bits[i][1]))
            a("s_xor_b32 %s, %s, %s" % (dst, first, sT0))
            first = dst
            i += n

    a("%s_kernel:" % NAME)
    a("s_load_dwordx2 s[24:25], s[0:1], 8")
    a("s_load_dwordx2 s[28:29], s[0:1], 16")
    a("s_load_dwordx8 s[12:19], s[0:1], 40")
    stamp_at(0)
    a("v_readfirstlane_b32 %s, v0" % sW)
    a("s_cmp_ge_u32 s2, %d" % NWG)
    a("s_cbranch_scc1 L_end")
    a("s_and_b32 %s, s2, 15" % sP)
    a("s_lshr_b32 %s, s2, 4" % sS)
    a("s_cmp_eq_u32 %s, 0" % sW)
    a("s_cbranch_scc1 L_loader")
    if pre:
        a("; the first workgroups pull the code into L2")
        a("s_sub_u32 %s, %s, 64" % (sT0, sW))
        a("s_or_b32 %s, %s, %s" % (sT0, sT0, sS))
        a("s_cbranch_scc1 L_cons")
        a("s_getpc_b64 s[36:37]")
        a("L_pc:")
        a("v_lshlrev_b32 v1, 7, v0")
        a("v_and_b32 v1, 0x1fff, v1")
        a("v_min_u32 v1, L_last-L_pc, v1")
        a("global_load_dword v2, v1, s[36:37]")
    a("s_branch L_cons")

    vOff, vA, vB = [1, 2], 3, 4
    vCntA, vCnt, vMLrd, vOrd0, vOrd1, vPubO, vPubML, vInO, vInML, vOut, vF = range(5, 16)
    vML, vMLi, vX, vAcc, vBuf = 16, 18, 20, 28, 36
    vOob, vSlot, vPeerA, vVal, vPeer, vDum = 68, 69, 70, 71, 72, 74
    vMrd, vSt, vTk, vTkA, vTwo, vIni = 75, 76, 77, 78, 79, 80
    sRep, sCk, sRank = "s10", "s11", "s21"
    WS_CK = 0x180000
    a("L_loader:")
    a("s_setprio 3")
    a("s_lshl_b32 %s, %s, 23" % (sBase, sP))
    scatter(sBase, sS, list(enumerate(sbits)) + [x for x in xs if x[1] >= 12], sBase)
    a("s_mov_b32 %s, 1" % sTile)
    a("s_xor_b32 %s, %s, %d" % (sTV, sBase, 1 << tbits[0]))
    a("s_mov_b32 %s, %s" % (sTK, sBase))
    a("s_mov_b32 %s, %s" % (sK, sBase))
    a("s_mov_b32 s26, 0x8000000")
    a("s_mov_b32 s27, 0x00020000")
    a("s_mov_b32 m0, 0")
    a("v_lshlrev_b32 v%d, 4, v0" % vA)
    a("v_and_b32 v%d, 32, v0" % vB)
    a("v_lshlrev_b32 v%d, 2, v%d" % (vB, vB))
    a("v_xor_b32 v%d, v%d, v%d" % (vOff[0], vA, vB))
    x11 = [b for b, ab in xs if ab == 11]
    if x11:
        a("s_bfe_u32 %s, %s, 0x%x" % (sT0, sS, 1 << 16 | x11[0]))
        a("s_lshl_b32 %s, %s, 11" % (sT0, sT0))
        a("v_add_u32 v%d, %s, v%d" % (vOff[0], sT0, vOff[0]))
        a("v_xor_b32 v%d, 0x800, v%d" % (vOff[1], vOff[0]))
    else:
        vOff = [vOff[0], vOff[0]]
    per = 2 if x11 else 4

    def load(i, burst=False):
        j = i % N
        a("buffer_load_dwordx4 v%d, s[24:27], %s offen offset:%d nt lds"
          % (vOff[(j % 4) // 2], sK, (j % per) * 1024))
        if i == 2 * N * T - 1:
            return
        if i % per == per - 1:
            a("s_add_u32 m0, m0, %d" % (per * 1024))
            if (i + 1) % (2 * N) == 0:
                a("s_and_b32 m0, m0, %d" % (RING - 1))
            if i % 4 != 3 and burst:
                a("s_nop 0")
        if j == 4 and i >= N:
            a("s_add_u32 %s, %s, 1" % (sTile, sTile))
            scatter(sTV, sTile, list(enumerate(tbits)), sBase)
        if i % 4 == 3:
            if j + 1 < N:
                q = (j + 1) // 4
                a("s_xor_b32 %s, %s, %d" % (sK, sTK, (q & 1) << jb[0] | (q >> 1) << jb[1]))
            else:
                a("s_mov_b32 %s, %s" % (sTK, sTV))
                if (i // N) % 2 == 1:
                    a("s_cmp_eq_u32 %s, %d" % (sTile, T))
                    a("s_cselect_b64 s[24:25], s[28:29], s[24:25]")
                a("s_mov_b32 %s, %s" % (sK, sTV))

    def dummy():
        a("buffer_load_dword v%d, v%d, s[24:27], 0 offen" % (vDum, vOob))

    a("s_waitcnt lgkmcnt(0)")
    stamp_at(1)
    for i in range(D0):
        load(i, True)
    a("v_and_b32 v%d, 31, v0" % vPeerA)
    a("v_lshlrev_b32 v%d, 2, v%d" % (vPeerA, vPeerA))
    if ctouch:
        a("v_mov_b32 v%d, 0x7f000000" % vOob)
        dummy()
    else:
        a("global_load_dword v%d, v%d, s[16:17] offset:%d" % (vDum, vPeerA, DBG_PROG))
    a("s_getreg_b32 %s, hwreg(HW_REG_XCC_ID, 0, 4)" % sT0)
    a("s_and_b32 %s, %s, 1" % (sRnd, sT0))
    a("s_mul_i32 %s, %s, %d" % (sRnd, sRnd, 2 * bias))
    a("s_add_u32 %s, %s, %d" % (sRnd, sRnd, 32 // fb - bias + rnd))
    a("s_lshl_b32 %s, %s, 3" % (sT0, sT0))
    a("s_and_b32 %s, s2, 7" % sProg)
    a("s_or_b32 %s, %s, %s" % (sProg, sProg, sT0))
    a("s_mov_b32 %s, %d" % (sKd, fb // 2))
    a("s_lshr_b32 %s, s2, 3" % sT0)
    a("s_lshl_b32 %s, %s, 2" % (sT0, sT0))
    a("v_mov_b32 v%d, %s" % (vSlot, sT0))
    a("v_mov_b32 v%d, 0x7f000000" % vOob)
    if gm:
        a("s_cmp_lt_u32 s2, 8")
        a("s_cselect_b32 %s, 0x%x, 0" % (sRep, sum(1 << c for c in gm)))
        a("s_add_u32 %s, %s, %d" % (sRnd, sRnd, 7 * gg // 2))
        a("v_mov_b32 v%d, 7" % vTk)
        a("v_mov_b32 v%d, 2" % vTwo)
        if gws:
            a("v_mul_u32_u24 v%d, %d, v0" % (vTkA, gws))
            a("v_add_u32 v%d, %d, v%d" % (vTkA, WS_CK, vTkA))
            a("v_mov_b32 v%d, 0" % vIni)
            a("s_mov_b32 %s, 0" % sCk)
            a("s_mov_b32 %s, 0x700" % sRank)
            a("s_cmp_lt_u32 s2, 8")
            a("s_cbranch_scc0 L_nosnap")
            a("s_mov_b64 exec, 0x%x" % ((2 << len(gm)) - 2))
            a("global_load_dword v%d, v%d, s[18:19] sc1" % (vIni, vTkA))
            a("s_mov_b64 exec, -1")
            a("L_nosnap:")
        else:
            a("v_mov_b32 v%d, 64" % vTkA)
    a("v_lshlrev_b32 v%d, 31, v0" % vPeer)
    a("v_or_b32 v%d, 0x7ff, v%d" % (vPeer, vPeer))
    a("v_mov_b32 v%d, v%d" % (vPeer + 1, vPeer))
    a("s_lshl_b32 %s, %s, 4" % (sIdx, sP))
    a("s_add_u32 %s, %s, %s" % (sIdx, sIdx, sS))
    a("s_mov_b32 %s, %s" % (sC, f32(CS)))
    a("s_lshl_b32 %s, %s, 2" % (sT0, sP))
    a("v_mov_b32 v%d, %s" % (vCntA, sT0))
    a("v_lshrrev_b32 v%d, 4, v0" % vA)
    a("v_and_b32 v%d, 15, v0" % vB)
    a("v_lshlrev_b32 v%d, 6, v%d" % (vMLrd, vB))
    a("v_lshl_add_u32 v%d, v%d, 2, v%d" % (vMLrd, vA, vMLrd))
    a("v_add_u32 v%d, %d, v%d" % (vMLrd, ldsL, vMLrd))
    a("v_lshlrev_b32 v%d, 4, v%d" % (vMrd, vA))
    a("v_add_u32 v%d, %d, v%d" % (vMrd, ldsM, vMrd))
    a("v_and_b32 v%d, 1, v0" % vOrd0)
    a("v_mul_u32_u24 v%d, 24, v%d" % (vOrd0, vOrd0))
    a("v_bfe_u32 v%d, v0, 1, 3" % vOrd1)
    a("v_add_u32 v%d, v%d, v%d" % (vOrd0, vOrd0, vOrd1))
    a("v_lshl_add_u32 v%d, v%d, 5, v%d" % (vOrd0, vA, vOrd0))
    a("v_lshlrev_b32 v%d, 4, v%d" % (vOrd0, vOrd0))
    a("v_add_u32 v%d, %d, v%d" % (vOrd0, ldsO, vOrd0))
    a("v_xor_b32 v%d, 0x80, v%d" % (vOrd1, vOrd0))
    a("s_lshl_b32 %s, %s, 11" % (sT0, sIdx))
    a("v_lshl_add_u32 v%d, v%d, 5, v%d" % (vPubO, vA, vB))
    a("v_lshl_add_u32 v%d, v%d, 4, %s" % (vPubO, vPubO, sT0))
    a("s_lshl_b32 %s, %s, 7" % (sT0, sIdx))
    a("s_add_u32 %s, %s, %d" % (sT0, sT0, WS_ML))
    a("v_lshl_add_u32 v%d, v%d, 3, %s" % (vPubML, vA, sT0))
    a("v_lshrrev_b32 v%d, 2, v0" % vA)
    a("v_and_b32 v%d, 3, v0" % vB)
    a("s_lshl_b32 %s, %s, 8" % (sT0, sP))
    a("s_add_u32 %s, %s, %s" % (sT0, sT0, sS))
    a("s_lshl_b32 %s, %s, 7" % (sT0, sT0))
    a("v_lshl_add_u32 v%d, v%d, 7, v%d" % (vInO, vA, vB))
    a("v_lshl_add_u32 v%d, v%d, 4, %s" % (vInO, vInO, sT0))
    a("s_lshl_b32 %s, %s, 11" % (sT0, sP))
    a("s_lshr_b32 %s, %s, 2" % (sT1, sS))
    a("s_lshl_b32 %s, %s, 3" % (sT1, sT1))
    a("s_add_u32 %s, %s, %s" % (sT0, sT0, sT1))
    a("s_add_u32 %s, %s, %d" % (sT0, sT0, WS_ML))
    a("v_lshl_add_u32 v%d, v%d, 7, %s" % (vInML, vA, sT0))
    a("v_lshrrev_b32 v%d, 5, v0" % vA)
    a("v_lshl_add_u32 v%d, v%d, 2, v%d" % (vA, vA, vB))
    a("v_bfe_u32 v%d, v0, 4, 1" % vB)
    a("v_lshl_add_u32 v%d, v%d, 1, v%d" % (vA, vA, vB))
    a("s_lshl_b32 %s, %s, 6" % (sT0, sIdx))
    a("v_lshl_add_u32 v%d, v%d, 2, %s" % (vOut, vA, sT0))
    a("s_mov_b32 %s, %d" % (sCnt, T - 1))
    if timed:
        a("s_waitcnt vmcnt(%d)" % D0)
        stamp_at(2)
    for i in range(D0, D):
        a("s_waitcnt vmcnt(%d)" % i)
        load(i)
        if i + 1 < D:
            dummy()

    order_k = {4: (0, 2, 1, 3), 8: (0, 4, 2, 6, 1, 5, 3, 7)}[fb]
    nlab = [0]

    def step(i):
        pos, half = (i - D) % N, ((i - D) // N) % 2
        a("s_waitcnt vmcnt(%d)" % (D - 1))
        load(i)
        if pos % NS == NS - 1:
            a("s_barrier")
        if pos == N - 1:
            a("s_add_u32 %s, %s, 0x10000" % (sProg, sProg))
            if gm and gws:
                if half == 0:
                    a("v_sub_u32 v%d, v%d, v%d" % (vVal, vTk, vIni))
                    a("v_min_u32 v%d, 14, v%d" % (vVal, vVal))
                    a("v_lshlrev_b32 v%d, 8, v%d" % (vVal, vVal))
                    a("v_readlane_b32 %s, v%d, %s" % (sRank, vVal, sCk))
                    a("s_bitcmp1_b32 %s, %s" % (sRep, sCnt))
                    a("s_cbranch_scc0 L_norank")
                    a("s_add_u32 %s, %s, 1" % (sCk, sCk))
                    a("s_lshl_b64 exec, 1, %s" % sCk)
                    a("global_atomic_add v%d, v%d, v%d, s[18:19] sc0" % (vTk, vTkA, vTwo))
                    a("s_mov_b64 exec, -1")
                    a("L_norank:")
                a("s_or_b32 %s, %s, %s" % (sT0, sProg, sRank))
                a("v_mov_b32 v%d, %s" % (vVal, sT0))
            elif gm:
                a("s_mov_b64 exec, 1")
                a("v_lshl_or_b32 v%d, v%d, 8, %s" % (vVal, vTk, sProg))
            else:
                a("v_mov_b32 v%d, %s" % (vVal, sProg))
            a("global_store_dword v%d, v%d, s[16:17] offset:%d" % (vSlot, vVal, DBG_PROG))
            if gm and not gws:
                if half == 0:
                    a("s_bitcmp1_b32 %s, %s" % (sRep, sCnt))
                    a("s_cbranch_scc0 L_norank")
                    a("global_atomic_add v%d, v%d, v%d, s[16:17] sc0" % (vTk, vTkA, vTwo))
                    a("v_add_u32 v%d, 4, v%d" % (vTkA, vTkA))
                    a("L_norank:")
                a("s_mov_b64 exec, -1")
            a("global_load_dword v%d, v%d, s[16:17] offset:%d nt"
              % (vPeer + half, vPeerA, DBG_PROG))
        if pos == D - N - 2:
            a("s_sub_u32 %s, %s, 0x10000" % (sT0, sProg))
            a("v_cmp_le_i32 vcc, %s, v%d" % (sT0, vPeer + half))
            if gm:
                a("v_readfirstlane_b32 %s, v%d" % (sT1, vPeer + half))
            a("s_nop 1")
            a("s_bcnt0_i32_b64 %s, vcc" % sKd)
            a("s_add_u32 %s, %s, %s" % (sKd, sKd, sRnd))
            if gm:
                a("s_bfe_u32 %s, %s, 0x40008" % (sT1, sT1))
                if gg != 2:
                    a("s_mul_i32 %s, %s, %d" % (sT1, sT1, gg))
                    a("s_lshr_b32 %s, %s, 1" % (sT1, sT1))
                a("s_sub_i32 %s, %s, %s" % (sKd, sKd, sT1))
                a("s_max_i32 %s, %s, 0" % (sKd, sKd))
            a("s_lshr_b32 %s, %s, %d" % (sKd, sKd, {4: 4, 8: 3}[fb]))
        gap = N // fb
        if pos % gap == 0 and i < 2 * N * T - 1:
            nlab[0] += 1
            a("s_cmp_gt_u32 %s, %d" % (sKd, order_k[pos // gap]))
            a("s_cbranch_scc0 L_nd%d" % nlab[0])
            dummy()
            a("L_nd%d:" % nlab[0])

    a("L_load:")
    for i in range(D, D + 2 * N):
        step(i)
        if stamp and i == D + 2:
            a("s_memrealtime s[60:61]")
        if stamp and i == D + 8:
            a("s_waitcnt lgkmcnt(0)")
            a("s_mov_b32 s62, m0")
            a("s_mov_b32 m0, %s" % sCnt)
            a("s_nop 0")
            a("v_writelane_b32 v%d, s60, m0" % vSt)
            a("s_mov_b32 m0, s62")
    a("s_sub_u32 %s, %s, 1" % (sCnt, sCnt))
    a("s_cmp_lg_u32 %s, 0" % sCnt)
    a("s_cbranch_scc1 L_load")
    for i in range(D + 2 * N * (T - 1), 2 * N * T):
        step(i)
    ext = 2 if late else 0
    if late:
        a("; read the incoming message lines once so that L2 holds them whole")
        a("global_load_dword v%d, v%d, s[18:19] %s" % (vDum, vInML, tpol))
        a("global_load_dword v%d, v%d, s[18:19] %s" % (vVal, vInO, tpol))
    a("ds_read_b128 %s, v%d" % (vr(vX, 4), vMrd))
    left = 2 * N * T // NS - (2 * N * T - D) // NS
    for h in range(left - 1, 0, -1):
        a("s_waitcnt vmcnt(%d)" % (h * NS + ext))
        a("s_barrier")
    a("s_and_b32 %s, %s, 0xff" % (sT0, sProg))
    a("v_xor_b32 v%d, %s, v%d" % (vA, sT0, vPeer))
    a("v_and_b32 v%d, 0xff, v%d" % (vB, vA))
    a("v_cmp_eq_u32 vcc, 0, v%d" % vB)
    a("s_lshr_b32 %s, %s, 3" % (sT0, sP))
    a("s_lshl_b32 %s, 0x55555555, %s" % (sT0, sT0))
    a("s_and_b32 %s, %s, vcc_lo" % (sT1, sT0))
    a("v_cmp_le_i32 vcc, 0x%x, v%d" % (READY << 16, vA))
    a("s_mov_b32 %s, 0x200000" % sCnt)
    a("s_nop 0")
    a("s_and_b32 %s, %s, vcc_lo" % (sT1, sT1))
    if force:
        a("s_and_b32 s11, s2, %d" % force)
        a("s_cselect_b32 %s, 0, %s" % (sT1, sT1))
    a("s_cmp_eq_u32 %s, %s" % (sT0, sT1))
    a("s_cselect_b32 %s, 0, 0x80000000" % sSlow)
    a("s_waitcnt lgkmcnt(0)")
    a("v_max3_f32 v%d, v%d, v%d, v%d" % (vML, vX, vX + 1, vX + 2))
    a("v_max_f32 v%d, v%d, v%d" % (vML, vML, vX + 3))
    a("v_min_u32 v%d, -2, v%d" % (vML, vML))
    a("v_mov_b32 v%d, -1" % vMLi)
    a("v_mov_b32 v%d, -1" % (vMLi + 1))
    def pub_ml(flags):
        a("s_mov_b32 exec_lo, 0x00010001")
        a("s_mov_b32 exec_hi, 0x00010001")
        a("global_store_dwordx2 v%d, %s, s[18:19] %s" % (vPubML, vr(vML, 2), flags))
        a("s_mov_b64 exec, -1")

    def pub_o(k, flags):
        if nomsg:
            return
        a("global_store_dwordx4 v%d, %s, s[18:19] offset:%d %s"
          % (vPubO, vr(vAcc + 4 * k, 4), 256 * k, flags))

    def get_ml():
        a("global_load_dwordx2 %s, v%d, s[18:19] sc1" % (vr(vMLi, 2), vInML))

    def get_o():
        a("global_load_dwordx4 %s, v%d, s[18:19] sc1" % (vr(vX, 4), vInO))
        a("global_load_dwordx4 %s, v%d, s[18:19] offset:64 sc1" % (vr(vX + 4, 4), vInO))

    def bound():
        a("s_sub_u32 %s, %s, 1" % (sCnt, sCnt))
        a("s_cbranch_scc1 L_end")

    a("s_waitcnt vmcnt(%d)" % (ext + (C if split else 0)))
    a("s_barrier")
    if not split:
        stamp_at(3)
    a("ds_read2_b32 %s, v%d offset0:0 offset1:4" % (vr(vX, 2), vMLrd))
    a("s_waitcnt lgkmcnt(0)")
    a("v_add_f32 v%d, v%d, v%d" % (vML + 1, vX, vX + 1))
    if warm:
        a("L_hop0:")
        a("s_cbranch_execz L_back")
    for sh in (8, 4, 2, 1):
        a("v_add_f32_dpp v%d, v%d, v%d row_ror:%d %s" % (vML + 1, vML + 1, vML + 1, sh, DPPF))
    a("v_or_b32 v%d, %s, v%d" % (vML + 1, sSlow, vML + 1))
    a("v_min_u32 v%d, -2, v%d" % (vML + 1, vML + 1))
    if split:
        a("s_waitcnt vmcnt(%d)" % ext)
        a("s_barrier")
        stamp_at(3)
    pub_ml("")
    get_ml()
    for r in range(8):
        a("v_mov_b32 v%d, -1" % (vX + r))
    if timed:
        a("s_waitcnt lgkmcnt(0)")
    a("s_cmp_lg_u32 %s, 0" % sSlow)
    a("s_barrier")
    for k in range(2):
        for c in range(C):
            a("ds_read_b128 %s, v%d offset:%d"
              % (vr(vBuf + 16 * k + 4 * c, 4), vOrd1 if k else vOrd0, c * 2048))
    for k in range(2):
        for c in range(1, C):
            a("s_waitcnt lgkmcnt(%d)" % (7 - 4 * k - c))
            for r in (0, 2):
                prev = vBuf + 16 * k + r if c == 1 else vAcc + 4 * k + r
                a("v_pk_add_f32 %s, %s, %s"
                  % (vr(vAcc + 4 * k + r, 2), vr(prev, 2), vr(vBuf + 16 * k + 4 * c + r, 2)))
        for r in range(4):
            a("v_min_u32 v%d, -2, v%d" % (vAcc + 4 * k + r, vAcc + 4 * k + r))
        pub_o(k, "")
    stamp_at(4)
    a("s_cbranch_scc1 L_slow")
    a("s_waitcnt vmcnt(2)")
    a("L_ml:")
    a("v_max_u32 v%d, v%d, v%d" % (vA, vMLi, vMLi + 1))
    a("v_cmp_eq_u32 vcc, -1, v%d" % vA)
    a("s_nop 1")
    a("s_and_b64 exec, exec, vcc")
    a("s_cbranch_scc1 L_ml_again")
    a("s_mov_b64 exec, -1")
    get_o()
    a("v_max_f32_dpp v%d, v%d, v%d row_ror:4 %s" % (vA, vMLi, vMLi, DPPF))
    a("v_cmp_gt_i32 s[10:11], 0, v%d" % (vMLi + 1))
    if warm:
        a("L_hop1:")
        a("s_cbranch_execz L_back")
    a("v_max_f32_dpp v%d, v%d, v%d row_ror:8 %s" % (vA, vA, vA, DPPF))
    rows_reduce("v_max_f32", vA, vB)
    a("v_sub_f32 v%d, v%d, v%d" % (vF, vMLi, vA))
    a("v_mul_f32 v%d, %s, v%d" % (vF, sC, vF))
    a("v_exp_f32 v%d, v%d" % (vF, vF))
    if rounds >= 3:
        get_o()
    a("v_mul_f32 v%d, v%d, abs(v%d)" % (vA, vF, vMLi + 1))
    for sh in (4, 8):
        a("v_add_f32_dpp v%d, v%d, v%d row_ror:%d %s" % (vA, vA, vA, sh, DPPF))
    rows_reduce("v_add_f32", vA, vB)
    a("v_rcp_f32 v%d, v%d" % (vA, vA))
    a("v_mul_f32 v%d, v%d, v%d" % (vF, vF, vA))
    if rounds == 1:
        a("s_branch L_o_in")
    a("L_o:")
    get_o()
    bound()
    a("L_o_in:")
    a("s_waitcnt vmcnt(%d)" % (2 * rounds - 2))
    a("v_max3_u32 v%d, v%d, v%d, v%d" % (vA, vX, vX + 1, vX + 2))
    a("v_max3_u32 v%d, v%d, v%d, v%d" % (vB, vX + 3, vX + 4, vX + 5))
    a("v_max3_u32 v%d, v%d, v%d, v%d" % (vA, vA, vX + 6, vX + 7))
    a("v_max_u32 v%d, v%d, v%d" % (vA, vA, vB))
    a("v_cmp_eq_u32 vcc, -1, v%d" % vA)
    a("s_nop 1")
    a("s_and_b64 exec, exec, vcc")
    a("s_cbranch_scc1 L_o")
    a("s_mov_b64 exec, -1")
    stamp_at(5)
    vY = vBuf
    for r in range(0, 8, 2):
        a("v_pk_mul_f32 %s, %s, %s op_sel:[0,1] op_sel_hi:[1,1]"
          % (vr(vY + r, 2), vr(vX + r, 2), vr(vF - 1, 2)))
    for e in range(4):
        a("v_permlane32_swap_b32 v%d, v%d" % (vY + e, vY + 4 + e))
    for e in (0, 2):
        a("v_pk_add_f32 %s, %s, %s" % (vr(vY + e, 2), vr(vY + e, 2), vr(vY + 4 + e, 2)))
    for e in range(2):
        a("v_permlane16_swap_b32 v%d, v%d" % (vY + e, vY + 2 + e))
    a("v_pk_add_f32 %s, %s, %s" % (vr(vY, 2), vr(vY, 2), vr(vY + 2, 2)))
    a("s_cmp_lg_u64 s[10:11], 0")
    for sh in (4, 8):
        for x in (vY, vY + 1):
            a("v_add_f32_dpp v%d, v%d, v%d row_ror:%d %s" % (x, x, x, sh, DPPF))
    a("s_mov_b32 exec_lo, 0x000f000f")
    a("s_mov_b32 exec_hi, 0x000f000f")
    a("v_cvt_pk_bf16_f32 v%d, v%d, v%d" % (vY, vY, vY + 1))
    a("global_store_dword v%d, v%d, s[14:15] %s" % (vOut, vY, opol))
    if wb:
        a("buffer_wbl2 sc1")
    a("s_cbranch_scc1 L_help")
    a("L_fin:")
    if timed:
        a("s_waitcnt vmcnt(0)")
        stamp_at(6)
        a("s_waitcnt lgkmcnt(0)")
    if stamp:
        a("s_mov_b64 exec, -1")
        a("s_getreg_b32 s54, hwreg(HW_REG_XCC_ID)")
        a("s_or_b32 s54, s54, %s" % sSlow)
        a("s_lshl_b32 %s, s2, 6" % sT1)
        a("s_add_u32 %s, %s, 0x200000" % (sT1, sT1))
        a("v_mov_b32 v%d, %s" % (vA, sT1))
        for i in range(8):
            a("v_mov_b32 v%d, s%d" % (vBuf + i, 40 + 2 * i))
        a("s_lshl_b32 %s, s2, 8" % sT1)
        a("s_add_u32 %s, %s, 0x300000" % (sT1, sT1))
        a("v_lshl_add_u32 v%d, v0, 2, %s" % (vB, sT1))
        if stamp == 1:
            a("global_store_dword v%d, v%d, s[18:19]" % (vB, vSt))
        a("s_mov_b64 exec, 1")
        a("global_store_dwordx4 v%d, %s, s[18:19]" % (vA, vr(vBuf, 4)))
        a("global_store_dwordx4 v%d, %s, s[18:19] offset:16" % (vA, vr(vBuf + 4, 4)))
    if diagpad:
        if diagx >= 0:
            lo, hi = diagx // 10, diagx % 10
            a("s_sub_u32 s56, s%d, s%d" % (40 + 2 * hi, 40 + 2 * lo))
            a("s_mul_i32 s56, s56, 10")
            a("s_add_u32 s56, s56, %d" % (diagpad * 100))
        else:
            a("s_mov_b32 s56, %d" % (diagpad * 100))
        if diagg:
            lo, hi = int(diagg[1]), int(diagg[2])
            a("s_mov_b64 exec, 1")
            a("v_mov_b32 v%d, 120" % vA)
            a("v_mov_b32 v%d, s%d" % (vBuf, 40 + 2 * hi))
            a("v_mov_b32 v%d, s%d" % (vBuf + 1, 40 + 2 * lo))
            if diagg[0] == "m":
                a("v_not_b32 v%d, v%d" % (vBuf + 1, vBuf + 1))
            a("global_atomic_umax v%d, v%d, s[16:17]" % (vA, vBuf))
            a("global_atomic_umax v%d, v%d, s[16:17] offset:4" % (vA, vBuf + 1))
        if padwg >= 0:
            a("s_cmp_lg_u32 s2, %d" % padwg)
            a("s_cbranch_scc1 L_end")
        a("L_pad:")
        a("s_memrealtime s[58:59]")
        a("s_waitcnt lgkmcnt(0)")
        a("s_sub_u32 s58, s58, s40")
        a("s_cmp_lt_u32 s58, s56")
        a("s_cbranch_scc1 L_pad")
        if diagg:
            a("global_load_dwordx2 %s, v%d, s[16:17] sc1" % (vr(vBuf, 2), vA))
            a("s_waitcnt vmcnt(0)")
            a("v_readfirstlane_b32 s10, v%d" % vBuf)
            a("v_readfirstlane_b32 s11, v%d" % (vBuf + 1))
            a("s_nop 3")
            if diagg[0] == "m":
                a("s_not_b32 s11, s11")
            a("s_sub_u32 s10, s10, s11")
            a("s_sub_u32 s10, s10, %d" % (diagsub * 100))
            a("s_max_i32 s10, s10, 0")
            a("s_min_u32 s10, s10, 2000")
            a("s_mul_i32 s10, s10, 10")
            a("s_add_u32 s56, s56, s10")
            a("L_pad2:")
            a("s_memrealtime s[58:59]")
            a("s_waitcnt lgkmcnt(0)")
            a("s_sub_u32 s58, s58, s40")
            a("s_cmp_lt_u32 s58, s56")
            a("s_cbranch_scc1 L_pad2")
    a("L_end:")
    a("s_endpgm")

    a("L_help:")
    a("s_cmp_lg_u32 %s, 0" % sSlow)
    a("s_cbranch_scc1 L_fin")
    a("s_mov_b64 exec, 1")
    a("v_mov_b32 v%d, 1" % vCnt)
    a("s_waitcnt vmcnt(0)")
    a("global_atomic_add v%d, v%d, s[16:17]" % (vCntA, vCnt))
    a("s_branch L_fin")

    a("L_slow:")
    pub_ml("sc1")
    pub_o(0, "sc1")
    pub_o(1, "sc1")
    a("s_mov_b64 exec, 1")
    a("v_mov_b32 v%d, 1" % vCnt)
    a("s_waitcnt vmcnt(0)")
    a("global_atomic_add v%d, v%d, s[16:17]" % (vCntA, vCnt))
    a("L_cnt:")
    bound()
    a("global_load_dword v%d, v%d, s[16:17] sc1" % (vVal, vCntA))
    a("s_waitcnt vmcnt(0)")
    a("v_readfirstlane_b32 %s, v%d" % (sT0, vVal))
    a("s_nop 1")
    a("s_cmp_ge_u32 %s, %d" % (sT0, S))
    a("s_cbranch_scc0 L_cnt")
    a("s_mov_b64 exec, -1")
    a("L_ml_again:")
    get_ml()
    bound()
    a("s_waitcnt vmcnt(0)")
    a("s_branch L_ml")

    vLane, vRd, vMX, vMY, vAl, vNmc, vA, vB, vWO0, vWO1, vWL = range(3, 14)
    vM, vL = 14, 15
    vQ, vO, vT, vXY, vD, vK = 16, 20, 28, 30, 40, 56
    vRdK, vOwn, vVt, vS = 38, 39, 72, 76
    vSt, vWM = 1, vAl
    vCl0, vCl1 = vXY, vXY + 1
    sI, sOwn = "s21", "s36"

    def fold(part, t, da, db):
        src, own, ror, bank = ((da + 1, da, 12, 1), (da + 3, da + 2, 12, 4),
                               (db, db + 1, 4, 2), (db + 2, db + 3, 4, 8))[part]
        a("v_add_f32_dpp v%d, v%d, v%d row_ror:%d row_mask:0xf bank_mask:0x%x"
          % (t, src, own, ror, bank))

    def fold_c(t):
        a("v_add_f32_dpp v%d, v%d, v%d row_ror:8 %s" % (t, t, t, DPPF))

    def reset():
        if nomsg:
            a("global_store_dwordx4 v%d, %s, s[18:19]" % (vCl1, vr(vO, 4)))
            return
        a("global_store_dwordx4 v%d, %s, s[18:19]" % (vCl0, vr(vO, 4)))
        a("global_store_dwordx4 v%d, %s, s[18:19] offset:1024" % (vCl0, vr(vO, 4)))
        a("global_store_dwordx4 v%d, %s, s[18:19]" % (vCl1, vr(vO, 4)))

    a("L_cons:")
    a("s_load_dwordx2 s[4:5], s[0:1], 0")
    a("s_load_dwordx4 s[8:11], s[0:1], 24")
    a("v_and_b32 v%d, 63, v0" % vLane)
    a("s_lshr_b32 %s, %s, 6" % (sW, sW))
    a("s_sub_u32 %s, %s, 1" % (sW, sW))
    a("s_lshl_b32 %s, %s, 4" % (sIdx, sP))
    a("s_add_u32 %s, %s, %s" % (sIdx, sIdx, sS))
    a("s_mov_b32 %s, %s" % (sC, f32(CS)))
    a("v_lshrrev_b32 v%d, 4, v%d" % (vA, vLane))
    a("v_lshlrev_b32 v%d, 6, v%d" % (vA, vA))
    a("v_and_b32 v%d, 3, v%d" % (vB, vLane))
    a("v_bfe_u32 v%d, v%d, 2, 2" % (vAl, vLane))
    a("v_lshl_add_u32 v%d, v%d, 4, v%d" % (vNmc, vB, vA))
    a("v_lshl_add_u32 v%d, v%d, 8, v%d" % (vRdK, vAl, vNmc))
    a("v_lshl_add_u32 v%d, v%d, 8, v%d" % (vA, vB, vA))
    a("v_lshl_add_u32 v%d, v%d, 4, v%d" % (vA, vAl, vA))
    a("v_lshlrev_b32 v%d, 4, v%d" % (vRd, vLane))
    a("s_lshl_b32 %s, %s, 10" % (sT0, sP))
    a("s_lshl_b32 %s, %s, 8" % (sT1, sP))
    a("v_add_u32 v%d, %s, v%d" % (vA, sT0, vA))
    a("v_add_u32 v%d, %s, v%d" % (vNmc, sT1, vNmc))
    a("v_and_b32 v%d, 0xf0, v%d" % (vB, vRd))
    a("v_add_u32 v%d, %s, v%d" % (vB, sT1, vB))
    a("s_lshl_b32 %s, %s, 11" % (sT0, sIdx))
    a("v_add_u32 v%d, %s, v%d" % (vCl0, sT0, vRd))
    a("s_lshl_b32 %s, %s, 7" % (sT0, sIdx))
    a("s_add_u32 %s, %s, %d" % (sT0, sT0, WS_ML))
    a("v_and_b32 v%d, 0x70, v%d" % (vCl1, vRd))
    a("v_add_u32 v%d, %s, v%d" % (vCl1, sT0, vCl1))
    for r in range(4):
        a("v_mov_b32 v%d, -1" % (vO + r))
        a("v_mov_b32 v%d, 0" % (vVt + r))
    a("s_waitcnt lgkmcnt(0)")
    if ctouch:
        a("v_mov_b32 v%d, 0" % vM)
        a("global_load_dword v%d, v%d, s[16:17] offset:%d" % (vL, vM, DBG_PROG))
    if not skip & 1:
        a("global_load_dwordx4 %s, v%d, s[4:5]" % (vr(vQ, 4), vA))
    a("s_or_b32 %s, %s, %s" % (sOwn, sS, sW))
    a("s_cbranch_scc1 L_notree")
    a("global_load_dwordx4 %s, v%d, s[8:9]" % (vr(vK, 4), vNmc))
    a("global_load_dwordx4 %s, v%d, s[10:11]" % (vr(vVt, 4), vB))
    a("s_load_dword %s, s[12:13], 0" % sMask)
    a("L_notree:")
    a("s_cmp_lg_u32 %s, %d" % (sW, C - 1))
    a("s_cbranch_scc1 L_noclear")
    if late:
        a("; reset this workgroup's messages; acknowledged before barrier %d" % READY)
        reset()
    else:
        a("global_load_dwordx4 %s, v%d, s[18:19]" % (vr(vK + 4, 4), vCl0))
        a("global_load_dwordx4 %s, v%d, s[18:19] offset:1024" % (vr(vK + 8, 4), vCl0))
        a("global_load_dwordx4 %s, v%d, s[18:19]" % (vr(vK + 12, 4), vCl1))
    a("L_noclear:")
    if warm:
        a("; touch code that first runs late, one region per wave")
        a("s_mov_b64 exec, 0")
        for c in range(C - 1):
            a("s_cmp_eq_u32 %s, %d" % (sW, c))
            a("s_cbranch_scc1 L_hop%d" % c)
        a("L_back:")
        a("s_mov_b64 exec, -1")
    a("s_lshl_b32 %s, %s, 10" % (sT0, sW))
    a("v_and_b32 v%d, 32, v%d" % (vA, vLane))
    a("v_lshlrev_b32 v%d, 2, v%d" % (vA, vA))
    a("v_xor_b32 v%d, v%d, v%d" % (vRd, vRd, vA))
    a("v_add_u32 v%d, %s, v%d" % (vRd, sT0, vRd))
    a("v_and_b32 v%d, 8, v%d" % (vA, vLane))
    a("v_lshlrev_b32 v%d, 4, v%d" % (vA, vA))
    a("v_xor_b32 v%d, v%d, v%d" % (vRdK, vRdK, vA))
    a("v_add_u32 v%d, %s, v%d" % (vRdK, sT0, vRdK))
    a("s_lshl_b32 %s, %s, 8" % (sT0, sW))
    a("s_add_u32 %s, %s, %d" % (sT0, sT0, ldsL))
    a("v_lshl_add_u32 v%d, v%d, 2, %s" % (vWL, vLane, sT0))
    a("v_and_b32 v%d, 3, v%d" % (vWM, vLane))
    a("v_lshlrev_b32 v%d, 4, v%d" % (vWM, vWM))
    a("v_add_u32 v%d, %d, v%d" % (vWM, ldsM, vWM))
    a("v_bfe_u32 v%d, v%d, 4, 1" % (vA, vLane))
    a("v_bfe_u32 v%d, v%d, 5, 1" % (vB, vLane))
    a("v_lshl_add_u32 v%d, v%d, 1, v%d" % (vA, vA, vB))
    a("v_and_b32 v%d, 15, v%d" % (vB, vLane))
    a("v_lshl_add_u32 v%d, v%d, 2, v%d" % (vA, vB, vA))
    a("s_lshl_b32 %s, %s, 11" % (sT0, sW))
    a("s_add_u32 %s, %s, %d" % (sT0, sT0, ldsO))
    a("v_lshl_add_u32 v%d, v%d, 2, %s" % (vWO0, vA, sT0))
    a("v_xor_b32 v%d, 0x80, v%d" % (vWO1, vWO0))
    a("v_and_b32 v%d, 8, v%d" % (vA, vLane))
    a("v_lshlrev_b32 v%d, 1, v%d" % (vA, vA))
    a("v_mov_b32 v%d, 0xffff" % vB)
    a("v_lshlrev_b32 v%d, v%d, v%d" % (vA, vA, vB))
    a("v_bfe_i32 v%d, v%d, 2, 1" % (vB, vLane))
    a("v_and_b32 v%d, v%d, v%d" % (vMY, vA, vB))
    a("v_xor_b32 v%d, v%d, v%d" % (vMX, vA, vMY))
    a("v_mov_b32 v%d, 0xff800000" % vM)
    a("v_mov_b32 v%d, v%d" % (vSt, vM))
    a("s_mov_b32 %s, 0" % sI)
    a("s_barrier")
    if not late:
        a("s_cmp_lg_u32 %s, %d" % (sW, C - 1))
        a("s_waitcnt vmcnt(0)")
        a("s_cbranch_scc1 L_noreset")
        reset()
        a("L_noreset:")
    a("s_cmp_lg_u32 %s, 0" % sOwn)
    a("s_waitcnt %slgkmcnt(0)" % ("vmcnt(0) " if late else ""))
    a("s_cbranch_scc1 L_k_in")
    a("v_mfma_f32_16x16x32_bf16 %s, %s, %s, 0" % (vr(vD, 4), vr(vK, 4), vr(vQ, 4)))
    a("s_lshr_b32 %s, %s, 3" % (sT0, sP))
    a("s_lshl_b32 %s, %s, 4" % (sT0, sT0))
    a("s_lshr_b32 %s, %s, %s" % (sMask, sMask, sT0))
    a("s_lshl_b32 %s, %s, 16" % (sMask, sMask))
    a("v_mov_b32 v%d, %s" % (vA, sMask))
    a("v_sub_f32 v%d, 1.0, v%d" % (vA, vA))
    a("v_mul_f32 v%d, %s, v%d" % (vA, f32(-1e9 * 128 ** 0.5), vA))
    for part in range(4):
        fold(part, vM, vD, vD)
    fold_c(vM)
    a("v_add_f32 v%d, v%d, v%d" % (vM, vM, vA))
    a("s_mov_b64 exec, 0xffff")
    a("v_mov_b32 v%d, v%d" % (vSt, vM))
    a("s_mov_b64 exec, -1")
    a("s_branch L_k_in")

    NT = G // 2

    def advance(rd):
        a("v_add_u32 v%d, %d, v%d" % (rd, NS * 1024, rd))
        a("v_and_b32 v%d, %d, v%d" % (rd, RING - 1, rd))

    a("L_k:")
    l0 = a.mark()
    if not late:
        a("s_waitcnt vmcnt(0)")
    a("s_barrier")
    a("L_k_in:")
    for j in range(G):
        a("ds_read_b128 %s, v%d offset:%d" % (vr(vK + 4 * j, 4), vRdK, j * 4096))
    advance(vRdK)
    for j in range(G):
        a("s_waitcnt lgkmcnt(%d)" % (G - 1 - j))
        a("v_mfma_f32_16x16x32_bf16 %s, %s, %s, 0"
          % (vr(vD + 4 * j, 4), vr(vK + 4 * j, 4), vr(vQ, 4)))
    for part in range(4):
        for i in range(NT):
            fold(part, vT + i, vD + 8 * i, vD + 8 * i + 4)
    for i in range(NT):
        fold_c(vT + i)
    a("s_set_gpr_idx_on %s, gpr_idx(DST)" % sI)
    for i in range(NT):
        a("v_mov_b32 v%d, v%d" % (vS + i, vT + i))
    a("s_set_gpr_idx_off")
    a("v_max3_f32 v%d, v%d, v%d, v%d" % (vM, vM, vT, vT + NT - 1))
    a("s_add_u32 %s, %s, %d" % (sI, sI, NT))
    a("s_cmp_lt_u32 %s, 64" % sI)
    a("s_cbranch_scc1 L_k")
    a.loop_check(l0)

    def prep(lim=64):
        a("s_set_gpr_idx_on %s, gpr_idx(SRC0)" % sI)
        for i in range(NT):
            a("v_mov_b32 v%d, v%d" % (vT + i, vS + i))
        a("s_set_gpr_idx_off")
        for i in range(NT):
            a("v_fma_f32 v%d, v%d, %s, v%d" % (vT + i, vT + i, sC, vNmc))
        for i in range(NT):
            a("v_exp_f32 v%d, v%d" % (vT + i, vT + i))
        a("s_add_u32 %s, %s, %d" % (sI, sI, NT))
        a("s_cmp_lt_u32 %s, %d" % (sI, lim))
        for i in range(NT):
            a("v_add_f32 v%d, v%d, v%d" % (vL, vL, vT + i))
        for i in range(NT):
            a("v_cvt_pk_bf16_f32 v%d, v%d, v%d" % (vT + i, vT + i, vT + i))
        a("ds_write_b32 v%d, v%d" % (vWL, vL))
        for i in range(NT):
            x, p = vXY + 4 * i, vT + i
            a("v_and_b32 v%d, v%d, v%d" % (x, p, vMX))
            a("v_and_b32 v%d, v%d, v%d" % (x + 3, p, vMY))
            a("v_and_b32_dpp v%d, v%d, v%d row_ror:4 %s" % (x + 1, p, vMY, DPPF))
            a("v_and_b32_dpp v%d, v%d, v%d row_ror:4 %s" % (x + 2, p, vMX, DPPF))
        a("s_waitcnt lgkmcnt(0)")

    a("v_max_f32_dpp v%d, v%d, v%d row_ror:4 %s" % (vM, vM, vM, DPPF))
    rows_reduce("v_max_f32", vM, vB)
    a("v_lshl_add_u32 v%d, %s, 2, v%d" % (vA, sW, vWM))
    a("ds_write_b32 v%d, v%d" % (vA, vM))
    a("s_mov_b32 %s, 0" % sI)
    a("s_waitcnt lgkmcnt(0)")
    a("s_barrier")
    a("ds_read_b128 %s, v%d" % (vr(vD, 4), vWM))
    a("s_waitcnt lgkmcnt(0)")
    a("v_max3_f32 v%d, v%d, v%d, v%d" % (vM, vD, vD + 1, vD + 2))
    a("v_max_f32 v%d, v%d, v%d" % (vM, vM, vD + 3))
    a("v_mul_f32 v%d, %s, v%d" % (vNmc, f32(-CS), vM))
    a("v_fma_f32 v%d, v%d, %s, v%d" % (vA, vSt, sC, vNmc))
    a("v_exp_f32 v%d, v%d" % (vA, vA))
    a("v_cmp_ne_u32 vcc, 0, v%d" % vMX)
    a("v_cvt_pk_bf16_f32 v%d, v%d, v%d" % (vB, vA, vA))
    a("v_cndmask_b32 v%d, 0, v%d, vcc" % (vL, vA))
    a("v_and_b32 v%d, v%d, v%d" % (vXY, vB, vMX))
    a("v_and_b32 v%d, v%d, v%d" % (vXY + 1, vB, vMY))
    for k in range(2):
        a("v_mfma_f32_16x16x16_bf16 %s, %s, %s, 0"
          % (vr(vO + 4 * k, 4), vr(vXY, 2), vr(vVt + 2 * k, 2)))
    prep()
    a("s_branch L_v_in")
    if warm:
        a("L_hop2:")
        a("s_branch L_back")

    def pv(js, adv):
        for j in js:
            a("ds_read_b128 %s, v%d offset:%d" % (vr(vK + 4 * j, 4), vRd, j * 4096))
        if adv:
            advance(vRd)
        for j in js:
            a("s_waitcnt lgkmcnt(%d)" % (js[-1] - j))
            for k in range(2):
                a("v_mfma_f32_16x16x16_bf16 %s, %s, %s, %s"
                  % (vr(vO + 4 * k, 4), vr(vXY + 2 * j, 2), vr(vK + 4 * j + 2 * k, 2),
                     vr(vO + 4 * k, 4)))

    a("L_v:")
    l0 = a.mark()
    prep(64 - NT if split else 64)
    a("s_barrier")
    a("L_v_in:")
    pv(list(range(G)), True)
    a("s_cbranch_scc1 L_v")
    a.loop_check(l0)
    if split:
        prep()
        a("s_barrier")
        pv(list(range(G - 1)), False)
        a("s_barrier")
        pv([G - 1], False)
    for r in range(8):
        a("ds_write_b32 v%d, v%d offset:%d"
          % (vWO1 if r >= 4 else vWO0, vO + r, (r % 4) * 512 + (r // 4) * 256))
    a("s_waitcnt lgkmcnt(0)")
    a("s_barrier")
    a("L_last:")
    a("s_endpgm")

    nvg = max(a.max_v(), vS + 64, vpad)
    acc = (nvg + 3) // 4 * 4
    out = HEADER
    out += "; @launch grid=(%d,1,1) block=(%d,1,1) lds=%d\n" % (NWG, 64 * (C + 1), LDS)
    out += '.amdgcn_target "amdgcn-amd-amdhsa--gfx950"\n.text\n'
    out += ".globl %s_kernel\n.p2align 8\n.type %s_kernel,@function\n" % (NAME, NAME)
    out += a.text()
    out += """.section .rodata,"a"
.p2align 6
.amdhsa_kernel %s_kernel
  .amdhsa_next_free_vgpr %d
  .amdhsa_next_free_sgpr 64
  .amdhsa_accum_offset %d
  .amdhsa_group_segment_fixed_size 0
  .amdhsa_kernarg_size 72
  .amdhsa_user_sgpr_count 2
  .amdhsa_user_sgpr_kernarg_segment_ptr 1
  .amdhsa_system_sgpr_workgroup_id_x 1
.end_amdhsa_kernel
""" % (NAME, nvg, acc)
    return out


if __name__ == "__main__":
    kw = {}
    for arg in sys.argv[2:]:
        k, v = arg.split("=")
        kw[k] = int(v) if v.lstrip("-").isdigit() else v
    open(sys.argv[1], "w").write(gen(**kw))
```

```python
import math
import struct
import sys

from asmlib import Asm

NAME = "standalone__tree_speculative_verify_tree_attention_over_candidate_token_tree__decode"
HEADER = open("cdna_kernels/%s.s.ref" % NAME).read().split("; Override launch")[0]
DPPF = "row_mask:0xf bank_mask:0xf"

DOC = """\
"""


def f32(x):
    return "0x%08x" % struct.unpack("<I", struct.pack("<f", x))[0]


def vr(a, n):
    return "v[%d:%d]" % (a, a + n - 1)


def gen(depths=(23, 22, 21, 20, 19, 18, 17, 16), D0=20, rnd=5, bias=2, gm=(5, 21, 37, 51), gg=2,
        sbits=(14, 15, 16, 18), tbits=(21, 19, 20, 22, 17), xs=((1, 12), (2, 13)), jb=(12, 13),
        rdpos=14, fixpos=1, smooth=0, pad=0, flag=0, ctr=0, rounds=3, pre=1, warm=0, stamp=0, diagpad=0, diagg=None, diagsub=0, force=0):
    N, C, G, S, T = 16, 4, 4, 16, 32
    NWG = 16 * S
    RING = 65536
    if isinstance(depths, str):
        depths = tuple(int(x) for x in depths.split("."))
    if isinstance(gm, str):
        gm = tuple(int(x) for x in gm.split("."))
    assert len(depths) == 8 and max(depths) <= 32 and N <= D0 <= 32
    assert sorted(list(jb) + list(sbits) + list(tbits)) == list(range(12, 23))
    assert all(b >= 12 and b not in sbits for _, b in xs)
    CS = 128 ** -0.5 * math.log2(math.e)
    timed = stamp or diagpad
    a = Asm()

    ldsO = RING
    ldsL = ldsO + C * 2048
    ldsM = ldsL + C * 256
    ldsC = ldsM + 64
    LDS = ldsC + 16
    WS_ML = 0x100000
    DBG_RANK, DBG_PROG = 64, 128

    sW, sP, sS, sCnt, sC, sT0, sT1, sIdx = "s3", "s6", "s7", "s22", "s23", "s32", "s33", "s34"

    def stamp_at(i):
        if timed:
            a("s_memrealtime s[%d:%d]" % (40 + 2 * i, 41 + 2 * i))

    def rows_reduce(op, x, tmp):
        for swap in ("v_permlane16_swap_b32", "v_permlane32_swap_b32"):
            a("v_mov_b32 v%d, v%d" % (tmp, x))
            a("%s v%d, v%d" % (swap, x, tmp))
            a("%s v%d, v%d, v%d" % (op, x, x, tmp))

    def runs(bits):
        i = 0
        while i < len(bits):
            n = 1
            while (i + n < len(bits) and bits[i + n][0] == bits[i][0] + n
                   and bits[i + n][1] == bits[i][1] + n):
                n += 1
            yield bits[i][0], n, bits[i][1]
            i += n

    def pair_index():
        a("s_lshl_b32 %s, %s, 4" % (sIdx, sP))
        a("s_add_u32 %s, %s, %s" % (sIdx, sIdx, sS))

    a("%s_kernel:" % NAME)
    a("s_load_dwordx2 s[24:25], s[0:1], 8          ; k_cache")
    a("s_load_dwordx2 s[28:29], s[0:1], 16         ; v_cache")
    a("s_load_dwordx8 s[12:19], s[0:1], 40")
    stamp_at(0)
    a("v_readfirstlane_b32 %s, v0" % sW)
    a("s_cmp_ge_u32 s2, %d" % NWG)
    a("s_cbranch_scc1 L_end")
    a("s_and_b32 %s, s2, 15" % sP)
    a("s_lshr_b32 %s, s2, 4" % sS)
    a("s_cmp_eq_u32 %s, 0" % sW)
    a("s_cbranch_scc1 L_loader")
    if pre:
        a("; one wave of the first workgroups pulls the code into L2")
        a("s_sub_u32 %s, %s, 64" % (sT0, sW))
        a("s_or_b32 %s, %s, %s" % (sT0, sT0, sS))
        a("s_cbranch_scc1 L_nopre")
        a("s_getpc_b64 s[36:37]")
        a("L_pc:")
        a("v_lshlrev_b32 v1, 7, v0")
        a("v_and_b32 v1, 0x1fff, v1")
        a("v_min_u32 v1, L_last-L_pc, v1")
        a("global_load_dword v38, v1, s[36:37]")
        a("L_nopre:")
    a("s_cmp_eq_u32 %s, %d" % (sW, 64 * (C + 1)))
    a("s_cbranch_scc1 L_ctrl")
    a("s_branch L_cons")

    vOff, vTab, vA, vB, vLvA, vLv, vOrd0, vOrd1, vPubO, vCntA = range(1, 11)
    vAcc, vBuf = 12, 20
    sK, sTK, sU, sLv = "s20", "s38", "s37", "s5"
    a("L_loader:")
    a("s_setprio 3")
    a("s_lshl_b32 %s, %s, 23" % (sTK, sP))
    for src, n, dst in runs(list(enumerate(sbits)) + list(xs)):
        a("s_bfe_u32 %s, %s, 0x%x" % (sT0, sS, n << 16 | src))
        a("s_lshl_b32 %s, %s, %d" % (sT0, sT0, dst))
        a("s_xor_b32 %s, %s, %s" % (sTK, sTK, sT0))
    a("s_mov_b32 %s, %s" % (sK, sTK))
    a("s_mov_b32 s26, 0x8000000")
    a("s_mov_b32 s27, 0x00020000")
    a("s_mov_b32 m0, 0")
    a("v_lshlrev_b32 v%d, 4, v0" % vA)
    a("v_and_b32 v%d, 32, v0" % vB)
    a("v_lshlrev_b32 v%d, 2, v%d" % (vB, vB))
    a("v_xor_b32 v%d, v%d, v%d" % (vOff, vA, vB))
    a("v_mov_b32 v%d, %s" % (vTab, sTK))
    for src, n, dst in runs(list(enumerate(tbits))):
        a("v_bfe_u32 v%d, v0, %d, %d" % (vA, src, n))
        a("v_lshlrev_b32 v%d, %d, v%d" % (vA, dst, vA))
        a("v_xor_b32 v%d, v%d, v%d" % (vTab, vTab, vA))

    def load(j):
        a("buffer_load_dwordx4 v%d, s[24:27], %s offen offset:%d nt lds" % (vOff, sK, (j % 4) * 1024))
        if j % 4 == 3:
            a("s_add_u32 m0, m0, 4096")
            if j + 1 < N:
                q = (j + 1) // 4
                a("s_xor_b32 %s, %s, %d" % (sK, sTK, (q & 1) << jb[0] | (q >> 1) << jb[1]))

    a("s_waitcnt lgkmcnt(0)")
    for j in range(N):
        load(j)
    a("s_xor_b32 %s, %s, %d" % (sTK, sTK, 1 << tbits[0]))
    a("s_mov_b32 %s, %s" % (sK, sTK))
    for j in range(D0 - N):
        load(j)
    pair_index()
    a("v_mov_b32 v%d, %d" % (vLvA, ldsC))
    a("v_mov_b32 v%d, 4" % vLv)
    a("s_lshl_b32 %s, %s, 2" % (sT0, sP))
    a("v_mov_b32 v%d, %s" % (vCntA, sT0))
    a("v_lshrrev_b32 v%d, 4, v0" % vA)
    a("v_and_b32 v%d, 15, v0" % vB)
    a("v_and_b32 v%d, 1, v0" % vOrd0)
    a("v_mul_u32_u24 v%d, 24, v%d" % (vOrd0, vOrd0))
    a("v_bfe_u32 v%d, v0, 1, 3" % vOrd1)
    a("v_add_u32 v%d, v%d, v%d" % (vOrd0, vOrd0, vOrd1))
    a("v_lshl_add_u32 v%d, v%d, 5, v%d" % (vOrd0, vA, vOrd0))
    a("v_lshlrev_b32 v%d, 4, v%d" % (vOrd0, vOrd0))
    a("v_add_u32 v%d, %d, v%d" % (vOrd0, ldsO, vOrd0))
    a("v_xor_b32 v%d, 0x80, v%d" % (vOrd1, vOrd0))
    a("s_lshl_b32 %s, %s, 11" % (sT0, sIdx))
    a("v_lshl_add_u32 v%d, v%d, 5, v%d" % (vPubO, vA, vB))
    a("v_lshl_add_u32 v%d, v%d, 4, %s" % (vPubO, vPubO, sT0))
    a("s_mov_b32 %s, 2" % sU)
    if timed:
        a("v_mov_b32 v%d, s40" % vA)
        a("ds_write_b32 v%d, v%d offset:8" % (vLvA, vA))
    for j in range(D0 - N, N):
        a("s_waitcnt vmcnt(%d)" % (D0 - 1))
        load(j)

    a("L_next:")
    a("v_readlane_b32 %s, v%d, %s" % (sTK, vTab, sU))
    a("s_waitcnt lgkmcnt(0)")
    a("v_readfirstlane_b32 %s, v%d" % (sLv, vLv))
    a("s_and_b32 m0, m0, %d" % (RING - 1))
    a("s_cmp_eq_u32 %s, %d" % (sU, T))
    a("s_cselect_b64 s[24:25], s[28:29], s[24:25]")
    a("s_add_u32 %s, %s, 1" % (sU, sU))
    a("s_mov_b32 %s, %s" % (sK, sTK))

    def block(lv):
        d = depths[lv]
        a("; %d loads in flight; piece u-2 has landed at the barrier" % d)
        for j in range(N):
            a("s_waitcnt vmcnt(%d)" % (d - 1))
            load(j)
            if j == max(0, (max(depths) if fixpos else d) - N - 1):
                a("s_barrier")
            if j == rdpos:
                a("ds_read_b32 v%d, v%d" % (vLv, vLvA))
        a("s_cmp_lt_u32 %s, %d" % (sU, 2 * T))
        a("s_cbranch_scc1 L_next")
        if lv != 7:
            a("s_branch L_drain")
            if warm == 1 and lv % 3 == 0:
                a("L_hop%d:" % (lv // 3))
                a("s_branch L_back")
            if warm == 2 and lv % 2 == 0:
                a("L_hop%s:" % "0125"[lv // 2])
                a("s_branch L_back")

    def tree(lo, bit):
        if bit < 0:
            block(lo)
            return
        a("s_bitcmp1_b32 %s, %d" % (sLv, bit))
        a("s_cbranch_scc1 L_lv%d" % (lo + (1 << bit)))
        tree(lo, bit - 1)
        a("L_lv%d:" % (lo + (1 << bit)))
        tree(lo + (1 << bit), bit - 1)

    tree(0, 2)
    a("L_drain:")
    a("s_waitcnt vmcnt(%d)" % N)
    a("s_barrier")
    a("s_waitcnt vmcnt(%d)" % C)
    a("s_barrier")
    a("ds_read_b32 v%d, v%d offset:4" % (vLv, vLvA))
    a("s_waitcnt vmcnt(0)")
    a("s_barrier")
    a("s_waitcnt lgkmcnt(0)")
    a("v_readfirstlane_b32 %s, v%d" % (sLv, vLv))
    a("s_nop 1")
    a("s_cmp_lg_u32 %s, 0" % sLv)
    a("s_barrier")
    for k in range(2):
        for c in range(C):
            a("ds_read_b128 %s, v%d offset:%d"
              % (vr(vBuf + 16 * k + 4 * c, 4), vOrd1 if k else vOrd0, c * 2048))

    def pub_o(k, flags):
        a("global_store_dwordx4 v%d, %s, s[18:19] offset:%d %s"
          % (vPubO, vr(vAcc + 4 * k, 4), 256 * k, flags))

    for k in range(2):
        for c in range(1, C):
            a("s_waitcnt lgkmcnt(%d)" % (7 - 4 * k - c))
            for r in (0, 2):
                prev = vBuf + 16 * k + r if c == 1 else vAcc + 4 * k + r
                a("v_pk_add_f32 %s, %s, %s"
                  % (vr(vAcc + 4 * k + r, 2), vr(prev, 2), vr(vBuf + 16 * k + 4 * c + r, 2)))
        for r in range(4):
            a("v_min_u32 v%d, -2, v%d" % (vAcc + 4 * k + r, vAcc + 4 * k + r))
        pub_o(k, "")
    a("s_cbranch_scc0 L_sent")
    pub_o(0, "sc1")
    pub_o(1, "sc1")
    a("L_sent:")
    a("s_waitcnt vmcnt(0)")
    a("L_end:")
    a("s_endpgm")

    vLane, vA, vB, vSlot, vPeerA, vPeer, vVal, vTk, vTkA, vTwo, vCA, vLrd, vMrd = range(1, 14)
    vOut, vF = 14, 15
    vML, vMLi, vX, vY = 16, 18, 20, 28
    vPubML, vInO, vInML, vCntA, vSt = 36, 37, 38, 39, 40
    sProg, sRnd, sSlow, sRep, sB = "s4", "s8", "s9", "s10", "s21"
    vPeer2 = 41
    for _ in range(pad):
        a("s_nop 0")
    a("L_ctrl:")
    a("v_and_b32 v%d, 63, v0" % vLane)
    pair_index()
    a("v_and_b32 v%d, 31, v%d" % (vPeerA, vLane))
    a("v_lshlrev_b32 v%d, 2, v%d" % (vPeerA, vPeerA))
    a("s_lshl_b32 %s, %s, 11" % (sT0, sIdx))
    a("v_lshl_add_u32 v%d, v%d, 4, %s" % (vA, vLane, sT0))
    a("s_lshl_b32 %s, %s, 7" % (sT1, sIdx))
    a("s_add_u32 %s, %s, %d" % (sT1, sT1, WS_ML))
    a("v_and_b32 v%d, 7, v%d" % (vB, vLane))
    a("v_lshl_add_u32 v%d, v%d, 4, %s" % (vB, vB, sT1))
    for r in range(10):
        a("v_mov_b32 v%d, -1" % (vMLi + r))
    a("s_waitcnt lgkmcnt(0)")
    stamp_at(1)
    a("global_load_dword v%d, v%d, s[16:17] offset:%d" % (vPeer, vPeerA, DBG_PROG))
    a("global_store_dwordx4 v%d, %s, s[18:19]" % (vA, vr(vX, 4)))
    a("global_store_dwordx4 v%d, %s, s[18:19] offset:1024" % (vA, vr(vX, 4)))
    a("global_store_dwordx4 v%d, %s, s[18:19]" % (vB, vr(vX, 4)))
    a("s_getreg_b32 %s, hwreg(HW_REG_XCC_ID, 0, 4)" % sT0)
    a("s_and_b32 %s, %s, 1" % (sRnd, sT0))
    a("s_mul_i32 %s, %s, %d" % (sRnd, sRnd, 2 * bias))
    top = 16 - ctr if flag else 7
    a("s_add_u32 %s, %s, %d" % (sRnd, sRnd, rnd - bias + top * gg // 2))
    a("s_lshl_b32 %s, %s, 3" % (sT0, sT0))
    a("s_and_b32 %s, s2, 7" % sProg)
    a("s_or_b32 %s, %s, %s" % (sProg, sProg, sT0))
    a("s_lshr_b32 %s, s2, 3" % sT0)
    a("s_lshl_b32 %s, %s, 2" % (sT0, sT0))
    a("v_mov_b32 v%d, %s" % (vSlot, sT0))
    assert all(c % 2 == 1 for c in gm)
    a("s_cmp_lt_u32 s2, 8")
    a("s_cselect_b32 %s, 0x%x, 0" % (sRep, sum(1 << (c // 2) for c in gm)))
    if flag:
        assert all(y - x >= 4 for x, y in zip(gm, gm[1:]))
        a("v_mov_b32 v%d, %d" % (vTk, top))
        a("v_mul_u32_u24 v%d, %d, v%d" % (vTkA, flag, vLane))
        a("v_add_u32 v%d, %d, v%d" % (vTkA, 0x180000, vTkA))
        a("s_mov_b32 s36, 0")
        a("s_cbranch_scc0 L_nosnap")
        a("global_load_dword v%d, v%d, s[18:19] sc1" % (vTwo, vTkA))
        a("L_nosnap:")
    else:
        a("v_mov_b32 v%d, 7" % vTk)
        a("v_mov_b32 v%d, %d" % (vTkA, DBG_RANK))
        a("v_mov_b32 v%d, 2" % vTwo)
    a("v_mov_b32 v%d, %d" % (vCA, ldsC))
    a("v_mov_b32 v%d, 4" % vF)
    a("ds_write_b32 v%d, v%d" % (vCA, vF))
    a("s_mov_b32 %s, %s" % (sC, f32(CS)))
    a("s_lshl_b32 %s, %s, 2" % (sT0, sP))
    a("v_mov_b32 v%d, %s" % (vCntA, sT0))
    a("v_lshrrev_b32 v%d, 4, v%d" % (vOut, vLane))
    a("v_and_b32 v%d, 15, v%d" % (vLrd, vLane))
    a("v_lshlrev_b32 v%d, 6, v%d" % (vLrd, vLrd))
    a("v_lshl_add_u32 v%d, v%d, 2, v%d" % (vLrd, vOut, vLrd))
    a("v_add_u32 v%d, %d, v%d" % (vLrd, ldsL, vLrd))
    a("v_lshlrev_b32 v%d, 4, v%d" % (vMrd, vOut))
    a("v_add_u32 v%d, %d, v%d" % (vMrd, ldsM, vMrd))
    a("v_lshl_add_u32 v%d, v%d, 3, %s" % (vPubML, vOut, sT1))
    a("v_lshrrev_b32 v%d, 2, v%d" % (vInML, vLane))
    a("v_and_b32 v%d, 3, v%d" % (vF, vLane))
    a("s_lshl_b32 %s, %s, 8" % (sT0, sP))
    a("s_add_u32 %s, %s, %s" % (sT0, sT0, sS))
    a("s_lshl_b32 %s, %s, 7" % (sT0, sT0))
    a("v_lshl_add_u32 v%d, v%d, 7, v%d" % (vInO, vInML, vF))
    a("v_lshl_add_u32 v%d, v%d, 4, %s" % (vInO, vInO, sT0))
    a("s_lshl_b32 %s, %s, 11" % (sT0, sP))
    a("s_lshr_b32 %s, %s, 2" % (sT1, sS))
    a("s_lshl_b32 %s, %s, 3" % (sT1, sT1))
    a("s_add_u32 %s, %s, %s" % (sT0, sT0, sT1))
    a("s_add_u32 %s, %s, %d" % (sT0, sT0, WS_ML))
    a("v_lshl_add_u32 v%d, v%d, 7, %s" % (vInML, vInML, sT0))
    a("v_lshrrev_b32 v%d, 5, v%d" % (vOut, vLane))
    a("v_lshl_add_u32 v%d, v%d, 2, v%d" % (vOut, vOut, vF))
    a("v_bfe_u32 v%d, v%d, 4, 1" % (vF, vLane))
    a("v_lshl_add_u32 v%d, v%d, 1, v%d" % (vOut, vOut, vF))
    a("s_lshl_b32 %s, %s, 6" % (sT0, sIdx))
    a("v_lshl_add_u32 v%d, v%d, 2, %s" % (vOut, vOut, sT0))
    a("s_mov_b32 %s, 0" % sB)
    if smooth:
        a("s_mov_b32 s11, 72")
    a("v_lshlrev_b32 v%d, 31, v%d" % (vPeer2, vLane))
    a("v_or_b32 v%d, 0x%x, v%d" % (vPeer2, top << 8 | 0xff, vPeer2))
    a("s_mov_b32 %s, 0x200000                ; bound on all polling rounds" % sCnt)
    a("s_waitcnt lgkmcnt(0)")
    if warm:
        a("s_mov_b64 exec, 0")
        a("s_branch L_hop4")
        a("L_back4:")
    a("s_mov_b64 exec, 1")
    a("s_barrier")
    a("s_waitcnt vmcnt(0)")
    a("s_branch L_ctl_in")

    def ctl(h):
        new, old = (vPeer, vPeer2)[h], (vPeer2, vPeer)[h]
        a("s_mov_b64 exec, 1")
        a("s_barrier")
        if h == 0:
            a("L_ctl_in:")
        if stamp and h == 1:
            a("s_memrealtime s[60:61]")
        a("s_add_u32 %s, %s, 0x10000" % (sT0, sProg))
        a("v_lshl_or_b32 v%d, v%d, 8, %s" % (vVal, vTk, sT0))
        a("global_store_dword v%d, v%d, s[16:17] offset:%d" % (vSlot, vVal, DBG_PROG))
        if h == 0 or flag:
            a("s_bitcmp1_b32 %s, %s" % (sRep, sB))
            a("s_cbranch_scc1 L_rank%d" % h)
        a("s_mov_b64 exec, -1")
        a("global_load_dword v%d, v%d, s[16:17] offset:%d nt" % (new, vPeerA, DBG_PROG))
        a("s_waitcnt vmcnt(2)")
        a("L_ranked%d:" % h)
        if flag and h == 0:
            a("s_lshl_b32 %s, %s, 1" % (sT0, sRep))
            a("s_bitcmp1_b32 %s, %s" % (sT0, sB))
            a("s_cbranch_scc1 L_count")
            a("L_counted:")
        a("v_cmp_le_i32 vcc, %s, v%d" % (sProg, old))
        a("v_readfirstlane_b32 %s, v%d" % (sT1, old))
        a("s_add_u32 %s, %s, 0x10000" % (sProg, sProg))
        a("s_nop 0")
        a("s_bcnt0_i32_b64 %s, vcc" % sT0)
        a("s_add_u32 %s, %s, %s" % (sT0, sT0, sRnd))
        a("s_bfe_u32 %s, %s, 0x50008" % (sT1, sT1))
        if gg != 2:
            a("s_mul_i32 %s, %s, %d" % (sT1, sT1, gg))
            a("s_lshr_b32 %s, %s, 1" % (sT1, sT1))
        a("s_sub_i32 %s, %s, %s" % (sT0, sT0, sT1))
        if smooth:
            a("s_lshr_b32 s11, s11, 1")
            a("s_add_i32 s11, s11, %s" % sT0)
            a("s_max_i32 s11, s11, 0")
            a("s_ashr_i32 %s, s11, 4" % sT0)
        else:
            a("s_ashr_i32 %s, %s, 3" % (sT0, sT0))
        a("v_med3_i32 v%d, %s, 0, 7" % (vA, sT0))
        a("ds_write_b32 v%d, v%d" % (vCA, vA))

    a("L_ctl:")
    l0 = a.mark()
    ctl(0)
    ctl(1)
    if stamp:
        a("s_waitcnt lgkmcnt(0)")
        a("s_sub_u32 m0, 31, %s" % sB)
        a("s_nop 0")
        a("v_writelane_b32 v%d, s60, m0" % vSt)
    a("s_add_u32 %s, %s, 1" % (sB, sB))
    a("s_cmp_lt_u32 %s, %d" % (sB, T - 1))
    a("s_cbranch_scc1 L_ctl")
    a.loop_check(l0)

    def pub_ml(flags):
        a("s_mov_b32 exec_lo, 0x00010001")
        a("s_mov_b32 exec_hi, 0x00010001")
        a("global_store_dwordx2 v%d, %s, s[18:19] %s" % (vPubML, vr(vML, 2), flags))
        a("s_mov_b64 exec, -1")

    def get_ml():
        a("global_load_dwordx2 %s, v%d, s[18:19] sc1" % (vr(vMLi, 2), vInML))

    def get_o():
        a("global_load_dwordx4 %s, v%d, s[18:19] sc1" % (vr(vX, 4), vInO))
        a("global_load_dwordx4 %s, v%d, s[18:19] offset:64 sc1" % (vr(vX + 4, 4), vInO))

    def bound():
        a("s_sub_u32 %s, %s, 1" % (sCnt, sCnt))
        a("s_cbranch_scc1 L_end")

    a("ds_read_b128 %s, v%d" % (vr(vY, 4), vMrd))
    a("s_and_b32 %s, %s, 0xff" % (sT0, sProg))
    a("v_xor_b32 v%d, %s, v%d" % (vA, sT0, vPeer))
    a("v_and_b32 v%d, 0xff, v%d" % (vB, vA))
    a("v_cmp_eq_u32 vcc, 0, v%d" % vB)
    a("s_lshr_b32 %s, %s, 3" % (sT0, sP))
    a("s_lshl_b32 %s, 0x55555555, %s" % (sT0, sT0))
    a("s_and_b32 %s, %s, vcc_lo" % (sT1, sT0))
    a("v_cmp_le_i32 vcc, 0x10000, v%d" % vA)
    a("s_nop 1")
    a("s_and_b32 %s, %s, vcc_lo" % (sT1, sT1))
    if force:
        a("s_and_b32 s11, s2, %d" % force)
        a("s_cselect_b32 %s, 0, %s" % (sT1, sT1))
    a("s_cmp_eq_u32 %s, %s" % (sT0, sT1))
    a("s_cselect_b32 %s, 0, 0x80000000" % sSlow)
    a("v_mov_b32 v%d, %s" % (vA, sSlow))
    a("ds_write_b32 v%d, v%d offset:4" % (vCA, vA))
    a("s_waitcnt lgkmcnt(0)")
    a("v_max3_f32 v%d, v%d, v%d, v%d" % (vML, vY, vY + 1, vY + 2))
    a("v_max_f32 v%d, v%d, v%d" % (vML, vML, vY + 3))
    a("v_min_u32 v%d, -2, v%d" % (vML, vML))
    a("s_barrier")
    a("global_load_dword v%d, v%d, s[18:19] sc1" % (vVal, vInML))
    a("global_load_dword v%d, v%d, s[18:19] sc1" % (vPeer, vInO))
    stamp_at(2)
    a("s_barrier")
    a("ds_read2_b32 %s, v%d offset0:0 offset1:4" % (vr(vY, 2), vLrd))
    a("s_waitcnt lgkmcnt(0)")
    a("v_add_f32 v%d, v%d, v%d" % (vML + 1, vY, vY + 1))
    for sh in (8, 4, 2, 1):
        a("v_add_f32_dpp v%d, v%d, v%d row_ror:%d %s" % (vML + 1, vML + 1, vML + 1, sh, DPPF))
    a("v_or_b32 v%d, %s, v%d                ; the sign of L marks a write-through sender"
      % (vML + 1, sSlow, vML + 1))
    a("v_min_u32 v%d, -2, v%d" % (vML + 1, vML + 1))
    pub_ml("")
    a("s_barrier")
    stamp_at(3)
    get_ml()
    a("s_cmp_lg_u32 %s, 0" % sSlow)
    a("s_barrier")
    stamp_at(4)
    a("s_cbranch_scc1 L_slow")
    a("s_waitcnt vmcnt(0)")
    a("L_ml:")
    a("v_max_u32 v%d, v%d, v%d" % (vA, vMLi, vMLi + 1))
    a("v_cmp_eq_u32 vcc, -1, v%d" % vA)
    a("s_nop 1")
    a("s_and_b64 exec, exec, vcc")
    a("s_cbranch_scc1 L_ml_again")
    a("s_mov_b64 exec, -1")
    get_o()
    a("v_max_f32_dpp v%d, v%d, v%d row_ror:4 %s" % (vA, vMLi, vMLi, DPPF))
    a("v_cmp_gt_i32 s[10:11], 0, v%d" % (vMLi + 1))
    if warm:
        a("L_hop4:")
        a("s_cbranch_execz L_back4")
    a("v_max_f32_dpp v%d, v%d, v%d row_ror:8 %s" % (vA, vA, vA, DPPF))
    rows_reduce("v_max_f32", vA, vB)
    a("v_sub_f32 v%d, v%d, v%d" % (vF, vMLi, vA))
    a("v_mul_f32 v%d, %s, v%d" % (vF, sC, vF))
    a("v_exp_f32 v%d, v%d" % (vF, vF))
    if rounds >= 3:
        get_o()
    a("v_mul_f32 v%d, v%d, abs(v%d)" % (vA, vF, vMLi + 1))
    for sh in (4, 8):
        a("v_add_f32_dpp v%d, v%d, v%d row_ror:%d %s" % (vA, vA, vA, sh, DPPF))
    rows_reduce("v_add_f32", vA, vB)
    a("v_rcp_f32 v%d, v%d" % (vA, vA))
    a("v_mul_f32 v%d, v%d, v%d" % (vF, vF, vA))
    a("L_o:")
    get_o()
    bound()
    a("s_waitcnt vmcnt(%d)" % (2 * rounds - 2))
    a("v_max3_u32 v%d, v%d, v%d, v%d" % (vA, vX, vX + 1, vX + 2))
    a("v_max3_u32 v%d, v%d, v%d, v%d" % (vB, vX + 3, vX + 4, vX + 5))
    a("v_max3_u32 v%d, v%d, v%d, v%d" % (vA, vA, vX + 6, vX + 7))
    a("v_max_u32 v%d, v%d, v%d" % (vA, vA, vB))
    a("v_cmp_eq_u32 vcc, -1, v%d" % vA)
    a("s_nop 1")
    a("s_and_b64 exec, exec, vcc")
    a("s_cbranch_scc1 L_o")
    a("s_mov_b64 exec, -1")
    stamp_at(5)
    for r in range(0, 8, 2):
        a("v_pk_mul_f32 %s, %s, %s op_sel:[0,1] op_sel_hi:[1,1]"
          % (vr(vY + r, 2), vr(vX + r, 2), vr(vF - 1, 2)))
    for e in range(4):
        a("v_permlane32_swap_b32 v%d, v%d" % (vY + e, vY + 4 + e))
    for e in (0, 2):
        a("v_pk_add_f32 %s, %s, %s" % (vr(vY + e, 2), vr(vY + e, 2), vr(vY + 4 + e, 2)))
    for e in range(2):
        a("v_permlane16_swap_b32 v%d, v%d" % (vY + e, vY + 2 + e))
    a("v_pk_add_f32 %s, %s, %s" % (vr(vY, 2), vr(vY, 2), vr(vY + 2, 2)))
    a("s_cmp_lg_u64 s[10:11], 0")
    for sh in (4, 8):
        for x in (vY, vY + 1):
            a("v_add_f32_dpp v%d, v%d, v%d row_ror:%d %s" % (x, x, x, sh, DPPF))
    a("s_mov_b32 exec_lo, 0x000f000f")
    a("s_mov_b32 exec_hi, 0x000f000f")
    a("v_cvt_pk_bf16_f32 v%d, v%d, v%d" % (vY, vY, vY + 1))
    a("global_store_dword v%d, v%d, s[14:15]" % (vOut, vY))
    a("s_cbranch_scc1 L_help")
    a("L_fin:")
    if timed:
        a("s_waitcnt vmcnt(0)")
        stamp_at(6)
        a("s_mov_b64 exec, -1")
        a("ds_read_b32 v%d, v%d offset:8" % (vA, vCA))
        a("s_waitcnt lgkmcnt(0)")
        a("v_readfirstlane_b32 s40, v%d" % vA)
        a("s_nop 3")
    if stamp:
        a("s_getreg_b32 s54, hwreg(HW_REG_XCC_ID)")
        a("s_or_b32 s54, s54, %s" % sSlow)
        a("s_lshl_b32 %s, s2, 6" % sT1)
        a("s_add_u32 %s, %s, 0x200000" % (sT1, sT1))
        a("v_mov_b32 v%d, %s" % (vA, sT1))
        for i in range(8):
            a("v_mov_b32 v%d, s%d" % (vY + i, 40 + 2 * i))
        a("s_lshl_b32 %s, s2, 8" % sT1)
        a("s_add_u32 %s, %s, 0x300000" % (sT1, sT1))
        a("v_lshl_add_u32 v%d, v%d, 2, %s" % (vB, vLane, sT1))
        a("global_store_dword v%d, v%d, s[18:19]" % (vB, vSt))
        a("s_mov_b64 exec, 1")
        a("global_store_dwordx4 v%d, %s, s[18:19]" % (vA, vr(vY, 4)))
        a("global_store_dwordx4 v%d, %s, s[18:19] offset:16" % (vA, vr(vY + 4, 4)))
    if diagpad:
        def spin(label):
            a("%s:" % label)
            a("s_memrealtime s[58:59]")
            a("s_waitcnt lgkmcnt(0)")
            a("s_sub_u32 s58, s58, s40")
            a("s_cmp_lt_u32 s58, s56")
            a("s_cbranch_scc1 %s" % label)

        a("s_mov_b32 s56, %d" % (diagpad * 100))
        if diagg:
            lo, hi = int(diagg[1]), int(diagg[2])
            a("s_mov_b64 exec, 1")
            a("v_mov_b32 v%d, 120" % vA)
            a("v_mov_b32 v%d, s%d" % (vY, 40 + 2 * hi))
            a("v_mov_b32 v%d, s%d" % (vY + 1, 40 + 2 * lo))
            if diagg[0] == "m":
                a("v_not_b32 v%d, v%d" % (vY + 1, vY + 1))
            a("global_atomic_umax v%d, v%d, s[16:17]" % (vA, vY))
            a("global_atomic_umax v%d, v%d, s[16:17] offset:4" % (vA, vY + 1))
        spin("L_pad")
        if diagg:
            a("global_load_dwordx2 %s, v%d, s[16:17] sc1" % (vr(vY, 2), vA))
            a("s_waitcnt vmcnt(0)")
            a("v_readfirstlane_b32 s10, v%d" % vY)
            a("v_readfirstlane_b32 s11, v%d" % (vY + 1))
            a("s_nop 3")
            if diagg[0] == "m":
                a("s_not_b32 s11, s11")
            a("s_sub_u32 s10, s10, s11")
            a("s_sub_u32 s10, s10, %d" % (diagsub * 100))
            a("s_max_i32 s10, s10, 0")
            a("s_min_u32 s10, s10, 2000")
            a("s_mul_i32 s10, s10, 10")
            a("s_add_u32 s56, s56, s10")
            spin("L_pad2")
    a("s_endpgm")

    def count_in():
        a("; the barrier opens once the loader has ended, that is after its stores completed")
        a("s_waitcnt vmcnt(0)")
        a("s_barrier")
        a("s_mov_b64 exec, 1")
        a("v_mov_b32 v%d, 1" % vVal)
        a("global_atomic_add v%d, v%d, s[16:17]" % (vCntA, vVal))

    if flag:
        vFl = 42
        a("L_rank0:")
        a("s_add_u32 %s, s36, s2" % sT0)
        a("s_lshl_b64 exec, 1, %s" % sT0)
        a("s_lshr_b32 %s, s36, 6" % sT0)
        a("v_add3_u32 v%d, v%d, %s, 1" % (vB, vTwo, sT0))
        a("global_store_dword v%d, v%d, s[18:19] sc1" % (vTkA, vB))
        a("s_mov_b64 exec, -1")
        a("global_load_dword v%d, v%d, s[16:17] offset:%d nt" % (vPeer, vPeerA, DBG_PROG))
        a("s_waitcnt vmcnt(3)")
        a("s_branch L_ranked0")
        a("L_rank1:")
        a("s_lshl_b64 exec, 0xff, s36")
        a("global_load_dword v%d, v%d, s[18:19] sc1" % (vFl, vTkA))
        a("s_mov_b64 exec, -1")
        a("global_load_dword v%d, v%d, s[16:17] offset:%d nt" % (vPeer2, vPeerA, DBG_PROG))
        a("s_waitcnt vmcnt(3)")
        a("s_branch L_ranked1")
        a("L_count:")
        a("s_lshl_b64 exec, 0xff, s36")
        a("s_lshr_b32 %s, s36, 6" % sT0)
        a("v_sub_u32 v%d, v%d, v%d" % (vB, vFl, vTwo))
        a("v_cmp_lt_u32 vcc, %s, v%d" % (sT0, vB))
        a("s_mov_b64 exec, -1")
        a("s_add_u32 s36, s36, 8")
        a("s_bcnt1_i32_b64 %s, vcc" % sT0)
        a("s_lshl_b32 %s, %s, 1" % (sT0, sT0))
        a("v_mov_b32 v%d, %s" % (vTk, sT0))
        a("s_branch L_counted")
    else:
        a("; arrival order of the eight workgroup groups at a checkpoint, in steps of 2")
        a("L_rank0:")
        a("global_atomic_add v%d, v%d, v%d, s[16:17] sc0" % (vTk, vTkA, vTwo))
        a("v_add_u32 v%d, 4, v%d" % (vTkA, vTkA))
        a("s_mov_b64 exec, -1")
        a("global_load_dword v%d, v%d, s[16:17] offset:%d nt" % (vPeer, vPeerA, DBG_PROG))
        a("s_waitcnt vmcnt(3)")
        a("s_branch L_ranked0")

    a("L_help:")
    a("s_cmp_lg_u32 %s, 0" % sSlow)
    a("s_cbranch_scc1 L_fin")
    count_in()
    a("s_branch L_fin")

    a("L_slow:")
    pub_ml("sc1")
    count_in()
    a("L_cnt:")
    bound()
    a("global_load_dword v%d, v%d, s[16:17] sc1" % (vPeer, vCntA))
    a("s_waitcnt vmcnt(0)")
    a("v_readfirstlane_b32 %s, v%d" % (sT0, vPeer))
    a("s_nop 1")
    a("s_cmp_ge_u32 %s, %d" % (sT0, S))
    a("s_cbranch_scc0 L_cnt")
    a("s_mov_b64 exec, -1")
    a("L_ml_again:")
    get_ml()
    bound()
    a("s_waitcnt vmcnt(0)")
    a("s_branch L_ml")

    vSt, vRdK, vLane, vRd, vMX, vMY, vWM, vNmc, vA, vB, vWO0, vWO1, vWL = range(1, 14)
    vM, vL = 14, 15
    vQ, vO, vT, vXY, vD, vK, vVt, vS = 16, 20, 28, 30, 40, 56, 72, 76
    sI, sOwn, sMask = "s21", "s36", "s35"
    NT = G // 2

    def fold(part, t, da, db):
        src, own, ror, bank = ((da + 1, da, 12, 1), (da + 3, da + 2, 12, 4),
                               (db, db + 1, 4, 2), (db + 2, db + 3, 4, 8))[part]
        a("v_add_f32_dpp v%d, v%d, v%d row_ror:%d row_mask:0xf bank_mask:0x%x"
          % (t, src, own, ror, bank))

    def fold_c(t):
        a("v_add_f32_dpp v%d, v%d, v%d row_ror:8 %s" % (t, t, t, DPPF))

    def advance(rd):
        a("v_add_u32 v%d, %d, v%d" % (rd, N * 1024, rd))
        a("v_and_b32 v%d, %d, v%d" % (rd, RING - 1, rd))

    a("L_cons:")
    a("s_load_dwordx2 s[4:5], s[0:1], 0            ; q")
    a("s_load_dwordx4 s[8:11], s[0:1], 24")
    a("v_and_b32 v%d, 63, v0" % vLane)
    a("s_lshr_b32 %s, %s, 6" % (sW, sW))
    a("s_sub_u32 %s, %s, 1" % (sW, sW))
    a("s_mov_b32 %s, %s" % (sC, f32(CS)))
    a("v_lshrrev_b32 v%d, 4, v%d" % (vA, vLane))
    a("v_lshlrev_b32 v%d, 6, v%d" % (vA, vA))
    a("v_and_b32 v%d, 3, v%d" % (vB, vLane))
    a("v_bfe_u32 v%d, v%d, 2, 2" % (vWM, vLane))
    a("v_lshl_add_u32 v%d, v%d, 4, v%d" % (vNmc, vB, vA))
    a("v_lshl_add_u32 v%d, v%d, 8, v%d" % (vRdK, vWM, vNmc))
    a("v_lshl_add_u32 v%d, v%d, 8, v%d" % (vA, vB, vA))
    a("v_lshl_add_u32 v%d, v%d, 4, v%d" % (vA, vWM, vA))
    a("v_lshlrev_b32 v%d, 4, v%d" % (vRd, vLane))
    a("s_lshl_b32 %s, %s, 10" % (sT0, sP))
    a("s_lshl_b32 %s, %s, 8" % (sT1, sP))
    a("v_add_u32 v%d, %s, v%d" % (vA, sT0, vA))
    a("v_add_u32 v%d, %s, v%d" % (vNmc, sT1, vNmc))
    a("v_and_b32 v%d, 0xf0, v%d" % (vB, vRd))
    a("v_add_u32 v%d, %s, v%d" % (vB, sT1, vB))
    for r in range(4):
        a("v_mov_b32 v%d, 0" % (vVt + r))
    a("s_or_b32 %s, %s, %s" % (sOwn, sS, sW))
    a("s_waitcnt lgkmcnt(0)")
    a("global_load_dwordx4 %s, v%d, s[4:5]" % (vr(vQ, 4), vA))
    a("s_cbranch_scc1 L_notree")
    a("global_load_dwordx4 %s, v%d, s[8:9]" % (vr(vK, 4), vNmc))
    a("global_load_dwordx4 %s, v%d, s[10:11]" % (vr(vVt, 4), vB))
    a("s_load_dword %s, s[12:13], 0" % sMask)
    a("L_notree:")
    if warm:
        a("; fetch code that first runs late, one region per wave")
        a("s_mov_b64 exec, 0")
        for c in range(C - 1):
            a("s_cmp_eq_u32 %s, %d" % (sW, c))
            a("s_cbranch_scc1 L_hop%d" % c)
        a("s_branch L_hop3")
        a("L_back:")
        a("s_mov_b64 exec, -1")
    a("s_lshl_b32 %s, %s, 10" % (sT0, sW))
    a("v_and_b32 v%d, 32, v%d" % (vA, vLane))
    a("v_lshlrev_b32 v%d, 2, v%d" % (vA, vA))
    a("v_xor_b32 v%d, v%d, v%d" % (vRd, vRd, vA))
    a("v_add_u32 v%d, %s, v%d" % (vRd, sT0, vRd))
    a("v_and_b32 v%d, 8, v%d" % (vA, vLane))
    a("v_lshlrev_b32 v%d, 4, v%d" % (vA, vA))
    a("v_xor_b32 v%d, v%d, v%d" % (vRdK, vRdK, vA))
    a("v_add_u32 v%d, %s, v%d" % (vRdK, sT0, vRdK))
    a("s_lshl_b32 %s, %s, 8" % (sT0, sW))
    a("s_add_u32 %s, %s, %d" % (sT0, sT0, ldsL))
    a("v_lshl_add_u32 v%d, v%d, 2, %s" % (vWL, vLane, sT0))
    a("v_and_b32 v%d, 3, v%d" % (vWM, vLane))
    a("v_lshlrev_b32 v%d, 4, v%d" % (vWM, vWM))
    a("v_add_u32 v%d, %d, v%d" % (vWM, ldsM, vWM))
    a("v_bfe_u32 v%d, v%d, 4, 1" % (vA, vLane))
    a("v_bfe_u32 v%d, v%d, 5, 1" % (vB, vLane))
    a("v_lshl_add_u32 v%d, v%d, 1, v%d" % (vA, vA, vB))
    a("v_and_b32 v%d, 15, v%d" % (vB, vLane))
    a("v_lshl_add_u32 v%d, v%d, 2, v%d" % (vA, vB, vA))
    a("s_lshl_b32 %s, %s, 11" % (sT0, sW))
    a("s_add_u32 %s, %s, %d" % (sT0, sT0, ldsO))
    a("v_lshl_add_u32 v%d, v%d, 2, %s" % (vWO0, vA, sT0))
    a("v_xor_b32 v%d, 0x80, v%d" % (vWO1, vWO0))
    a("v_and_b32 v%d, 8, v%d" % (vA, vLane))
    a("v_lshlrev_b32 v%d, 1, v%d" % (vA, vA))
    a("v_mov_b32 v%d, 0xffff" % vB)
    a("v_lshlrev_b32 v%d, v%d, v%d" % (vA, vA, vB))
    a("v_bfe_i32 v%d, v%d, 2, 1" % (vB, vLane))
    a("v_and_b32 v%d, v%d, v%d" % (vMY, vA, vB))
    a("v_xor_b32 v%d, v%d, v%d" % (vMX, vA, vMY))
    a("v_mov_b32 v%d, 0xff800000" % vM)
    a("v_mov_b32 v%d, v%d" % (vSt, vM))
    a("s_mov_b32 %s, 0" % sI)
    a("s_cmp_lg_u32 %s, 0" % sOwn)
    a("s_barrier")
    a("s_waitcnt vmcnt(0) lgkmcnt(0)")
    a("s_cbranch_scc1 L_k_in")
    a("v_mfma_f32_16x16x32_bf16 %s, %s, %s, 0" % (vr(vD, 4), vr(vK, 4), vr(vQ, 4)))
    a("s_lshr_b32 %s, %s, 3" % (sT0, sP))
    a("s_lshl_b32 %s, %s, 4" % (sT0, sT0))
    a("s_lshr_b32 %s, %s, %s" % (sMask, sMask, sT0))
    a("s_lshl_b32 %s, %s, 16" % (sMask, sMask))
    a("v_mov_b32 v%d, %s" % (vA, sMask))
    a("v_sub_f32 v%d, 1.0, v%d" % (vA, vA))
    a("v_mul_f32 v%d, %s, v%d           ; (1 - mask) * -1e9 / scale" % (vA, f32(-1e9 * 128 ** 0.5), vA))
    for part in range(4):
        fold(part, vM, vD, vD)
    fold_c(vM)
    a("v_add_f32 v%d, v%d, v%d" % (vM, vM, vA))
    a("s_mov_b64 exec, 0xffff")
    a("v_mov_b32 v%d, v%d" % (vSt, vM))
    a("s_mov_b64 exec, -1")
    a("s_branch L_k_in")

    a("; scores of all keys into v[%d:%d], running per-lane max" % (vS, vS + 63))
    a("L_k:")
    l0 = a.mark()
    a("s_barrier")
    a("L_k_in:")
    for j in range(G):
        a("ds_read_b128 %s, v%d offset:%d" % (vr(vK + 4 * j, 4), vRdK, j * 4096))
    advance(vRdK)
    for j in range(G):
        a("s_waitcnt lgkmcnt(%d)" % (G - 1 - j))
        a("v_mfma_f32_16x16x32_bf16 %s, %s, %s, 0"
          % (vr(vD + 4 * j, 4), vr(vK + 4 * j, 4), vr(vQ, 4)))
    for part in range(4):
        for i in range(NT):
            fold(part, vT + i, vD + 8 * i, vD + 8 * i + 4)
    for i in range(NT):
        fold_c(vT + i)
    a("s_set_gpr_idx_on %s, gpr_idx(DST)" % sI)
    for i in range(NT):
        a("v_mov_b32 v%d, v%d" % (vS + i, vT + i))
    a("s_set_gpr_idx_off")
    a("v_max3_f32 v%d, v%d, v%d, v%d" % (vM, vM, vT, vT + 1))
    a("s_add_u32 %s, %s, %d" % (sI, sI, NT))
    a("s_cmp_lt_u32 %s, 64" % sI)
    a("s_cbranch_scc1 L_k")
    a.loop_check(l0)

    def prep():
        a("s_set_gpr_idx_on %s, gpr_idx(SRC0)" % sI)
        for i in range(NT):
            a("v_mov_b32 v%d, v%d" % (vT + i, vS + i))
        a("s_set_gpr_idx_off")
        for i in range(NT):
            a("v_fma_f32 v%d, v%d, %s, v%d" % (vT + i, vT + i, sC, vNmc))
        for i in range(NT):
            a("v_exp_f32 v%d, v%d" % (vT + i, vT + i))
        a("s_add_u32 %s, %s, %d" % (sI, sI, NT))
        a("s_cmp_lt_u32 %s, %d" % (sI, 64 - NT))
        for i in range(NT):
            a("v_add_f32 v%d, v%d, v%d" % (vL, vL, vT + i))
        for i in range(NT):
            a("v_cvt_pk_bf16_f32 v%d, v%d, v%d" % (vT + i, vT + i, vT + i))
        for i in range(NT):
            x, p = vXY + 4 * i, vT + i
            a("v_and_b32 v%d, v%d, v%d" % (x, p, vMX))
            a("v_and_b32 v%d, v%d, v%d" % (x + 3, p, vMY))
            a("v_and_b32_dpp v%d, v%d, v%d row_ror:4 %s" % (x + 1, p, vMY, DPPF))
            a("v_and_b32_dpp v%d, v%d, v%d row_ror:4 %s" % (x + 2, p, vMX, DPPF))

    def pv(js, adv):
        for j in js:
            a("ds_read_b128 %s, v%d offset:%d" % (vr(vK + 4 * j, 4), vRd, j * 4096))
        if adv:
            advance(vRd)
        for j in js:
            a("s_waitcnt lgkmcnt(%d)" % (js[-1] - j))
            for k in range(2):
                a("v_mfma_f32_16x16x16_bf16 %s, %s, %s, %s"
                  % (vr(vO + 4 * k, 4), vr(vXY + 2 * j, 2), vr(vK + 4 * j + 2 * k, 2),
                     vr(vO + 4 * k, 4)))

    a("v_max_f32_dpp v%d, v%d, v%d row_ror:4 %s" % (vM, vM, vM, DPPF))
    rows_reduce("v_max_f32", vM, vB)
    a("v_lshl_add_u32 v%d, %s, 2, v%d" % (vA, sW, vWM))
    a("ds_write_b32 v%d, v%d" % (vA, vM))
    a("s_mov_b32 %s, 0" % sI)
    a("s_waitcnt lgkmcnt(0)")
    a("s_barrier")
    a("ds_read_b128 %s, v%d" % (vr(vD, 4), vWM))
    a("s_waitcnt lgkmcnt(0)")
    a("v_max3_f32 v%d, v%d, v%d, v%d" % (vM, vD, vD + 1, vD + 2))
    a("v_max_f32 v%d, v%d, v%d" % (vM, vM, vD + 3))
    a("v_mul_f32 v%d, %s, v%d" % (vNmc, f32(-CS), vM))
    a("v_fma_f32 v%d, v%d, %s, v%d" % (vA, vSt, sC, vNmc))
    a("v_exp_f32 v%d, v%d" % (vA, vA))
    a("v_cmp_ne_u32 vcc, 0, v%d" % vMX)
    a("v_cvt_pk_bf16_f32 v%d, v%d, v%d" % (vB, vA, vA))
    a("v_and_b32 v%d, v%d, v%d" % (vXY, vB, vMX))
    a("v_and_b32 v%d, v%d, v%d" % (vXY + 1, vB, vMY))
    a("v_cndmask_b32 v%d, 0, v%d, vcc" % (vL, vA))
    for k in range(2):
        a("v_mfma_f32_16x16x16_bf16 %s, %s, %s, 0"
          % (vr(vO + 4 * k, 4), vr(vXY, 2), vr(vVt + 2 * k, 2)))
    prep()
    e0 = a.mark()
    a("s_branch L_v_in")
    if warm:
        a("L_hop3:")
        a("s_branch %s" % ("L_hop5" if warm == 2 else "L_back"))

    a("L_v:")
    l0 = a.mark()
    prep()
    a("s_barrier")
    a("L_v_in:")
    e1 = a.mark()
    pv(list(range(G)), True)
    a("s_cbranch_scc1 L_v")
    a.loop_check(l0)
    a.edge_check(e0, e1)
    prep()
    a("ds_write_b32 v%d, v%d" % (vWL, vL))
    a("s_waitcnt lgkmcnt(0)")
    a("s_barrier")
    pv(list(range(G - 1)), False)
    a("s_barrier")
    pv([G - 1], False)
    for r in range(8):
        a("ds_write_b32 v%d, v%d offset:%d"
          % (vWO1 if r >= 4 else vWO0, vO + r, (r % 4) * 512 + (r // 4) * 256))
    a("s_waitcnt lgkmcnt(0)")
    a("s_barrier")
    a("L_last:")
    a("s_endpgm")

    nvg = max(a.max_v(), vS + 64)
    acc = (nvg + 3) // 4 * 4
    out = HEADER
    out += "; @launch grid=(%d,1,1) block=(%d,1,1) lds=%d\n" % (NWG, 64 * (C + 2), LDS)
    out += DOC
    out += '.amdgcn_target "amdgcn-amd-amdhsa--gfx950"\n.text\n'
    out += ".globl %s_kernel\n.p2align 8\n.type %s_kernel,@function\n" % (NAME, NAME)
    out += a.text()
    out += """.section .rodata,"a"
.p2align 6
.amdhsa_kernel %s_kernel
  .amdhsa_next_free_vgpr %d
  .amdhsa_next_free_sgpr 64
  .amdhsa_accum_offset %d
  .amdhsa_group_segment_fixed_size 0
  .amdhsa_kernarg_size 72
  .amdhsa_user_sgpr_count 2
  .amdhsa_user_sgpr_kernarg_segment_ptr 1
  .amdhsa_system_sgpr_workgroup_id_x 1
.end_amdhsa_kernel
""" % (NAME, nvg, acc)
    return out


if __name__ == "__main__":
    kw = {}
    for arg in sys.argv[2:]:
        k, v = arg.split("=")
        kw[k] = int(v) if v.lstrip("-").isdigit() else v
    open(sys.argv[1], "w").write(gen(**kw))
```

```python
import math
import struct
import sys

from asmlib import Asm

NAME = "standalone__tree_speculative_verify_tree_attention_over_candidate_token_tree__decode"
HEADER = open("cdna_kernels/%s.s.ref" % NAME).read().split("; Override launch")[0]
DPPF = "row_mask:0xf bank_mask:0xf"

DOC = """\
"""


def f32(x):
    return "0x%08x" % struct.unpack("<I", struct.pack("<f", x))[0]


def vr(a, n):
    return "v[%d:%d]" % (a, a + n - 1)


def gen(depths=(23, 22, 21, 20, 19, 18, 17, 16), D0=20, rnd=5, bias=2, gm=(5, 21, 37, 51), gg=2,
        sbits=(14, 15, 16, 18), tbits=(21, 19, 20, 22, 17), xs=((1, 12), (2, 13)), jb=(12, 13),
        rdpos=14, fixpos=1, smooth=0, pad=0, flag=0, ctr=0, lazy=0, rounds=3, pre=1, warm=0, stamp=0, diagpad=0, diagg=None, diagsub=0, force=0):
    N, C, G, S, T = 16, 4, 4, 16, 32
    NWG = 16 * S
    RING = 65536
    if isinstance(depths, str):
        depths = tuple(int(x) for x in depths.split("."))
    if isinstance(gm, str):
        gm = tuple(int(x) for x in gm.split("."))
    assert len(depths) == 8 and max(depths) <= 32 and N <= D0 <= 32
    assert sorted(list(jb) + list(sbits) + list(tbits)) == list(range(12, 23))
    assert all(b >= 12 and b not in sbits for _, b in xs)
    CS = 128 ** -0.5 * math.log2(math.e)
    timed = stamp or diagpad
    a = Asm()

    ldsO = RING
    ldsL = ldsO + C * 2048
    ldsM = ldsL + C * 256
    ldsC = ldsM + 64
    LDS = ldsC + 16
    WS_ML = 0x100000
    DBG_RANK, DBG_PROG = 64, 128

    sW, sP, sS, sCnt, sC, sT0, sT1, sIdx = "s3", "s6", "s7", "s22", "s23", "s32", "s33", "s34"

    def stamp_at(i):
        if timed:
            a("s_memrealtime s[%d:%d]" % (40 + 2 * i, 41 + 2 * i))

    def rows_reduce(op, x, tmp):
        for swap in ("v_permlane16_swap_b32", "v_permlane32_swap_b32"):
            a("v_mov_b32 v%d, v%d" % (tmp, x))
            a("%s v%d, v%d" % (swap, x, tmp))
            a("%s v%d, v%d, v%d" % (op, x, x, tmp))

    def runs(bits):
        i = 0
        while i < len(bits):
            n = 1
            while (i + n < len(bits) and bits[i + n][0] == bits[i][0] + n
                   and bits[i + n][1] == bits[i][1] + n):
                n += 1
            yield bits[i][0], n, bits[i][1]
            i += n

    def pair_index():
        a("s_lshl_b32 %s, %s, 4" % (sIdx, sP))
        a("s_add_u32 %s, %s, %s" % (sIdx, sIdx, sS))

    a("%s_kernel:" % NAME)
    a("s_load_dwordx2 s[24:25], s[0:1], 8          ; k_cache")
    a("s_load_dwordx2 s[28:29], s[0:1], 16         ; v_cache")
    a("s_load_dwordx8 s[12:19], s[0:1], 40")
    stamp_at(0)
    a("v_readfirstlane_b32 %s, v0" % sW)
    a("s_cmp_ge_u32 s2, %d" % NWG)
    a("s_cbranch_scc1 L_end")
    a("s_and_b32 %s, s2, 15" % sP)
    a("s_lshr_b32 %s, s2, 4" % sS)
    a("s_cmp_eq_u32 %s, 0" % sW)
    a("s_cbranch_scc1 L_loader")
    if pre:
        a("; one wave of the first workgroups pulls the code into L2")
        a("s_sub_u32 %s, %s, 64" % (sT0, sW))
        a("s_or_b32 %s, %s, %s" % (sT0, sT0, sS))
        a("s_cbranch_scc1 L_nopre")
        a("s_getpc_b64 s[36:37]")
        a("L_pc:")
        a("v_lshlrev_b32 v1, 7, v0")
        a("v_and_b32 v1, 0x1fff, v1")
        a("v_min_u32 v1, L_last-L_pc, v1")
        a("global_load_dword v38, v1, s[36:37]")
        a("L_nopre:")
    a("s_cmp_eq_u32 %s, %d" % (sW, 64 * (C + 1)))
    a("s_cbranch_scc1 L_ctrl")
    a("s_branch L_cons")

    vOff, vTab, vA, vB, vLvA, vLv, vOrd0, vOrd1, vPubO, vCntA = range(1, 11)
    vAcc, vBuf = 12, 20
    sK, sTK, sU, sLv = "s20", "s38", "s37", "s5"
    a("L_loader:")
    a("s_setprio 3")
    a("s_lshl_b32 %s, %s, 23" % (sTK, sP))
    for src, n, dst in runs(list(enumerate(sbits)) + list(xs)):
        a("s_bfe_u32 %s, %s, 0x%x" % (sT0, sS, n << 16 | src))
        a("s_lshl_b32 %s, %s, %d" % (sT0, sT0, dst))
        a("s_xor_b32 %s, %s, %s" % (sTK, sTK, sT0))
    a("s_mov_b32 %s, %s" % (sK, sTK))
    a("s_mov_b32 s26, 0x8000000")
    a("s_mov_b32 s27, 0x00020000")
    a("s_mov_b32 m0, 0")
    a("v_lshlrev_b32 v%d, 4, v0" % vA)
    a("v_and_b32 v%d, 32, v0" % vB)
    a("v_lshlrev_b32 v%d, 2, v%d" % (vB, vB))
    a("v_xor_b32 v%d, v%d, v%d" % (vOff, vA, vB))
    a("v_mov_b32 v%d, %s" % (vTab, sTK))
    for src, n, dst in runs(list(enumerate(tbits))):
        a("v_bfe_u32 v%d, v0, %d, %d" % (vA, src, n))
        a("v_lshlrev_b32 v%d, %d, v%d" % (vA, dst, vA))
        a("v_xor_b32 v%d, v%d, v%d" % (vTab, vTab, vA))

    def load(j):
        a("buffer_load_dwordx4 v%d, s[24:27], %s offen offset:%d nt lds" % (vOff, sK, (j % 4) * 1024))
        if j % 4 == 3:
            a("s_add_u32 m0, m0, 4096")
            if j + 1 < N:
                q = (j + 1) // 4
                a("s_xor_b32 %s, %s, %d" % (sK, sTK, (q & 1) << jb[0] | (q >> 1) << jb[1]))

    a("s_waitcnt lgkmcnt(0)")
    for j in range(N):
        load(j)
    a("s_xor_b32 %s, %s, %d" % (sTK, sTK, 1 << tbits[0]))
    a("s_mov_b32 %s, %s" % (sK, sTK))
    for j in range(D0 - N):
        load(j)
    pair_index()
    a("v_mov_b32 v%d, %d" % (vLvA, ldsC))
    a("v_mov_b32 v%d, 4" % vLv)
    a("s_lshl_b32 %s, %s, 2" % (sT0, sP))
    a("v_mov_b32 v%d, %s" % (vCntA, sT0))
    a("v_lshrrev_b32 v%d, 4, v0" % vA)
    a("v_and_b32 v%d, 15, v0" % vB)
    a("v_and_b32 v%d, 1, v0" % vOrd0)
    a("v_mul_u32_u24 v%d, 24, v%d" % (vOrd0, vOrd0))
    a("v_bfe_u32 v%d, v0, 1, 3" % vOrd1)
    a("v_add_u32 v%d, v%d, v%d" % (vOrd0, vOrd0, vOrd1))
    a("v_lshl_add_u32 v%d, v%d, 5, v%d" % (vOrd0, vA, vOrd0))
    a("v_lshlrev_b32 v%d, 4, v%d" % (vOrd0, vOrd0))
    a("v_add_u32 v%d, %d, v%d" % (vOrd0, ldsO, vOrd0))
    a("v_xor_b32 v%d, 0x80, v%d" % (vOrd1, vOrd0))
    a("s_lshl_b32 %s, %s, 11" % (sT0, sIdx))
    a("v_lshl_add_u32 v%d, v%d, 5, v%d" % (vPubO, vA, vB))
    a("v_lshl_add_u32 v%d, v%d, 4, %s" % (vPubO, vPubO, sT0))
    a("s_mov_b32 %s, 2" % sU)
    if timed:
        a("v_mov_b32 v%d, s40" % vA)
        a("ds_write_b32 v%d, v%d offset:8" % (vLvA, vA))
        a("s_waitcnt vmcnt(%d)" % (D0 - 1))
        a("s_memrealtime s[44:45]")
        a("s_waitcnt lgkmcnt(0)")
        a("v_mov_b32 v%d, s44" % vA)
        a("ds_write_b32 v%d, v%d offset:12" % (vLvA, vA))
    for j in range(D0 - N, N):
        a("s_waitcnt vmcnt(%d)" % (D0 - 1))
        load(j)
        if lazy and j == D0 - N:
            a("s_barrier")

    a("L_next:")
    a("v_readlane_b32 %s, v%d, %s" % (sTK, vTab, sU))
    a("s_waitcnt lgkmcnt(0)")
    a("v_readfirstlane_b32 %s, v%d" % (sLv, vLv))
    a("s_and_b32 m0, m0, %d" % (RING - 1))
    a("s_cmp_eq_u32 %s, %d" % (sU, T))
    a("s_cselect_b64 s[24:25], s[28:29], s[24:25]")
    a("s_add_u32 %s, %s, 1" % (sU, sU))
    a("s_mov_b32 %s, %s" % (sK, sTK))

    def block(lv):
        d = depths[lv]
        a("; %d loads in flight; piece u-2 has landed at the barrier" % d)
        for j in range(N):
            a("s_waitcnt vmcnt(%d)" % (d - 1))
            load(j)
            if j == max(0, (max(depths) if fixpos else d) - N - 1):
                a("s_barrier")
            if j == rdpos:
                a("ds_read_b32 v%d, v%d" % (vLv, vLvA))
        a("s_cmp_lt_u32 %s, %d" % (sU, 2 * T))
        a("s_cbranch_scc1 L_next")
        if lv != 7:
            a("s_branch L_drain")
            if warm == 1 and lv % 3 == 0:
                a("L_hop%d:" % (lv // 3))
                a("s_branch L_back")
            if warm == 2 and lv % 2 == 0:
                a("L_hop%s:" % "0125"[lv // 2])
                a("s_branch L_back")

    def tree(lo, bit):
        if bit < 0:
            block(lo)
            return
        a("s_bitcmp1_b32 %s, %d" % (sLv, bit))
        a("s_cbranch_scc1 L_lv%d" % (lo + (1 << bit)))
        tree(lo, bit - 1)
        a("L_lv%d:" % (lo + (1 << bit)))
        tree(lo + (1 << bit), bit - 1)

    tree(0, 2)
    a("L_drain:")
    a("s_waitcnt vmcnt(%d)" % N)
    a("s_barrier")
    a("s_waitcnt vmcnt(%d)" % C)
    a("s_barrier")
    a("ds_read_b32 v%d, v%d offset:4" % (vLv, vLvA))
    a("s_waitcnt vmcnt(0)")
    a("s_barrier")
    a("s_waitcnt lgkmcnt(0)")
    a("v_readfirstlane_b32 %s, v%d" % (sLv, vLv))
    a("s_nop 1")
    a("s_cmp_lg_u32 %s, 0" % sLv)
    a("s_barrier")
    for k in range(2):
        for c in range(C):
            a("ds_read_b128 %s, v%d offset:%d"
              % (vr(vBuf + 16 * k + 4 * c, 4), vOrd1 if k else vOrd0, c * 2048))

    def pub_o(k, flags):
        a("global_store_dwordx4 v%d, %s, s[18:19] offset:%d %s"
          % (vPubO, vr(vAcc + 4 * k, 4), 256 * k, flags))

    for k in range(2):
        for c in range(1, C):
            a("s_waitcnt lgkmcnt(%d)" % (7 - 4 * k - c))
            for r in (0, 2):
                prev = vBuf + 16 * k + r if c == 1 else vAcc + 4 * k + r
                a("v_pk_add_f32 %s, %s, %s"
                  % (vr(vAcc + 4 * k + r, 2), vr(prev, 2), vr(vBuf + 16 * k + 4 * c + r, 2)))
        for r in range(4):
            a("v_min_u32 v%d, -2, v%d" % (vAcc + 4 * k + r, vAcc + 4 * k + r))
        pub_o(k, "")
    a("s_cbranch_scc0 L_sent")
    pub_o(0, "sc1")
    pub_o(1, "sc1")
    a("L_sent:")
    a("s_waitcnt vmcnt(0)")
    a("L_end:")
    a("s_endpgm")

    vLane, vA, vB, vSlot, vPeerA, vPeer, vVal, vTk, vTkA, vTwo, vCA, vLrd, vMrd = range(1, 14)
    vOut, vF = 14, 15
    vML, vMLi, vX, vY = 16, 18, 20, 28
    vPubML, vInO, vInML, vCntA, vSt = 36, 37, 38, 39, 40
    sProg, sRnd, sSlow, sRep, sB = "s4", "s8", "s9", "s10", "s21"
    vPeer2 = 41
    for _ in range(pad):
        a("s_nop 0")
    a("L_ctrl:")
    a("v_and_b32 v%d, 63, v0" % vLane)
    pair_index()
    a("v_and_b32 v%d, 31, v%d" % (vPeerA, vLane))
    a("v_lshlrev_b32 v%d, 2, v%d" % (vPeerA, vPeerA))
    a("s_lshl_b32 %s, %s, 11" % (sT0, sIdx))
    a("v_lshl_add_u32 v%d, v%d, 4, %s" % (vA, vLane, sT0))
    a("s_lshl_b32 %s, %s, 7" % (sT1, sIdx))
    a("s_add_u32 %s, %s, %d" % (sT1, sT1, WS_ML))
    a("v_and_b32 v%d, 7, v%d" % (vB, vLane))
    a("v_lshl_add_u32 v%d, v%d, 4, %s" % (vB, vB, sT1))
    for r in range(10):
        a("v_mov_b32 v%d, -1" % (vMLi + r))
    a("s_waitcnt lgkmcnt(0)")
    stamp_at(1)
    if lazy:
        a("s_barrier")
    a("global_load_dword v%d, v%d, s[16:17] offset:%d" % (vPeer, vPeerA, DBG_PROG))
    a("global_store_dwordx4 v%d, %s, s[18:19]" % (vA, vr(vX, 4)))
    a("global_store_dwordx4 v%d, %s, s[18:19] offset:1024" % (vA, vr(vX, 4)))
    a("global_store_dwordx4 v%d, %s, s[18:19]" % (vB, vr(vX, 4)))
    a("s_getreg_b32 %s, hwreg(HW_REG_XCC_ID, 0, 4)" % sT0)
    a("s_and_b32 %s, %s, 1" % (sRnd, sT0))
    a("s_mul_i32 %s, %s, %d" % (sRnd, sRnd, 2 * bias))
    top = 16 - ctr if flag else 7
    a("s_add_u32 %s, %s, %d" % (sRnd, sRnd, rnd - bias + top * gg // 2))
    a("s_lshl_b32 %s, %s, 3" % (sT0, sT0))
    a("s_and_b32 %s, s2, 7" % sProg)
    a("s_or_b32 %s, %s, %s" % (sProg, sProg, sT0))
    a("s_lshr_b32 %s, s2, 3" % sT0)
    a("s_lshl_b32 %s, %s, 2" % (sT0, sT0))
    a("v_mov_b32 v%d, %s" % (vSlot, sT0))
    assert all(c % 2 == 1 for c in gm)
    a("s_cmp_lt_u32 s2, 8")
    a("s_cselect_b32 %s, 0x%x, 0" % (sRep, sum(1 << (c // 2) for c in gm)))
    if flag:
        assert all(y - x >= 4 for x, y in zip(gm, gm[1:]))
        a("v_mov_b32 v%d, %d" % (vTk, top))
        a("v_mul_u32_u24 v%d, %d, v%d" % (vTkA, flag, vLane))
        a("v_add_u32 v%d, %d, v%d" % (vTkA, 0x180000, vTkA))
        a("s_mov_b32 s36, 0")
        a("s_cbranch_scc0 L_nosnap")
        a("global_load_dword v%d, v%d, s[18:19] sc1" % (vTwo, vTkA))
        a("L_nosnap:")
    else:
        a("v_mov_b32 v%d, 7" % vTk)
        a("v_mov_b32 v%d, %d" % (vTkA, DBG_RANK))
        a("v_mov_b32 v%d, 2" % vTwo)
    a("v_mov_b32 v%d, %d" % (vCA, ldsC))
    a("v_mov_b32 v%d, 4" % vF)
    a("ds_write_b32 v%d, v%d" % (vCA, vF))
    a("s_mov_b32 %s, %s" % (sC, f32(CS)))
    a("s_lshl_b32 %s, %s, 2" % (sT0, sP))
    a("v_mov_b32 v%d, %s" % (vCntA, sT0))
    a("v_lshrrev_b32 v%d, 4, v%d" % (vOut, vLane))
    a("v_and_b32 v%d, 15, v%d" % (vLrd, vLane))
    a("v_lshlrev_b32 v%d, 6, v%d" % (vLrd, vLrd))
    a("v_lshl_add_u32 v%d, v%d, 2, v%d" % (vLrd, vOut, vLrd))
    a("v_add_u32 v%d, %d, v%d" % (vLrd, ldsL, vLrd))
    a("v_lshlrev_b32 v%d, 4, v%d" % (vMrd, vOut))
    a("v_add_u32 v%d, %d, v%d" % (vMrd, ldsM, vMrd))
    a("v_lshl_add_u32 v%d, v%d, 3, %s" % (vPubML, vOut, sT1))
    a("v_lshrrev_b32 v%d, 2, v%d" % (vInML, vLane))
    a("v_and_b32 v%d, 3, v%d" % (vF, vLane))
    a("s_lshl_b32 %s, %s, 8" % (sT0, sP))
    a("s_add_u32 %s, %s, %s" % (sT0, sT0, sS))
    a("s_lshl_b32 %s, %s, 7" % (sT0, sT0))
    a("v_lshl_add_u32 v%d, v%d, 7, v%d" % (vInO, vInML, vF))
    a("v_lshl_add_u32 v%d, v%d, 4, %s" % (vInO, vInO, sT0))
    a("s_lshl_b32 %s, %s, 11" % (sT0, sP))
    a("s_lshr_b32 %s, %s, 2" % (sT1, sS))
    a("s_lshl_b32 %s, %s, 3" % (sT1, sT1))
    a("s_add_u32 %s, %s, %s" % (sT0, sT0, sT1))
    a("s_add_u32 %s, %s, %d" % (sT0, sT0, WS_ML))
    a("v_lshl_add_u32 v%d, v%d, 7, %s" % (vInML, vInML, sT0))
    a("v_lshrrev_b32 v%d, 5, v%d" % (vOut, vLane))
    a("v_lshl_add_u32 v%d, v%d, 2, v%d" % (vOut, vOut, vF))
    a("v_bfe_u32 v%d, v%d, 4, 1" % (vF, vLane))
    a("v_lshl_add_u32 v%d, v%d, 1, v%d" % (vOut, vOut, vF))
    a("s_lshl_b32 %s, %s, 6" % (sT0, sIdx))
    a("v_lshl_add_u32 v%d, v%d, 2, %s" % (vOut, vOut, sT0))
    a("s_mov_b32 %s, 0" % sB)
    if smooth:
        a("s_mov_b32 s11, 72")
    a("v_lshlrev_b32 v%d, 31, v%d" % (vPeer2, vLane))
    a("v_or_b32 v%d, 0x%x, v%d" % (vPeer2, top << 8 | 0xff, vPeer2))
    a("s_mov_b32 %s, 0x200000                ; bound on all polling rounds" % sCnt)
    a("s_waitcnt lgkmcnt(0)")
    if warm:
        a("s_mov_b64 exec, 0")
        a("s_branch L_hop4")
        a("L_back4:")
    a("s_mov_b64 exec, 1")
    a("s_barrier")
    a("s_waitcnt vmcnt(0)")
    a("s_branch L_ctl_in")

    def ctl(h):
        new, old = (vPeer, vPeer2)[h], (vPeer2, vPeer)[h]
        a("s_mov_b64 exec, 1")
        a("s_barrier")
        if h == 0:
            a("L_ctl_in:")
        if stamp and h == 1:
            a("s_memrealtime s[60:61]")
        a("s_add_u32 %s, %s, 0x10000" % (sT0, sProg))
        a("v_lshl_or_b32 v%d, v%d, 8, %s" % (vVal, vTk, sT0))
        a("global_store_dword v%d, v%d, s[16:17] offset:%d" % (vSlot, vVal, DBG_PROG))
        if h == 0 or flag:
            a("s_bitcmp1_b32 %s, %s" % (sRep, sB))
            a("s_cbranch_scc1 L_rank%d" % h)
        a("s_mov_b64 exec, -1")
        a("global_load_dword v%d, v%d, s[16:17] offset:%d nt" % (new, vPeerA, DBG_PROG))
        a("s_waitcnt vmcnt(2)")
        a("L_ranked%d:" % h)
        if flag and h == 0:
            a("s_lshl_b32 %s, %s, 1" % (sT0, sRep))
            a("s_bitcmp1_b32 %s, %s" % (sT0, sB))
            a("s_cbranch_scc1 L_count")
            a("L_counted:")
        a("v_cmp_le_i32 vcc, %s, v%d" % (sProg, old))
        a("v_readfirstlane_b32 %s, v%d" % (sT1, old))
        a("s_add_u32 %s, %s, 0x10000" % (sProg, sProg))
        a("s_nop 0")
        a("s_bcnt0_i32_b64 %s, vcc" % sT0)
        a("s_add_u32 %s, %s, %s" % (sT0, sT0, sRnd))
        a("s_bfe_u32 %s, %s, 0x50008" % (sT1, sT1))
        if gg != 2:
            a("s_mul_i32 %s, %s, %d" % (sT1, sT1, gg))
            a("s_lshr_b32 %s, %s, 1" % (sT1, sT1))
        a("s_sub_i32 %s, %s, %s" % (sT0, sT0, sT1))
        if smooth:
            a("s_lshr_b32 s11, s11, 1")
            a("s_add_i32 s11, s11, %s" % sT0)
            a("s_max_i32 s11, s11, 0")
            a("s_ashr_i32 %s, s11, 4" % sT0)
        else:
            a("s_ashr_i32 %s, %s, 3" % (sT0, sT0))
        a("v_med3_i32 v%d, %s, 0, 7" % (vA, sT0))
        a("ds_write_b32 v%d, v%d" % (vCA, vA))

    a("L_ctl:")
    l0 = a.mark()
    ctl(0)
    ctl(1)
    if stamp:
        a("s_waitcnt lgkmcnt(0)")
        a("s_sub_u32 m0, 31, %s" % sB)
        a("s_nop 0")
        a("v_writelane_b32 v%d, s60, m0" % vSt)
    a("s_add_u32 %s, %s, 1" % (sB, sB))
    a("s_cmp_lt_u32 %s, %d" % (sB, T - 1))
    a("s_cbranch_scc1 L_ctl")
    a.loop_check(l0)

    def pub_ml(flags):
        a("s_mov_b32 exec_lo, 0x00010001")
        a("s_mov_b32 exec_hi, 0x00010001")
        a("global_store_dwordx2 v%d, %s, s[18:19] %s" % (vPubML, vr(vML, 2), flags))
        a("s_mov_b64 exec, -1")

    def get_ml():
        a("global_load_dwordx2 %s, v%d, s[18:19] sc1" % (vr(vMLi, 2), vInML))

    def get_o():
        a("global_load_dwordx4 %s, v%d, s[18:19] sc1" % (vr(vX, 4), vInO))
        a("global_load_dwordx4 %s, v%d, s[18:19] offset:64 sc1" % (vr(vX + 4, 4), vInO))

    def bound():
        a("s_sub_u32 %s, %s, 1" % (sCnt, sCnt))
        a("s_cbranch_scc1 L_end")

    a("ds_read_b128 %s, v%d" % (vr(vY, 4), vMrd))
    a("s_and_b32 %s, %s, 0xff" % (sT0, sProg))
    a("v_xor_b32 v%d, %s, v%d" % (vA, sT0, vPeer))
    a("v_and_b32 v%d, 0xff, v%d" % (vB, vA))
    a("v_cmp_eq_u32 vcc, 0, v%d" % vB)
    a("s_lshr_b32 %s, %s, 3" % (sT0, sP))
    a("s_lshl_b32 %s, 0x55555555, %s" % (sT0, sT0))
    a("s_and_b32 %s, %s, vcc_lo" % (sT1, sT0))
    a("v_cmp_le_i32 vcc, 0x10000, v%d" % vA)
    a("s_nop 1")
    a("s_and_b32 %s, %s, vcc_lo" % (sT1, sT1))
    if force:
        a("s_and_b32 s11, s2, %d" % force)
        a("s_cselect_b32 %s, 0, %s" % (sT1, sT1))
    a("s_cmp_eq_u32 %s, %s" % (sT0, sT1))
    a("s_cselect_b32 %s, 0, 0x80000000" % sSlow)
    a("v_mov_b32 v%d, %s" % (vA, sSlow))
    a("ds_write_b32 v%d, v%d offset:4" % (vCA, vA))
    a("s_waitcnt lgkmcnt(0)")
    a("v_max3_f32 v%d, v%d, v%d, v%d" % (vML, vY, vY + 1, vY + 2))
    a("v_max_f32 v%d, v%d, v%d" % (vML, vML, vY + 3))
    a("v_min_u32 v%d, -2, v%d" % (vML, vML))
    a("s_barrier")
    a("global_load_dword v%d, v%d, s[18:19] sc1" % (vVal, vInML))
    a("global_load_dword v%d, v%d, s[18:19] sc1" % (vPeer, vInO))
    a("s_barrier")
    a("ds_read2_b32 %s, v%d offset0:0 offset1:4" % (vr(vY, 2), vLrd))
    a("s_waitcnt lgkmcnt(0)")
    a("v_add_f32 v%d, v%d, v%d" % (vML + 1, vY, vY + 1))
    for sh in (8, 4, 2, 1):
        a("v_add_f32_dpp v%d, v%d, v%d row_ror:%d %s" % (vML + 1, vML + 1, vML + 1, sh, DPPF))
    a("v_or_b32 v%d, %s, v%d                ; the sign of L marks a write-through sender"
      % (vML + 1, sSlow, vML + 1))
    a("v_min_u32 v%d, -2, v%d" % (vML + 1, vML + 1))
    pub_ml("")
    a("s_barrier")
    stamp_at(3)
    get_ml()
    a("s_cmp_lg_u32 %s, 0" % sSlow)
    a("s_barrier")
    stamp_at(4)
    a("s_cbranch_scc1 L_slow")
    a("s_waitcnt vmcnt(0)")
    a("L_ml:")
    a("v_max_u32 v%d, v%d, v%d" % (vA, vMLi, vMLi + 1))
    a("v_cmp_eq_u32 vcc, -1, v%d" % vA)
    a("s_nop 1")
    a("s_and_b64 exec, exec, vcc")
    a("s_cbranch_scc1 L_ml_again")
    a("s_mov_b64 exec, -1")
    get_o()
    a("v_max_f32_dpp v%d, v%d, v%d row_ror:4 %s" % (vA, vMLi, vMLi, DPPF))
    a("v_cmp_gt_i32 s[10:11], 0, v%d" % (vMLi + 1))
    if warm:
        a("L_hop4:")
        a("s_cbranch_execz L_back4")
    a("v_max_f32_dpp v%d, v%d, v%d row_ror:8 %s" % (vA, vA, vA, DPPF))
    rows_reduce("v_max_f32", vA, vB)
    a("v_sub_f32 v%d, v%d, v%d" % (vF, vMLi, vA))
    a("v_mul_f32 v%d, %s, v%d" % (vF, sC, vF))
    a("v_exp_f32 v%d, v%d" % (vF, vF))
    if rounds >= 3:
        get_o()
    a("v_mul_f32 v%d, v%d, abs(v%d)" % (vA, vF, vMLi + 1))
    for sh in (4, 8):
        a("v_add_f32_dpp v%d, v%d, v%d row_ror:%d %s" % (vA, vA, vA, sh, DPPF))
    rows_reduce("v_add_f32", vA, vB)
    a("v_rcp_f32 v%d, v%d" % (vA, vA))
    a("v_mul_f32 v%d, v%d, v%d" % (vF, vF, vA))
    a("L_o:")
    get_o()
    bound()
    a("s_waitcnt vmcnt(%d)" % (2 * rounds - 2))
    a("v_max3_u32 v%d, v%d, v%d, v%d" % (vA, vX, vX + 1, vX + 2))
    a("v_max3_u32 v%d, v%d, v%d, v%d" % (vB, vX + 3, vX + 4, vX + 5))
    a("v_max3_u32 v%d, v%d, v%d, v%d" % (vA, vA, vX + 6, vX + 7))
    a("v_max_u32 v%d, v%d, v%d" % (vA, vA, vB))
    a("v_cmp_eq_u32 vcc, -1, v%d" % vA)
    a("s_nop 1")
    a("s_and_b64 exec, exec, vcc")
    a("s_cbranch_scc1 L_o")
    a("s_mov_b64 exec, -1")
    stamp_at(5)
    for r in range(0, 8, 2):
        a("v_pk_mul_f32 %s, %s, %s op_sel:[0,1] op_sel_hi:[1,1]"
          % (vr(vY + r, 2), vr(vX + r, 2), vr(vF - 1, 2)))
    for e in range(4):
        a("v_permlane32_swap_b32 v%d, v%d" % (vY + e, vY + 4 + e))
    for e in (0, 2):
        a("v_pk_add_f32 %s, %s, %s" % (vr(vY + e, 2), vr(vY + e, 2), vr(vY + 4 + e, 2)))
    for e in range(2):
        a("v_permlane16_swap_b32 v%d, v%d" % (vY + e, vY + 2 + e))
    a("v_pk_add_f32 %s, %s, %s" % (vr(vY, 2), vr(vY, 2), vr(vY + 2, 2)))
    a("s_cmp_lg_u64 s[10:11], 0")
    for sh in (4, 8):
        for x in (vY, vY + 1):
            a("v_add_f32_dpp v%d, v%d, v%d row_ror:%d %s" % (x, x, x, sh, DPPF))
    a("s_mov_b32 exec_lo, 0x000f000f")
    a("s_mov_b32 exec_hi, 0x000f000f")
    a("v_cvt_pk_bf16_f32 v%d, v%d, v%d" % (vY, vY, vY + 1))
    a("global_store_dword v%d, v%d, s[14:15]" % (vOut, vY))
    a("s_cbranch_scc1 L_help")
    a("L_fin:")
    if timed:
        a("s_waitcnt vmcnt(0)")
        stamp_at(6)
        a("s_mov_b64 exec, -1")
        a("ds_read_b32 v%d, v%d offset:8" % (vA, vCA))
        a("ds_read_b32 v%d, v%d offset:12" % (vB, vCA))
        a("s_waitcnt lgkmcnt(0)")
        a("v_readfirstlane_b32 s40, v%d" % vA)
        a("v_readfirstlane_b32 s44, v%d" % vB)
        a("s_nop 3")
    if stamp:
        a("s_getreg_b32 s54, hwreg(HW_REG_XCC_ID)")
        a("s_or_b32 s54, s54, %s" % sSlow)
        a("s_lshl_b32 %s, s2, 6" % sT1)
        a("s_add_u32 %s, %s, 0x200000" % (sT1, sT1))
        a("v_mov_b32 v%d, %s" % (vA, sT1))
        for i in range(8):
            a("v_mov_b32 v%d, s%d" % (vY + i, 40 + 2 * i))
        a("s_lshl_b32 %s, s2, 8" % sT1)
        a("s_add_u32 %s, %s, 0x300000" % (sT1, sT1))
        a("v_lshl_add_u32 v%d, v%d, 2, %s" % (vB, vLane, sT1))
        a("global_store_dword v%d, v%d, s[18:19]" % (vB, vSt))
        a("s_mov_b64 exec, 1")
        a("global_store_dwordx4 v%d, %s, s[18:19]" % (vA, vr(vY, 4)))
        a("global_store_dwordx4 v%d, %s, s[18:19] offset:16" % (vA, vr(vY + 4, 4)))
    if diagpad:
        def spin(label):
            a("%s:" % label)
            a("s_memrealtime s[58:59]")
            a("s_waitcnt lgkmcnt(0)")
            a("s_sub_u32 s58, s58, s40")
            a("s_cmp_lt_u32 s58, s56")
            a("s_cbranch_scc1 %s" % label)

        a("s_mov_b32 s56, %d" % (diagpad * 100))
        if diagg:
            lo, hi = int(diagg[1]), int(diagg[2])
            a("s_mov_b64 exec, 1")
            a("v_mov_b32 v%d, 120" % vA)
            a("v_mov_b32 v%d, s%d" % (vY, 40 + 2 * hi))
            a("v_mov_b32 v%d, s%d" % (vY + 1, 40 + 2 * lo))
            if diagg[0] == "m":
                a("v_not_b32 v%d, v%d" % (vY + 1, vY + 1))
            a("global_atomic_umax v%d, v%d, s[16:17]" % (vA, vY))
            a("global_atomic_umax v%d, v%d, s[16:17] offset:4" % (vA, vY + 1))
        spin("L_pad")
        if diagg:
            a("global_load_dwordx2 %s, v%d, s[16:17] sc1" % (vr(vY, 2), vA))
            a("s_waitcnt vmcnt(0)")
            a("v_readfirstlane_b32 s10, v%d" % vY)
            a("v_readfirstlane_b32 s11, v%d" % (vY + 1))
            a("s_nop 3")
            if diagg[0] == "m":
                a("s_not_b32 s11, s11")
            a("s_sub_u32 s10, s10, s11")
            a("s_sub_u32 s10, s10, %d" % (diagsub * 100))
            a("s_max_i32 s10, s10, 0")
            a("s_min_u32 s10, s10, 2000")
            a("s_mul_i32 s10, s10, 10")
            a("s_add_u32 s56, s56, s10")
            spin("L_pad2")
    a("s_endpgm")

    def count_in():
        a("; the barrier opens once the loader has ended, that is after its stores completed")
        a("s_waitcnt vmcnt(0)")
        a("s_barrier")
        a("s_mov_b64 exec, 1")
        a("v_mov_b32 v%d, 1" % vVal)
        a("global_atomic_add v%d, v%d, s[16:17]" % (vCntA, vVal))

    if flag:
        vFl = 42
        a("L_rank0:")
        a("s_add_u32 %s, s36, s2" % sT0)
        a("s_lshl_b64 exec, 1, %s" % sT0)
        a("s_lshr_b32 %s, s36, 6" % sT0)
        a("v_add3_u32 v%d, v%d, %s, 1" % (vB, vTwo, sT0))
        a("global_store_dword v%d, v%d, s[18:19] sc1" % (vTkA, vB))
        a("s_mov_b64 exec, -1")
        a("global_load_dword v%d, v%d, s[16:17] offset:%d nt" % (vPeer, vPeerA, DBG_PROG))
        a("s_waitcnt vmcnt(3)")
        a("s_branch L_ranked0")
        a("L_rank1:")
        a("s_lshl_b64 exec, 0xff, s36")
        a("global_load_dword v%d, v%d, s[18:19] sc1" % (vFl, vTkA))
        a("s_mov_b64 exec, -1")
        a("global_load_dword v%d, v%d, s[16:17] offset:%d nt" % (vPeer2, vPeerA, DBG_PROG))
        a("s_waitcnt vmcnt(3)")
        a("s_branch L_ranked1")
        a("L_count:")
        a("s_lshl_b64 exec, 0xff, s36")
        a("s_lshr_b32 %s, s36, 6" % sT0)
        a("v_sub_u32 v%d, v%d, v%d" % (vB, vFl, vTwo))
        a("v_cmp_lt_u32 vcc, %s, v%d" % (sT0, vB))
        a("s_mov_b64 exec, -1")
        a("s_add_u32 s36, s36, 8")
        a("s_bcnt1_i32_b64 %s, vcc" % sT0)
        a("s_lshl_b32 %s, %s, 1" % (sT0, sT0))
        a("v_mov_b32 v%d, %s" % (vTk, sT0))
        a("s_branch L_counted")
    else:
        a("; arrival order of the eight workgroup groups at a checkpoint, in steps of 2")
        a("L_rank0:")
        a("global_atomic_add v%d, v%d, v%d, s[16:17] sc0" % (vTk, vTkA, vTwo))
        a("v_add_u32 v%d, 4, v%d" % (vTkA, vTkA))
        a("s_mov_b64 exec, -1")
        a("global_load_dword v%d, v%d, s[16:17] offset:%d nt" % (vPeer, vPeerA, DBG_PROG))
        a("s_waitcnt vmcnt(3)")
        a("s_branch L_ranked0")

    a("L_help:")
    a("s_cmp_lg_u32 %s, 0" % sSlow)
    a("s_cbranch_scc1 L_fin")
    count_in()
    a("s_branch L_fin")

    a("L_slow:")
    pub_ml("sc1")
    count_in()
    a("L_cnt:")
    bound()
    a("global_load_dword v%d, v%d, s[16:17] sc1" % (vPeer, vCntA))
    a("s_waitcnt vmcnt(0)")
    a("v_readfirstlane_b32 %s, v%d" % (sT0, vPeer))
    a("s_nop 1")
    a("s_cmp_ge_u32 %s, %d" % (sT0, S))
    a("s_cbranch_scc0 L_cnt")
    a("s_mov_b64 exec, -1")
    a("L_ml_again:")
    get_ml()
    bound()
    a("s_waitcnt vmcnt(0)")
    a("s_branch L_ml")

    vSt, vRdK, vLane, vRd, vMX, vMY, vWM, vNmc, vA, vB, vWO0, vWO1, vWL = range(1, 14)
    vM, vL = 14, 15
    vQ, vO, vT, vXY, vD, vK, vVt, vS = 16, 20, 28, 30, 40, 56, 72, 76
    sI, sOwn, sMask = "s21", "s36", "s35"
    NT = G // 2

    def fold(part, t, da, db):
        src, own, ror, bank = ((da + 1, da, 12, 1), (da + 3, da + 2, 12, 4),
                               (db, db + 1, 4, 2), (db + 2, db + 3, 4, 8))[part]
        a("v_add_f32_dpp v%d, v%d, v%d row_ror:%d row_mask:0xf bank_mask:0x%x"
          % (t, src, own, ror, bank))

    def fold_c(t):
        a("v_add_f32_dpp v%d, v%d, v%d row_ror:8 %s" % (t, t, t, DPPF))

    def advance(rd):
        a("v_add_u32 v%d, %d, v%d" % (rd, N * 1024, rd))
        a("v_and_b32 v%d, %d, v%d" % (rd, RING - 1, rd))

    a("L_cons:")
    a("s_load_dwordx2 s[4:5], s[0:1], 0            ; q")
    a("s_load_dwordx4 s[8:11], s[0:1], 24")
    a("v_and_b32 v%d, 63, v0" % vLane)
    a("s_lshr_b32 %s, %s, 6" % (sW, sW))
    a("s_sub_u32 %s, %s, 1" % (sW, sW))
    a("s_mov_b32 %s, %s" % (sC, f32(CS)))
    a("v_lshrrev_b32 v%d, 4, v%d" % (vA, vLane))
    a("v_lshlrev_b32 v%d, 6, v%d" % (vA, vA))
    a("v_and_b32 v%d, 3, v%d" % (vB, vLane))
    a("v_bfe_u32 v%d, v%d, 2, 2" % (vWM, vLane))
    a("v_lshl_add_u32 v%d, v%d, 4, v%d" % (vNmc, vB, vA))
    a("v_lshl_add_u32 v%d, v%d, 8, v%d" % (vRdK, vWM, vNmc))
    a("v_lshl_add_u32 v%d, v%d, 8, v%d" % (vA, vB, vA))
    a("v_lshl_add_u32 v%d, v%d, 4, v%d" % (vA, vWM, vA))
    a("v_lshlrev_b32 v%d, 4, v%d" % (vRd, vLane))
    a("s_lshl_b32 %s, %s, 10" % (sT0, sP))
    a("s_lshl_b32 %s, %s, 8" % (sT1, sP))
    a("v_add_u32 v%d, %s, v%d" % (vA, sT0, vA))
    a("v_add_u32 v%d, %s, v%d" % (vNmc, sT1, vNmc))
    a("v_and_b32 v%d, 0xf0, v%d" % (vB, vRd))
    a("v_add_u32 v%d, %s, v%d" % (vB, sT1, vB))
    for r in range(4):
        a("v_mov_b32 v%d, 0" % (vVt + r))
    a("s_or_b32 %s, %s, %s" % (sOwn, sS, sW))
    a("s_waitcnt lgkmcnt(0)")
    if lazy:
        a("s_barrier")
    a("global_load_dwordx4 %s, v%d, s[4:5]" % (vr(vQ, 4), vA))
    a("s_cbranch_scc1 L_notree")
    a("global_load_dwordx4 %s, v%d, s[8:9]" % (vr(vK, 4), vNmc))
    a("global_load_dwordx4 %s, v%d, s[10:11]" % (vr(vVt, 4), vB))
    a("s_load_dword %s, s[12:13], 0" % sMask)
    a("L_notree:")
    if warm:
        a("; fetch code that first runs late, one region per wave")
        a("s_mov_b64 exec, 0")
        for c in range(C - 1):
            a("s_cmp_eq_u32 %s, %d" % (sW, c))
            a("s_cbranch_scc1 L_hop%d" % c)
        a("s_branch L_hop3")
        a("L_back:")
        a("s_mov_b64 exec, -1")
    a("s_lshl_b32 %s, %s, 10" % (sT0, sW))
    a("v_and_b32 v%d, 32, v%d" % (vA, vLane))
    a("v_lshlrev_b32 v%d, 2, v%d" % (vA, vA))
    a("v_xor_b32 v%d, v%d, v%d" % (vRd, vRd, vA))
    a("v_add_u32 v%d, %s, v%d" % (vRd, sT0, vRd))
    a("v_and_b32 v%d, 8, v%d" % (vA, vLane))
    a("v_lshlrev_b32 v%d, 4, v%d" % (vA, vA))
    a("v_xor_b32 v%d, v%d, v%d" % (vRdK, vRdK, vA))
    a("v_add_u32 v%d, %s, v%d" % (vRdK, sT0, vRdK))
    a("s_lshl_b32 %s, %s, 8" % (sT0, sW))
    a("s_add_u32 %s, %s, %d" % (sT0, sT0, ldsL))
    a("v_lshl_add_u32 v%d, v%d, 2, %s" % (vWL, vLane, sT0))
    a("v_and_b32 v%d, 3, v%d" % (vWM, vLane))
    a("v_lshlrev_b32 v%d, 4, v%d" % (vWM, vWM))
    a("v_add_u32 v%d, %d, v%d" % (vWM, ldsM, vWM))
    a("v_bfe_u32 v%d, v%d, 4, 1" % (vA, vLane))
    a("v_bfe_u32 v%d, v%d, 5, 1" % (vB, vLane))
    a("v_lshl_add_u32 v%d, v%d, 1, v%d" % (vA, vA, vB))
    a("v_and_b32 v%d, 15, v%d" % (vB, vLane))
    a("v_lshl_add_u32 v%d, v%d, 2, v%d" % (vA, vB, vA))
    a("s_lshl_b32 %s, %s, 11" % (sT0, sW))
    a("s_add_u32 %s, %s, %d" % (sT0, sT0, ldsO))
    a("v_lshl_add_u32 v%d, v%d, 2, %s" % (vWO0, vA, sT0))
    a("v_xor_b32 v%d, 0x80, v%d" % (vWO1, vWO0))
    a("v_and_b32 v%d, 8, v%d" % (vA, vLane))
    a("v_lshlrev_b32 v%d, 1, v%d" % (vA, vA))
    a("v_mov_b32 v%d, 0xffff" % vB)
    a("v_lshlrev_b32 v%d, v%d, v%d" % (vA, vA, vB))
    a("v_bfe_i32 v%d, v%d, 2, 1" % (vB, vLane))
    a("v_and_b32 v%d, v%d, v%d" % (vMY, vA, vB))
    a("v_xor_b32 v%d, v%d, v%d" % (vMX, vA, vMY))
    a("v_mov_b32 v%d, 0xff800000" % vM)
    a("v_mov_b32 v%d, v%d" % (vSt, vM))
    a("s_mov_b32 %s, 0" % sI)
    a("s_cmp_lg_u32 %s, 0" % sOwn)
    a("s_barrier")
    a("s_waitcnt vmcnt(0) lgkmcnt(0)")
    a("s_cbranch_scc1 L_k_in")
    a("v_mfma_f32_16x16x32_bf16 %s, %s, %s, 0" % (vr(vD, 4), vr(vK, 4), vr(vQ, 4)))
    a("s_lshr_b32 %s, %s, 3" % (sT0, sP))
    a("s_lshl_b32 %s, %s, 4" % (sT0, sT0))
    a("s_lshr_b32 %s, %s, %s" % (sMask, sMask, sT0))
    a("s_lshl_b32 %s, %s, 16" % (sMask, sMask))
    a("v_mov_b32 v%d, %s" % (vA, sMask))
    a("v_sub_f32 v%d, 1.0, v%d" % (vA, vA))
    a("v_mul_f32 v%d, %s, v%d           ; (1 - mask) * -1e9 / scale" % (vA, f32(-1e9 * 128 ** 0.5), vA))
    for part in range(4):
        fold(part, vM, vD, vD)
    fold_c(vM)
    a("v_add_f32 v%d, v%d, v%d" % (vM, vM, vA))
    a("s_mov_b64 exec, 0xffff")
    a("v_mov_b32 v%d, v%d" % (vSt, vM))
    a("s_mov_b64 exec, -1")
    a("s_branch L_k_in")

    a("; scores of all keys into v[%d:%d], running per-lane max" % (vS, vS + 63))
    a("L_k:")
    l0 = a.mark()
    a("s_barrier")
    a("L_k_in:")
    for j in range(G):
        a("ds_read_b128 %s, v%d offset:%d" % (vr(vK + 4 * j, 4), vRdK, j * 4096))
    advance(vRdK)
    for j in range(G):
        a("s_waitcnt lgkmcnt(%d)" % (G - 1 - j))
        a("v_mfma_f32_16x16x32_bf16 %s, %s, %s, 0"
          % (vr(vD + 4 * j, 4), vr(vK + 4 * j, 4), vr(vQ, 4)))
    for part in range(4):
        for i in range(NT):
            fold(part, vT + i, vD + 8 * i, vD + 8 * i + 4)
    for i in range(NT):
        fold_c(vT + i)
    a("s_set_gpr_idx_on %s, gpr_idx(DST)" % sI)
    for i in range(NT):
        a("v_mov_b32 v%d, v%d" % (vS + i, vT + i))
    a("s_set_gpr_idx_off")
    a("v_max3_f32 v%d, v%d, v%d, v%d" % (vM, vM, vT, vT + 1))
    a("s_add_u32 %s, %s, %d" % (sI, sI, NT))
    a("s_cmp_lt_u32 %s, 64" % sI)
    a("s_cbranch_scc1 L_k")
    a.loop_check(l0)

    def prep():
        a("s_set_gpr_idx_on %s, gpr_idx(SRC0)" % sI)
        for i in range(NT):
            a("v_mov_b32 v%d, v%d" % (vT + i, vS + i))
        a("s_set_gpr_idx_off")
        for i in range(NT):
            a("v_fma_f32 v%d, v%d, %s, v%d" % (vT + i, vT + i, sC, vNmc))
        for i in range(NT):
            a("v_exp_f32 v%d, v%d" % (vT + i, vT + i))
        a("s_add_u32 %s, %s, %d" % (sI, sI, NT))
        a("s_cmp_lt_u32 %s, %d" % (sI, 64 - NT))
        for i in range(NT):
            a("v_add_f32 v%d, v%d, v%d" % (vL, vL, vT + i))
        for i in range(NT):
            a("v_cvt_pk_bf16_f32 v%d, v%d, v%d" % (vT + i, vT + i, vT + i))
        for i in range(NT):
            x, p = vXY + 4 * i, vT + i
            a("v_and_b32 v%d, v%d, v%d" % (x, p, vMX))
            a("v_and_b32 v%d, v%d, v%d" % (x + 3, p, vMY))
            a("v_and_b32_dpp v%d, v%d, v%d row_ror:4 %s" % (x + 1, p, vMY, DPPF))
            a("v_and_b32_dpp v%d, v%d, v%d row_ror:4 %s" % (x + 2, p, vMX, DPPF))

    def pv(js, adv):
        for j in js:
            a("ds_read_b128 %s, v%d offset:%d" % (vr(vK + 4 * j, 4), vRd, j * 4096))
        if adv:
            advance(vRd)
        for j in js:
            a("s_waitcnt lgkmcnt(%d)" % (js[-1] - j))
            for k in range(2):
                a("v_mfma_f32_16x16x16_bf16 %s, %s, %s, %s"
                  % (vr(vO + 4 * k, 4), vr(vXY + 2 * j, 2), vr(vK + 4 * j + 2 * k, 2),
                     vr(vO + 4 * k, 4)))

    a("v_max_f32_dpp v%d, v%d, v%d row_ror:4 %s" % (vM, vM, vM, DPPF))
    rows_reduce("v_max_f32", vM, vB)
    a("v_lshl_add_u32 v%d, %s, 2, v%d" % (vA, sW, vWM))
    a("ds_write_b32 v%d, v%d" % (vA, vM))
    a("s_mov_b32 %s, 0" % sI)
    a("s_waitcnt lgkmcnt(0)")
    a("s_barrier")
    a("ds_read_b128 %s, v%d" % (vr(vD, 4), vWM))
    a("s_waitcnt lgkmcnt(0)")
    a("v_max3_f32 v%d, v%d, v%d, v%d" % (vM, vD, vD + 1, vD + 2))
    a("v_max_f32 v%d, v%d, v%d" % (vM, vM, vD + 3))
    a("v_mul_f32 v%d, %s, v%d" % (vNmc, f32(-CS), vM))
    a("v_fma_f32 v%d, v%d, %s, v%d" % (vA, vSt, sC, vNmc))
    a("v_exp_f32 v%d, v%d" % (vA, vA))
    a("v_cmp_ne_u32 vcc, 0, v%d" % vMX)
    a("v_cvt_pk_bf16_f32 v%d, v%d, v%d" % (vB, vA, vA))
    a("v_and_b32 v%d, v%d, v%d" % (vXY, vB, vMX))
    a("v_and_b32 v%d, v%d, v%d" % (vXY + 1, vB, vMY))
    a("v_cndmask_b32 v%d, 0, v%d, vcc" % (vL, vA))
    for k in range(2):
        a("v_mfma_f32_16x16x16_bf16 %s, %s, %s, 0"
          % (vr(vO + 4 * k, 4), vr(vXY, 2), vr(vVt + 2 * k, 2)))
    prep()
    e0 = a.mark()
    a("s_branch L_v_in")
    if warm:
        a("L_hop3:")
        a("s_branch %s" % ("L_hop5" if warm == 2 else "L_back"))

    a("L_v:")
    l0 = a.mark()
    prep()
    a("s_barrier")
    a("L_v_in:")
    e1 = a.mark()
    pv(list(range(G)), True)
    a("s_cbranch_scc1 L_v")
    a.loop_check(l0)
    a.edge_check(e0, e1)
    prep()
    a("ds_write_b32 v%d, v%d" % (vWL, vL))
    a("s_waitcnt lgkmcnt(0)")
    a("s_barrier")
    pv(list(range(G - 1)), False)
    a("s_barrier")
    pv([G - 1], False)
    for r in range(8):
        a("ds_write_b32 v%d, v%d offset:%d"
          % (vWO1 if r >= 4 else vWO0, vO + r, (r % 4) * 512 + (r // 4) * 256))
    a("s_waitcnt lgkmcnt(0)")
    a("s_barrier")
    a("L_last:")
    a("s_endpgm")

    nvg = max(a.max_v(), vS + 64)
    acc = (nvg + 3) // 4 * 4
    out = HEADER
    out += "; @launch grid=(%d,1,1) block=(%d,1,1) lds=%d\n" % (NWG, 64 * (C + 2), LDS)
    out += DOC
    out += '.amdgcn_target "amdgcn-amd-amdhsa--gfx950"\n.text\n'
    out += ".globl %s_kernel\n.p2align 8\n.type %s_kernel,@function\n" % (NAME, NAME)
    out += a.text()
    out += """.section .rodata,"a"
.p2align 6
.amdhsa_kernel %s_kernel
  .amdhsa_next_free_vgpr %d
  .amdhsa_next_free_sgpr 64
  .amdhsa_accum_offset %d
  .amdhsa_group_segment_fixed_size 0
  .amdhsa_kernarg_size 72
  .amdhsa_user_sgpr_count 2
  .amdhsa_user_sgpr_kernarg_segment_ptr 1
  .amdhsa_system_sgpr_workgroup_id_x 1
.end_amdhsa_kernel
""" % (NAME, nvg, acc)
    return out


if __name__ == "__main__":
    kw = {}
    for arg in sys.argv[2:]:
        k, v = arg.split("=")
        kw[k] = int(v) if v.lstrip("-").isdigit() else v
    open(sys.argv[1], "w").write(gen(**kw))
```

```python
import math
import struct
import sys

from asmlib import Asm

NAME = "standalone__tree_speculative_verify_tree_attention_over_candidate_token_tree__decode"
HEADER = open("cdna_kernels/%s.s.ref" % NAME).read().split("; Override launch")[0]
DPPF = "row_mask:0xf bank_mask:0xf"

DOC = """\
;              neighbours (speed only), and gathers 32 output columns from the pair's 16 slices.
"""


def f32(x):
    return "0x%08x" % struct.unpack("<I", struct.pack("<f", x))[0]


def vr(a, n):
    return "v[%d:%d]" % (a, a + n - 1)


def gen(depths=(23, 22, 21, 20, 19, 18, 17, 16), D0=20, rnd=5, bias=2, gm=(5, 21, 37, 51), gg=2,
        sbits=(14, 15, 16, 18), tbits=(21, 19, 20, 22, 17), xs=((1, 12), (2, 13)), jb=(12, 13),
        rdpos=14, fixpos=1, smooth=0, pad=0, flag=0, ctr=0, lazy=0, wake=0, rounds=3, pre=1, warm=0, stamp=0, diagpad=0, diagg=None, diagsub=0, force=0):
    N, C, G, S, T = 16, 4, 4, 16, 32
    NWG = 16 * S
    RING = 65536
    if isinstance(depths, str):
        depths = tuple(int(x) for x in depths.split("."))
    if isinstance(gm, str):
        gm = tuple(int(x) for x in gm.split("."))
    assert len(depths) == 8 and max(depths) <= 32 and N <= D0 <= 32
    assert sorted(list(jb) + list(sbits) + list(tbits)) == list(range(12, 23))
    assert all(b >= 12 and b not in sbits for _, b in xs)
    CS = 128 ** -0.5 * math.log2(math.e)
    timed = stamp or diagpad
    a = Asm()

    ldsO = RING
    ldsL = ldsO + C * 2048
    ldsM = ldsL + C * 256
    ldsC = ldsM + 64
    LDS = ldsC + 16
    WS_ML = 0x100000
    DBG_RANK, DBG_PROG = 64, 128

    sW, sP, sS, sCnt, sC, sT0, sT1, sIdx = "s3", "s6", "s7", "s22", "s23", "s32", "s33", "s34"

    def stamp_at(i):
        if timed:
            a("s_memrealtime s[%d:%d]" % (40 + 2 * i, 41 + 2 * i))

    def rows_reduce(op, x, tmp):
        for swap in ("v_permlane16_swap_b32", "v_permlane32_swap_b32"):
            a("v_mov_b32 v%d, v%d" % (tmp, x))
            a("%s v%d, v%d" % (swap, x, tmp))
            a("%s v%d, v%d, v%d" % (op, x, x, tmp))

    def runs(bits):
        i = 0
        while i < len(bits):
            n = 1
            while (i + n < len(bits) and bits[i + n][0] == bits[i][0] + n
                   and bits[i + n][1] == bits[i][1] + n):
                n += 1
            yield bits[i][0], n, bits[i][1]
            i += n

    def pair_index():
        a("s_lshl_b32 %s, %s, 4" % (sIdx, sP))
        a("s_add_u32 %s, %s, %s" % (sIdx, sIdx, sS))

    a("%s_kernel:" % NAME)
    a("s_load_dwordx2 s[24:25], s[0:1], 8          ; k_cache")
    a("s_load_dwordx2 s[28:29], s[0:1], 16         ; v_cache")
    a("s_load_dwordx8 s[12:19], s[0:1], 40")
    stamp_at(0)
    a("v_readfirstlane_b32 %s, v0" % sW)
    a("s_cmp_ge_u32 s2, %d" % NWG)
    a("s_cbranch_scc1 L_end")
    a("s_and_b32 %s, s2, 15" % sP)
    a("s_lshr_b32 %s, s2, 4" % sS)
    a("s_cmp_eq_u32 %s, 0" % sW)
    a("s_cbranch_scc1 L_loader")
    if pre:
        a("; one wave of the first workgroups pulls the code into L2")
        a("s_sub_u32 %s, %s, 64" % (sT0, sW))
        a("s_or_b32 %s, %s, %s" % (sT0, sT0, sS))
        a("s_cbranch_scc1 L_nopre")
        a("s_getpc_b64 s[36:37]")
        a("L_pc:")
        a("v_lshlrev_b32 v1, 7, v0")
        a("v_and_b32 v1, 0x1fff, v1")
        if wake:
            for k in range(4):
                a("global_load_dword v38, v1, s[36:37]")
                a("v_add_u32 v1, 0x2000, v1")
        else:
            a("v_min_u32 v1, L_last-L_pc, v1")
            a("global_load_dword v38, v1, s[36:37]")
        a("L_nopre:")
    a("s_cmp_eq_u32 %s, %d" % (sW, 64 * (C + 1)))
    a("s_cbranch_scc1 L_ctrl")
    a("s_branch L_cons")

    vOff, vTab, vA, vB, vLvA, vLv, vOrd0, vOrd1, vPubO, vCntA = range(1, 11)
    vAcc, vBuf = 12, 20
    sK, sTK, sU, sLv = "s20", "s38", "s37", "s5"
    a("L_loader:")
    a("s_setprio 3")
    a("s_lshl_b32 %s, %s, 23" % (sTK, sP))
    for src, n, dst in runs(list(enumerate(sbits)) + list(xs)):
        a("s_bfe_u32 %s, %s, 0x%x" % (sT0, sS, n << 16 | src))
        a("s_lshl_b32 %s, %s, %d" % (sT0, sT0, dst))
        a("s_xor_b32 %s, %s, %s" % (sTK, sTK, sT0))
    a("s_mov_b32 %s, %s" % (sK, sTK))
    a("s_mov_b32 s26, 0x8000000")
    a("s_mov_b32 s27, 0x00020000")
    a("s_mov_b32 m0, 0")
    a("v_lshlrev_b32 v%d, 4, v0" % vA)
    a("v_and_b32 v%d, 32, v0" % vB)
    a("v_lshlrev_b32 v%d, 2, v%d" % (vB, vB))
    a("v_xor_b32 v%d, v%d, v%d" % (vOff, vA, vB))
    a("v_mov_b32 v%d, %s" % (vTab, sTK))
    for src, n, dst in runs(list(enumerate(tbits))):
        a("v_bfe_u32 v%d, v0, %d, %d" % (vA, src, n))
        a("v_lshlrev_b32 v%d, %d, v%d" % (vA, dst, vA))
        a("v_xor_b32 v%d, v%d, v%d" % (vTab, vTab, vA))

    def load(j):
        a("buffer_load_dwordx4 v%d, s[24:27], %s offen offset:%d nt lds" % (vOff, sK, (j % 4) * 1024))
        if j % 4 == 3:
            a("s_add_u32 m0, m0, 4096")
            if j + 1 < N:
                q = (j + 1) // 4
                a("s_xor_b32 %s, %s, %d" % (sK, sTK, (q & 1) << jb[0] | (q >> 1) << jb[1]))

    a("s_waitcnt lgkmcnt(0)")
    for j in range(N):
        load(j)
    a("s_xor_b32 %s, %s, %d" % (sTK, sTK, 1 << tbits[0]))
    a("s_mov_b32 %s, %s" % (sK, sTK))
    for j in range(D0 - N):
        load(j)
    a("; addresses for the workgroup's final sum, lane = (head, 16-byte column)")
    pair_index()
    a("v_mov_b32 v%d, %d" % (vLvA, ldsC))
    a("v_mov_b32 v%d, 4" % vLv)
    a("s_lshl_b32 %s, %s, 2" % (sT0, sP))
    a("v_mov_b32 v%d, %s" % (vCntA, sT0))
    a("v_lshrrev_b32 v%d, 4, v0" % vA)
    a("v_and_b32 v%d, 15, v0" % vB)
    a("v_and_b32 v%d, 1, v0" % vOrd0)
    a("v_mul_u32_u24 v%d, 24, v%d" % (vOrd0, vOrd0))
    a("v_bfe_u32 v%d, v0, 1, 3" % vOrd1)
    a("v_add_u32 v%d, v%d, v%d" % (vOrd0, vOrd0, vOrd1))
    a("v_lshl_add_u32 v%d, v%d, 5, v%d" % (vOrd0, vA, vOrd0))
    a("v_lshlrev_b32 v%d, 4, v%d" % (vOrd0, vOrd0))
    a("v_add_u32 v%d, %d, v%d" % (vOrd0, ldsO, vOrd0))
    a("v_xor_b32 v%d, 0x80, v%d" % (vOrd1, vOrd0))
    a("s_lshl_b32 %s, %s, 11" % (sT0, sIdx))
    a("v_lshl_add_u32 v%d, v%d, 5, v%d" % (vPubO, vA, vB))
    a("v_lshl_add_u32 v%d, v%d, 4, %s" % (vPubO, vPubO, sT0))
    a("s_mov_b32 %s, 2" % sU)
    if timed:
        a("v_mov_b32 v%d, s40" % vA)
        a("ds_write_b32 v%d, v%d offset:8" % (vLvA, vA))
        a("s_waitcnt vmcnt(%d)" % (D0 - 1))
        a("s_memrealtime s[44:45]")
        a("s_waitcnt lgkmcnt(0)")
        a("v_mov_b32 v%d, s44" % vA)
        a("ds_write_b32 v%d, v%d offset:12" % (vLvA, vA))
    for j in range(D0 - N, N):
        a("s_waitcnt vmcnt(%d)" % (D0 - 1))
        load(j)
        if lazy and j == D0 - N:
            a("s_barrier")

    a("L_next:")
    a("v_readlane_b32 %s, v%d, %s" % (sTK, vTab, sU))
    a("s_waitcnt lgkmcnt(0)")
    a("v_readfirstlane_b32 %s, v%d" % (sLv, vLv))
    a("s_and_b32 m0, m0, %d" % (RING - 1))
    a("s_cmp_eq_u32 %s, %d" % (sU, T))
    a("s_cselect_b64 s[24:25], s[28:29], s[24:25]")
    a("s_add_u32 %s, %s, 1" % (sU, sU))
    a("s_mov_b32 %s, %s" % (sK, sTK))

    def block(lv):
        d = depths[lv]
        a("; %d loads in flight; piece u-2 has landed at the barrier" % d)
        for j in range(N):
            a("s_waitcnt vmcnt(%d)" % (d - 1))
            load(j)
            if j == max(0, (max(depths) if fixpos else d) - N - 1):
                a("s_barrier")
            if j == rdpos:
                a("ds_read_b32 v%d, v%d" % (vLv, vLvA))
        a("s_cmp_lt_u32 %s, %d" % (sU, 2 * T))
        a("s_cbranch_scc1 L_next")
        if lv != 7:
            a("s_branch L_drain")
            if warm == 1 and lv % 3 == 0:
                a("L_hop%d:" % (lv // 3))
                a("s_branch L_back")
            if warm == 2 and lv % 2 == 0:
                a("L_hop%s:" % "0125"[lv // 2])
                a("s_branch L_back")

    def tree(lo, bit):
        if bit < 0:
            block(lo)
            return
        a("s_bitcmp1_b32 %s, %d" % (sLv, bit))
        a("s_cbranch_scc1 L_lv%d" % (lo + (1 << bit)))
        tree(lo, bit - 1)
        a("L_lv%d:" % (lo + (1 << bit)))
        tree(lo + (1 << bit), bit - 1)

    tree(0, 2)
    a("L_drain:")
    a("s_waitcnt vmcnt(%d)" % N)
    a("s_barrier")
    a("s_waitcnt vmcnt(%d)" % C)
    a("s_barrier")
    a("ds_read_b32 v%d, v%d offset:4" % (vLv, vLvA))
    a("s_waitcnt vmcnt(0)")
    a("s_barrier")
    a("s_waitcnt lgkmcnt(0)")
    a("v_readfirstlane_b32 %s, v%d" % (sLv, vLv))
    a("s_nop 1")
    a("s_cmp_lg_u32 %s, 0" % sLv)
    a("s_barrier")
    for k in range(2):
        for c in range(C):
            a("ds_read_b128 %s, v%d offset:%d"
              % (vr(vBuf + 16 * k + 4 * c, 4), vOrd1 if k else vOrd0, c * 2048))

    def pub_o(k, flags):
        a("global_store_dwordx4 v%d, %s, s[18:19] offset:%d %s"
          % (vPubO, vr(vAcc + 4 * k, 4), 256 * k, flags))

    for k in range(2):
        for c in range(1, C):
            a("s_waitcnt lgkmcnt(%d)" % (7 - 4 * k - c))
            for r in (0, 2):
                prev = vBuf + 16 * k + r if c == 1 else vAcc + 4 * k + r
                a("v_pk_add_f32 %s, %s, %s"
                  % (vr(vAcc + 4 * k + r, 2), vr(prev, 2), vr(vBuf + 16 * k + 4 * c + r, 2)))
        for r in range(4):
            a("v_min_u32 v%d, -2, v%d" % (vAcc + 4 * k + r, vAcc + 4 * k + r))
        pub_o(k, "")
    a("s_cbranch_scc0 L_sent")
    pub_o(0, "sc1")
    pub_o(1, "sc1")
    a("L_sent:")
    a("s_waitcnt vmcnt(0)")
    a("L_end:")
    a("s_endpgm")

    vLane, vA, vB, vSlot, vPeerA, vPeer, vVal, vTk, vTkA, vTwo, vCA, vLrd, vMrd = range(1, 14)
    vOut, vF = 14, 15
    vML, vMLi, vX, vY = 16, 18, 20, 28
    vPubML, vInO, vInML, vCntA, vSt = 36, 37, 38, 39, 40
    sProg, sRnd, sSlow, sRep, sB = "s4", "s8", "s9", "s10", "s21"
    vPeer2 = 41
    for _ in range(pad):
        a("s_nop 0")
    a("L_ctrl:")
    a("v_and_b32 v%d, 63, v0" % vLane)
    pair_index()
    a("v_and_b32 v%d, 31, v%d" % (vPeerA, vLane))
    a("v_lshlrev_b32 v%d, 2, v%d" % (vPeerA, vPeerA))
    a("s_lshl_b32 %s, %s, 11" % (sT0, sIdx))
    a("v_lshl_add_u32 v%d, v%d, 4, %s" % (vA, vLane, sT0))
    a("s_lshl_b32 %s, %s, 7" % (sT1, sIdx))
    a("s_add_u32 %s, %s, %d" % (sT1, sT1, WS_ML))
    a("v_and_b32 v%d, 7, v%d" % (vB, vLane))
    a("v_lshl_add_u32 v%d, v%d, 4, %s" % (vB, vB, sT1))
    for r in range(10):
        a("v_mov_b32 v%d, -1" % (vMLi + r))
    a("s_waitcnt lgkmcnt(0)")
    stamp_at(1)
    if lazy:
        a("s_barrier")
    a("global_load_dword v%d, v%d, s[16:17] offset:%d" % (vPeer, vPeerA, DBG_PROG))
    a("global_store_dwordx4 v%d, %s, s[18:19]" % (vA, vr(vX, 4)))
    a("global_store_dwordx4 v%d, %s, s[18:19] offset:1024" % (vA, vr(vX, 4)))
    a("global_store_dwordx4 v%d, %s, s[18:19]" % (vB, vr(vX, 4)))
    a("s_getreg_b32 %s, hwreg(HW_REG_XCC_ID, 0, 4)" % sT0)
    a("s_and_b32 %s, %s, 1" % (sRnd, sT0))
    a("s_mul_i32 %s, %s, %d" % (sRnd, sRnd, 2 * bias))
    top = 16 - ctr if flag else 7
    a("s_add_u32 %s, %s, %d" % (sRnd, sRnd, rnd - bias + top * gg // 2))
    a("s_lshl_b32 %s, %s, 3" % (sT0, sT0))
    a("s_and_b32 %s, s2, 7" % sProg)
    a("s_or_b32 %s, %s, %s" % (sProg, sProg, sT0))
    a("s_lshr_b32 %s, s2, 3" % sT0)
    a("s_lshl_b32 %s, %s, 2" % (sT0, sT0))
    a("v_mov_b32 v%d, %s" % (vSlot, sT0))
    assert all(c % 2 == 1 for c in gm)
    a("s_cmp_lt_u32 s2, 8")
    a("s_cselect_b32 %s, 0x%x, 0" % (sRep, sum(1 << (c // 2) for c in gm)))
    if flag:
        assert all(y - x >= 4 for x, y in zip(gm, gm[1:]))
        a("v_mov_b32 v%d, %d" % (vTk, top))
        a("v_mul_u32_u24 v%d, %d, v%d" % (vTkA, flag, vLane))
        a("v_add_u32 v%d, %d, v%d" % (vTkA, 0x180000, vTkA))
        a("s_mov_b32 s36, 0")
        a("s_cbranch_scc0 L_nosnap")
        a("global_load_dword v%d, v%d, s[18:19] sc1" % (vTwo, vTkA))
        a("L_nosnap:")
    else:
        a("v_mov_b32 v%d, 7" % vTk)
        a("v_mov_b32 v%d, %d" % (vTkA, DBG_RANK))
        a("v_mov_b32 v%d, 2" % vTwo)
    a("v_mov_b32 v%d, %d" % (vCA, ldsC))
    a("v_mov_b32 v%d, 4" % vF)
    a("ds_write_b32 v%d, v%d" % (vCA, vF))
    a("s_mov_b32 %s, %s" % (sC, f32(CS)))
    a("s_lshl_b32 %s, %s, 2" % (sT0, sP))
    a("v_mov_b32 v%d, %s" % (vCntA, sT0))
    a("v_lshrrev_b32 v%d, 4, v%d" % (vOut, vLane))
    a("v_and_b32 v%d, 15, v%d" % (vLrd, vLane))
    a("v_lshlrev_b32 v%d, 6, v%d" % (vLrd, vLrd))
    a("v_lshl_add_u32 v%d, v%d, 2, v%d" % (vLrd, vOut, vLrd))
    a("v_add_u32 v%d, %d, v%d" % (vLrd, ldsL, vLrd))
    a("v_lshlrev_b32 v%d, 4, v%d" % (vMrd, vOut))
    a("v_add_u32 v%d, %d, v%d" % (vMrd, ldsM, vMrd))
    a("v_lshl_add_u32 v%d, v%d, 3, %s" % (vPubML, vOut, sT1))
    a("v_lshrrev_b32 v%d, 2, v%d" % (vInML, vLane))
    a("v_and_b32 v%d, 3, v%d" % (vF, vLane))
    a("s_lshl_b32 %s, %s, 8" % (sT0, sP))
    a("s_add_u32 %s, %s, %s" % (sT0, sT0, sS))
    a("s_lshl_b32 %s, %s, 7" % (sT0, sT0))
    a("v_lshl_add_u32 v%d, v%d, 7, v%d" % (vInO, vInML, vF))
    a("v_lshl_add_u32 v%d, v%d, 4, %s" % (vInO, vInO, sT0))
    a("s_lshl_b32 %s, %s, 11" % (sT0, sP))
    a("s_lshr_b32 %s, %s, 2" % (sT1, sS))
    a("s_lshl_b32 %s, %s, 3" % (sT1, sT1))
    a("s_add_u32 %s, %s, %s" % (sT0, sT0, sT1))
    a("s_add_u32 %s, %s, %d" % (sT0, sT0, WS_ML))
    a("v_lshl_add_u32 v%d, v%d, 7, %s" % (vInML, vInML, sT0))
    a("v_lshrrev_b32 v%d, 5, v%d" % (vOut, vLane))
    a("v_lshl_add_u32 v%d, v%d, 2, v%d" % (vOut, vOut, vF))
    a("v_bfe_u32 v%d, v%d, 4, 1" % (vF, vLane))
    a("v_lshl_add_u32 v%d, v%d, 1, v%d" % (vOut, vOut, vF))
    a("s_lshl_b32 %s, %s, 6" % (sT0, sIdx))
    a("v_lshl_add_u32 v%d, v%d, 2, %s" % (vOut, vOut, sT0))
    a("s_mov_b32 %s, 0" % sB)
    if smooth:
        a("s_mov_b32 s11, 72")
    a("v_lshlrev_b32 v%d, 31, v%d" % (vPeer2, vLane))
    a("v_or_b32 v%d, 0x%x, v%d" % (vPeer2, top << 8 | 0xff, vPeer2))
    a("s_mov_b32 %s, 0x200000                ; bound on all polling rounds" % sCnt)
    a("s_waitcnt lgkmcnt(0)")
    if warm:
        a("s_mov_b64 exec, 0")
        a("s_branch L_hop4")
        a("L_back4:")
    a("s_mov_b64 exec, 1")
    a("s_barrier")
    a("s_waitcnt vmcnt(0)")
    a("s_branch L_ctl_in")

    def ctl(h):
        new, old = (vPeer, vPeer2)[h], (vPeer2, vPeer)[h]
        a("s_mov_b64 exec, 1")
        a("s_barrier")
        if h == 0:
            a("L_ctl_in:")
        if stamp and h == 1:
            a("s_memrealtime s[60:61]")
        a("s_add_u32 %s, %s, 0x10000" % (sT0, sProg))
        a("v_lshl_or_b32 v%d, v%d, 8, %s" % (vVal, vTk, sT0))
        a("global_store_dword v%d, v%d, s[16:17] offset:%d" % (vSlot, vVal, DBG_PROG))
        if h == 0 or flag:
            a("s_bitcmp1_b32 %s, %s" % (sRep, sB))
            a("s_cbranch_scc1 L_rank%d" % h)
        a("s_mov_b64 exec, -1")
        a("global_load_dword v%d, v%d, s[16:17] offset:%d nt" % (new, vPeerA, DBG_PROG))
        a("s_waitcnt vmcnt(2)")
        a("L_ranked%d:" % h)
        if flag and h == 0:
            a("s_lshl_b32 %s, %s, 1" % (sT0, sRep))
            a("s_bitcmp1_b32 %s, %s" % (sT0, sB))
            a("s_cbranch_scc1 L_count")
            a("L_counted:")
        a("v_cmp_le_i32 vcc, %s, v%d" % (sProg, old))
        a("v_readfirstlane_b32 %s, v%d" % (sT1, old))
        a("s_add_u32 %s, %s, 0x10000" % (sProg, sProg))
        a("s_nop 0")
        a("s_bcnt0_i32_b64 %s, vcc" % sT0)
        a("s_add_u32 %s, %s, %s" % (sT0, sT0, sRnd))
        a("s_bfe_u32 %s, %s, 0x50008" % (sT1, sT1))
        if gg != 2:
            a("s_mul_i32 %s, %s, %d" % (sT1, sT1, gg))
            a("s_lshr_b32 %s, %s, 1" % (sT1, sT1))
        a("s_sub_i32 %s, %s, %s" % (sT0, sT0, sT1))
        if smooth:
            a("s_lshr_b32 s11, s11, 1")
            a("s_add_i32 s11, s11, %s" % sT0)
            a("s_max_i32 s11, s11, 0")
            a("s_ashr_i32 %s, s11, 4" % sT0)
        else:
            a("s_ashr_i32 %s, %s, 3" % (sT0, sT0))
        a("v_med3_i32 v%d, %s, 0, 7" % (vA, sT0))
        a("ds_write_b32 v%d, v%d" % (vCA, vA))

    a("L_ctl:")
    l0 = a.mark()
    ctl(0)
    ctl(1)
    if stamp:
        a("s_waitcnt lgkmcnt(0)")
        a("s_sub_u32 m0, 31, %s" % sB)
        a("s_nop 0")
        a("v_writelane_b32 v%d, s60, m0" % vSt)
    a("s_add_u32 %s, %s, 1" % (sB, sB))
    a("s_cmp_lt_u32 %s, %d" % (sB, T - 1))
    a("s_cbranch_scc1 L_ctl")
    a.loop_check(l0)

    def pub_ml(flags):
        a("s_mov_b32 exec_lo, 0x00010001")
        a("s_mov_b32 exec_hi, 0x00010001")
        a("global_store_dwordx2 v%d, %s, s[18:19] %s" % (vPubML, vr(vML, 2), flags))
        a("s_mov_b64 exec, -1")

    def get_ml():
        a("global_load_dwordx2 %s, v%d, s[18:19] sc1" % (vr(vMLi, 2), vInML))

    def get_o():
        a("global_load_dwordx4 %s, v%d, s[18:19] sc1" % (vr(vX, 4), vInO))
        a("global_load_dwordx4 %s, v%d, s[18:19] offset:64 sc1" % (vr(vX + 4, 4), vInO))

    def bound():
        a("s_sub_u32 %s, %s, 1" % (sCnt, sCnt))
        a("s_cbranch_scc1 L_end")

    a("ds_read_b128 %s, v%d" % (vr(vY, 4), vMrd))
    a("s_and_b32 %s, %s, 0xff" % (sT0, sProg))
    a("v_xor_b32 v%d, %s, v%d" % (vA, sT0, vPeer))
    a("v_and_b32 v%d, 0xff, v%d" % (vB, vA))
    a("v_cmp_eq_u32 vcc, 0, v%d" % vB)
    a("s_lshr_b32 %s, %s, 3" % (sT0, sP))
    a("s_lshl_b32 %s, 0x55555555, %s" % (sT0, sT0))
    a("s_and_b32 %s, %s, vcc_lo" % (sT1, sT0))
    a("v_cmp_le_i32 vcc, 0x10000, v%d" % vA)
    a("s_nop 1")
    a("s_and_b32 %s, %s, vcc_lo" % (sT1, sT1))
    if force:
        a("s_and_b32 s11, s2, %d" % force)
        a("s_cselect_b32 %s, 0, %s" % (sT1, sT1))
    a("s_cmp_eq_u32 %s, %s" % (sT0, sT1))
    a("s_cselect_b32 %s, 0, 0x80000000" % sSlow)
    a("v_mov_b32 v%d, %s" % (vA, sSlow))
    a("ds_write_b32 v%d, v%d offset:4" % (vCA, vA))
    a("s_waitcnt lgkmcnt(0)")
    a("v_max3_f32 v%d, v%d, v%d, v%d" % (vML, vY, vY + 1, vY + 2))
    a("v_max_f32 v%d, v%d, v%d" % (vML, vML, vY + 3))
    a("v_min_u32 v%d, -2, v%d" % (vML, vML))
    a("s_barrier")
    a("global_load_dword v%d, v%d, s[18:19] sc1" % (vVal, vInML))
    a("global_load_dword v%d, v%d, s[18:19] sc1" % (vPeer, vInO))
    a("s_barrier")
    a("ds_read2_b32 %s, v%d offset0:0 offset1:4" % (vr(vY, 2), vLrd))
    a("s_waitcnt lgkmcnt(0)")
    a("v_add_f32 v%d, v%d, v%d" % (vML + 1, vY, vY + 1))
    for sh in (8, 4, 2, 1):
        a("v_add_f32_dpp v%d, v%d, v%d row_ror:%d %s" % (vML + 1, vML + 1, vML + 1, sh, DPPF))
    a("v_or_b32 v%d, %s, v%d                ; the sign of L marks a write-through sender"
      % (vML + 1, sSlow, vML + 1))
    a("v_min_u32 v%d, -2, v%d" % (vML + 1, vML + 1))
    pub_ml("")
    a("s_barrier")
    stamp_at(3)
    get_ml()
    a("s_cmp_lg_u32 %s, 0" % sSlow)
    a("s_barrier")
    stamp_at(4)
    a("s_cbranch_scc1 L_slow")
    a("s_waitcnt vmcnt(0)")
    a("L_ml:")
    a("v_max_u32 v%d, v%d, v%d" % (vA, vMLi, vMLi + 1))
    a("v_cmp_eq_u32 vcc, -1, v%d" % vA)
    a("s_nop 1")
    a("s_and_b64 exec, exec, vcc")
    a("s_cbranch_scc1 L_ml_again")
    a("s_mov_b64 exec, -1")
    get_o()
    a("v_max_f32_dpp v%d, v%d, v%d row_ror:4 %s" % (vA, vMLi, vMLi, DPPF))
    a("v_cmp_gt_i32 s[10:11], 0, v%d" % (vMLi + 1))
    if warm:
        a("L_hop4:")
        a("s_cbranch_execz L_back4")
    a("v_max_f32_dpp v%d, v%d, v%d row_ror:8 %s" % (vA, vA, vA, DPPF))
    rows_reduce("v_max_f32", vA, vB)
    a("v_sub_f32 v%d, v%d, v%d" % (vF, vMLi, vA))
    a("v_mul_f32 v%d, %s, v%d" % (vF, sC, vF))
    a("v_exp_f32 v%d, v%d" % (vF, vF))
    if rounds >= 3:
        get_o()
    a("v_mul_f32 v%d, v%d, abs(v%d)" % (vA, vF, vMLi + 1))
    for sh in (4, 8):
        a("v_add_f32_dpp v%d, v%d, v%d row_ror:%d %s" % (vA, vA, vA, sh, DPPF))
    rows_reduce("v_add_f32", vA, vB)
    a("v_rcp_f32 v%d, v%d" % (vA, vA))
    a("v_mul_f32 v%d, v%d, v%d" % (vF, vF, vA))
    a("L_o:")
    get_o()
    bound()
    a("s_waitcnt vmcnt(%d)" % (2 * rounds - 2))
    a("v_max3_u32 v%d, v%d, v%d, v%d" % (vA, vX, vX + 1, vX + 2))
    a("v_max3_u32 v%d, v%d, v%d, v%d" % (vB, vX + 3, vX + 4, vX + 5))
    a("v_max3_u32 v%d, v%d, v%d, v%d" % (vA, vA, vX + 6, vX + 7))
    a("v_max_u32 v%d, v%d, v%d" % (vA, vA, vB))
    a("v_cmp_eq_u32 vcc, -1, v%d" % vA)
    a("s_nop 1")
    a("s_and_b64 exec, exec, vcc")
    a("s_cbranch_scc1 L_o")
    a("s_mov_b64 exec, -1")
    stamp_at(5)
    for r in range(0, 8, 2):
        a("v_pk_mul_f32 %s, %s, %s op_sel:[0,1] op_sel_hi:[1,1]"
          % (vr(vY + r, 2), vr(vX + r, 2), vr(vF - 1, 2)))
    for e in range(4):
        a("v_permlane32_swap_b32 v%d, v%d" % (vY + e, vY + 4 + e))
    for e in (0, 2):
        a("v_pk_add_f32 %s, %s, %s" % (vr(vY + e, 2), vr(vY + e, 2), vr(vY + 4 + e, 2)))
    for e in range(2):
        a("v_permlane16_swap_b32 v%d, v%d" % (vY + e, vY + 2 + e))
    a("v_pk_add_f32 %s, %s, %s" % (vr(vY, 2), vr(vY, 2), vr(vY + 2, 2)))
    a("s_cmp_lg_u64 s[10:11], 0")
    for sh in (4, 8):
        for x in (vY, vY + 1):
            a("v_add_f32_dpp v%d, v%d, v%d row_ror:%d %s" % (x, x, x, sh, DPPF))
    a("s_mov_b32 exec_lo, 0x000f000f")
    a("s_mov_b32 exec_hi, 0x000f000f")
    a("v_cvt_pk_bf16_f32 v%d, v%d, v%d" % (vY, vY, vY + 1))
    a("global_store_dword v%d, v%d, s[14:15]" % (vOut, vY))
    a("s_cbranch_scc1 L_help")
    a("L_fin:")
    if timed:
        a("s_waitcnt vmcnt(0)")
        stamp_at(6)
        a("s_mov_b64 exec, -1")
        a("ds_read_b32 v%d, v%d offset:8" % (vA, vCA))
        a("ds_read_b32 v%d, v%d offset:12" % (vB, vCA))
        a("s_waitcnt lgkmcnt(0)")
        a("v_readfirstlane_b32 s40, v%d" % vA)
        a("v_readfirstlane_b32 s44, v%d" % vB)
        a("s_nop 3")
    if stamp:
        a("s_getreg_b32 s54, hwreg(HW_REG_XCC_ID)")
        a("s_or_b32 s54, s54, %s" % sSlow)
        a("s_lshl_b32 %s, s2, 6" % sT1)
        a("s_add_u32 %s, %s, 0x200000" % (sT1, sT1))
        a("v_mov_b32 v%d, %s" % (vA, sT1))
        for i in range(8):
            a("v_mov_b32 v%d, s%d" % (vY + i, 40 + 2 * i))
        a("s_lshl_b32 %s, s2, 8" % sT1)
        a("s_add_u32 %s, %s, 0x300000" % (sT1, sT1))
        a("v_lshl_add_u32 v%d, v%d, 2, %s" % (vB, vLane, sT1))
        a("global_store_dword v%d, v%d, s[18:19]" % (vB, vSt))
        a("s_mov_b64 exec, 1")
        a("global_store_dwordx4 v%d, %s, s[18:19]" % (vA, vr(vY, 4)))
        a("global_store_dwordx4 v%d, %s, s[18:19] offset:16" % (vA, vr(vY + 4, 4)))
    if diagpad:
        def spin(label):
            a("%s:" % label)
            a("s_memrealtime s[58:59]")
            a("s_waitcnt lgkmcnt(0)")
            a("s_sub_u32 s58, s58, s40")
            a("s_cmp_lt_u32 s58, s56")
            a("s_cbranch_scc1 %s" % label)

        a("s_mov_b32 s56, %d" % (diagpad * 100))
        if diagg:
            lo, hi = int(diagg[1]), int(diagg[2])
            a("s_mov_b64 exec, 1")
            a("v_mov_b32 v%d, 120" % vA)
            a("v_mov_b32 v%d, s%d" % (vY, 40 + 2 * hi))
            a("v_mov_b32 v%d, s%d" % (vY + 1, 40 + 2 * lo))
            if diagg[0] in "mn":
                a("v_not_b32 v%d, v%d" % (vY + 1, vY + 1))
            if diagg[0] == "n":
                a("v_not_b32 v%d, v%d" % (vY, vY))
            a("global_atomic_umax v%d, v%d, s[16:17]" % (vA, vY))
            a("global_atomic_umax v%d, v%d, s[16:17] offset:4" % (vA, vY + 1))
        spin("L_pad")
        if diagg:
            a("global_load_dwordx2 %s, v%d, s[16:17] sc1" % (vr(vY, 2), vA))
            a("s_waitcnt vmcnt(0)")
            a("v_readfirstlane_b32 s10, v%d" % vY)
            a("v_readfirstlane_b32 s11, v%d" % (vY + 1))
            a("s_nop 3")
            if diagg[0] in "mn":
                a("s_not_b32 s11, s11")
            if diagg[0] == "n":
                a("s_not_b32 s10, s10")
            a("s_sub_u32 s10, s10, s11")
            a("s_sub_u32 s10, s10, %d" % (diagsub * 100))
            a("s_max_i32 s10, s10, 0")
            a("s_min_u32 s10, s10, 2000")
            a("s_mul_i32 s10, s10, 10")
            a("s_add_u32 s56, s56, s10")
            spin("L_pad2")
    a("s_endpgm")

    def count_in():
        a("; the barrier opens once the loader has ended, that is after its stores completed")
        a("s_waitcnt vmcnt(0)")
        a("s_barrier")
        a("s_mov_b64 exec, 1")
        a("v_mov_b32 v%d, 1" % vVal)
        a("global_atomic_add v%d, v%d, s[16:17]" % (vCntA, vVal))

    if flag:
        vFl = 42
        a("L_rank0:")
        a("s_add_u32 %s, s36, s2" % sT0)
        a("s_lshl_b64 exec, 1, %s" % sT0)
        a("s_lshr_b32 %s, s36, 6" % sT0)
        a("v_add3_u32 v%d, v%d, %s, 1" % (vB, vTwo, sT0))
        a("global_store_dword v%d, v%d, s[18:19] sc1" % (vTkA, vB))
        a("s_mov_b64 exec, -1")
        a("global_load_dword v%d, v%d, s[16:17] offset:%d nt" % (vPeer, vPeerA, DBG_PROG))
        a("s_waitcnt vmcnt(3)")
        a("s_branch L_ranked0")
        a("L_rank1:")
        a("s_lshl_b64 exec, 0xff, s36")
        a("global_load_dword v%d, v%d, s[18:19] sc1" % (vFl, vTkA))
        a("s_mov_b64 exec, -1")
        a("global_load_dword v%d, v%d, s[16:17] offset:%d nt" % (vPeer2, vPeerA, DBG_PROG))
        a("s_waitcnt vmcnt(3)")
        a("s_branch L_ranked1")
        a("L_count:")
        a("s_lshl_b64 exec, 0xff, s36")
        a("s_lshr_b32 %s, s36, 6" % sT0)
        a("v_sub_u32 v%d, v%d, v%d" % (vB, vFl, vTwo))
        a("v_cmp_lt_u32 vcc, %s, v%d" % (sT0, vB))
        a("s_mov_b64 exec, -1")
        a("s_add_u32 s36, s36, 8")
        a("s_bcnt1_i32_b64 %s, vcc" % sT0)
        a("s_lshl_b32 %s, %s, 1" % (sT0, sT0))
        a("v_mov_b32 v%d, %s" % (vTk, sT0))
        a("s_branch L_counted")
    else:
        a("; arrival order of the eight workgroup groups at a checkpoint, in steps of 2")
        a("L_rank0:")
        a("global_atomic_add v%d, v%d, v%d, s[16:17] sc0" % (vTk, vTkA, vTwo))
        a("v_add_u32 v%d, 4, v%d" % (vTkA, vTkA))
        a("s_mov_b64 exec, -1")
        a("global_load_dword v%d, v%d, s[16:17] offset:%d nt" % (vPeer, vPeerA, DBG_PROG))
        a("s_waitcnt vmcnt(3)")
        a("s_branch L_ranked0")

    a("L_help:")
    a("s_cmp_lg_u32 %s, 0" % sSlow)
    a("s_cbranch_scc1 L_fin")
    count_in()
    a("s_branch L_fin")

    a("L_slow:")
    pub_ml("sc1")
    count_in()
    a("L_cnt:")
    bound()
    a("global_load_dword v%d, v%d, s[16:17] sc1" % (vPeer, vCntA))
    a("s_waitcnt vmcnt(0)")
    a("v_readfirstlane_b32 %s, v%d" % (sT0, vPeer))
    a("s_nop 1")
    a("s_cmp_ge_u32 %s, %d" % (sT0, S))
    a("s_cbranch_scc0 L_cnt")
    a("s_mov_b64 exec, -1")
    a("L_ml_again:")
    get_ml()
    bound()
    a("s_waitcnt vmcnt(0)")
    a("s_branch L_ml")

    vSt, vRdK, vLane, vRd, vMX, vMY, vWM, vNmc, vA, vB, vWO0, vWO1, vWL = range(1, 14)
    vM, vL = 14, 15
    vQ, vO, vT, vXY, vD, vK, vVt, vS = 16, 20, 28, 30, 40, 56, 72, 76
    sI, sOwn, sMask = "s21", "s36", "s35"
    NT = G // 2

    def fold(part, t, da, db):
        src, own, ror, bank = ((da + 1, da, 12, 1), (da + 3, da + 2, 12, 4),
                               (db, db + 1, 4, 2), (db + 2, db + 3, 4, 8))[part]
        a("v_add_f32_dpp v%d, v%d, v%d row_ror:%d row_mask:0xf bank_mask:0x%x"
          % (t, src, own, ror, bank))

    def fold_c(t):
        a("v_add_f32_dpp v%d, v%d, v%d row_ror:8 %s" % (t, t, t, DPPF))

    def advance(rd):
        a("v_add_u32 v%d, %d, v%d" % (rd, N * 1024, rd))
        a("v_and_b32 v%d, %d, v%d" % (rd, RING - 1, rd))

    a("L_cons:")
    a("s_load_dwordx2 s[4:5], s[0:1], 0            ; q")
    a("s_load_dwordx4 s[8:11], s[0:1], 24")
    a("v_and_b32 v%d, 63, v0" % vLane)
    a("s_lshr_b32 %s, %s, 6" % (sW, sW))
    a("s_sub_u32 %s, %s, 1" % (sW, sW))
    a("s_mov_b32 %s, %s" % (sC, f32(CS)))
    a("; QK^T operands: A row = (key, quarter), B column = (quarter, head), lane>>4 = 64-byte block")
    a("v_lshrrev_b32 v%d, 4, v%d" % (vA, vLane))
    a("v_lshlrev_b32 v%d, 6, v%d" % (vA, vA))
    a("v_and_b32 v%d, 3, v%d" % (vB, vLane))
    a("v_bfe_u32 v%d, v%d, 2, 2" % (vWM, vLane))
    a("v_lshl_add_u32 v%d, v%d, 4, v%d" % (vNmc, vB, vA))
    a("v_lshl_add_u32 v%d, v%d, 8, v%d" % (vRdK, vWM, vNmc))
    a("v_lshl_add_u32 v%d, v%d, 8, v%d" % (vA, vB, vA))
    a("v_lshl_add_u32 v%d, v%d, 4, v%d" % (vA, vWM, vA))
    a("v_lshlrev_b32 v%d, 4, v%d" % (vRd, vLane))
    a("s_lshl_b32 %s, %s, 10" % (sT0, sP))
    a("s_lshl_b32 %s, %s, 8" % (sT1, sP))
    a("v_add_u32 v%d, %s, v%d" % (vA, sT0, vA))
    a("v_add_u32 v%d, %s, v%d" % (vNmc, sT1, vNmc))
    a("v_and_b32 v%d, 0xf0, v%d" % (vB, vRd))
    a("v_add_u32 v%d, %s, v%d" % (vB, sT1, vB))
    for r in range(4):
        a("v_mov_b32 v%d, 0" % (vVt + r))
    a("s_or_b32 %s, %s, %s" % (sOwn, sS, sW))
    a("s_waitcnt lgkmcnt(0)")
    if lazy:
        a("s_barrier")
    a("global_load_dwordx4 %s, v%d, s[4:5]" % (vr(vQ, 4), vA))
    a("s_cbranch_scc1 L_notree")
    a("global_load_dwordx4 %s, v%d, s[8:9]" % (vr(vK, 4), vNmc))
    a("global_load_dwordx4 %s, v%d, s[10:11]" % (vr(vVt, 4), vB))
    a("s_load_dword %s, s[12:13], 0" % sMask)
    a("L_notree:")
    if warm:
        a("; fetch code that first runs late, one region per wave")
        a("s_mov_b64 exec, 0")
        for c in range(C - 1):
            a("s_cmp_eq_u32 %s, %d" % (sW, c))
            a("s_cbranch_scc1 L_hop%d" % c)
        a("s_branch L_hop3")
        a("L_back:")
        a("s_mov_b64 exec, -1")
    a("s_lshl_b32 %s, %s, 10" % (sT0, sW))
    a("v_and_b32 v%d, 32, v%d" % (vA, vLane))
    a("v_lshlrev_b32 v%d, 2, v%d" % (vA, vA))
    a("v_xor_b32 v%d, v%d, v%d" % (vRd, vRd, vA))
    a("v_add_u32 v%d, %s, v%d" % (vRd, sT0, vRd))
    a("v_and_b32 v%d, 8, v%d" % (vA, vLane))
    a("v_lshlrev_b32 v%d, 4, v%d" % (vA, vA))
    a("v_xor_b32 v%d, v%d, v%d" % (vRdK, vRdK, vA))
    a("v_add_u32 v%d, %s, v%d" % (vRdK, sT0, vRdK))
    a("s_lshl_b32 %s, %s, 8" % (sT0, sW))
    a("s_add_u32 %s, %s, %d" % (sT0, sT0, ldsL))
    a("v_lshl_add_u32 v%d, v%d, 2, %s" % (vWL, vLane, sT0))
    a("v_and_b32 v%d, 3, v%d" % (vWM, vLane))
    a("v_lshlrev_b32 v%d, 4, v%d" % (vWM, vWM))
    a("v_add_u32 v%d, %d, v%d" % (vWM, ldsM, vWM))
    a("v_bfe_u32 v%d, v%d, 4, 1" % (vA, vLane))
    a("v_bfe_u32 v%d, v%d, 5, 1" % (vB, vLane))
    a("v_lshl_add_u32 v%d, v%d, 1, v%d" % (vA, vA, vB))
    a("v_and_b32 v%d, 15, v%d" % (vB, vLane))
    a("v_lshl_add_u32 v%d, v%d, 2, v%d" % (vA, vB, vA))
    a("s_lshl_b32 %s, %s, 11" % (sT0, sW))
    a("s_add_u32 %s, %s, %d" % (sT0, sT0, ldsO))
    a("v_lshl_add_u32 v%d, v%d, 2, %s" % (vWO0, vA, sT0))
    a("v_xor_b32 v%d, 0x80, v%d" % (vWO1, vWO0))
    a("; PV operand masks: A row = (element of a 4-column group, head) keeps one bf16 of p")
    a("v_and_b32 v%d, 8, v%d" % (vA, vLane))
    a("v_lshlrev_b32 v%d, 1, v%d" % (vA, vA))
    a("v_mov_b32 v%d, 0xffff" % vB)
    a("v_lshlrev_b32 v%d, v%d, v%d" % (vA, vA, vB))
    a("v_bfe_i32 v%d, v%d, 2, 1" % (vB, vLane))
    a("v_and_b32 v%d, v%d, v%d" % (vMY, vA, vB))
    a("v_xor_b32 v%d, v%d, v%d" % (vMX, vA, vMY))
    a("v_mov_b32 v%d, 0xff800000" % vM)
    a("v_mov_b32 v%d, v%d" % (vSt, vM))
    a("s_mov_b32 %s, 0" % sI)
    a("s_cmp_lg_u32 %s, 0" % sOwn)
    a("s_barrier")
    a("s_waitcnt vmcnt(0) lgkmcnt(0)")
    a("s_cbranch_scc1 L_k_in")
    a("v_mfma_f32_16x16x32_bf16 %s, %s, %s, 0" % (vr(vD, 4), vr(vK, 4), vr(vQ, 4)))
    a("s_lshr_b32 %s, %s, 3" % (sT0, sP))
    a("s_lshl_b32 %s, %s, 4" % (sT0, sT0))
    a("s_lshr_b32 %s, %s, %s" % (sMask, sMask, sT0))
    a("s_lshl_b32 %s, %s, 16" % (sMask, sMask))
    a("v_mov_b32 v%d, %s" % (vA, sMask))
    a("v_sub_f32 v%d, 1.0, v%d" % (vA, vA))
    a("v_mul_f32 v%d, %s, v%d           ; (1 - mask) * -1e9 / scale" % (vA, f32(-1e9 * 128 ** 0.5), vA))
    for part in range(4):
        fold(part, vM, vD, vD)
    fold_c(vM)
    a("v_add_f32 v%d, v%d, v%d" % (vM, vM, vA))
    a("s_mov_b64 exec, 0xffff")
    a("v_mov_b32 v%d, v%d" % (vSt, vM))
    a("s_mov_b64 exec, -1")
    a("s_branch L_k_in")

    a("; scores of all keys into v[%d:%d], running per-lane max" % (vS, vS + 63))
    a("L_k:")
    l0 = a.mark()
    a("s_barrier")
    a("L_k_in:")
    for j in range(G):
        a("ds_read_b128 %s, v%d offset:%d" % (vr(vK + 4 * j, 4), vRdK, j * 4096))
    advance(vRdK)
    for j in range(G):
        a("s_waitcnt lgkmcnt(%d)" % (G - 1 - j))
        a("v_mfma_f32_16x16x32_bf16 %s, %s, %s, 0"
          % (vr(vD + 4 * j, 4), vr(vK + 4 * j, 4), vr(vQ, 4)))
    for part in range(4):
        for i in range(NT):
            fold(part, vT + i, vD + 8 * i, vD + 8 * i + 4)
    for i in range(NT):
        fold_c(vT + i)
    a("s_set_gpr_idx_on %s, gpr_idx(DST)" % sI)
    for i in range(NT):
        a("v_mov_b32 v%d, v%d" % (vS + i, vT + i))
    a("s_set_gpr_idx_off")
    a("v_max3_f32 v%d, v%d, v%d, v%d" % (vM, vM, vT, vT + 1))
    a("s_add_u32 %s, %s, %d" % (sI, sI, NT))
    a("s_cmp_lt_u32 %s, 64" % sI)
    a("s_cbranch_scc1 L_k")
    a.loop_check(l0)

    def prep():
        a("s_set_gpr_idx_on %s, gpr_idx(SRC0)" % sI)
        for i in range(NT):
            a("v_mov_b32 v%d, v%d" % (vT + i, vS + i))
        a("s_set_gpr_idx_off")
        for i in range(NT):
            a("v_fma_f32 v%d, v%d, %s, v%d" % (vT + i, vT + i, sC, vNmc))
        for i in range(NT):
            a("v_exp_f32 v%d, v%d" % (vT + i, vT + i))
        a("s_add_u32 %s, %s, %d" % (sI, sI, NT))
        a("s_cmp_lt_u32 %s, %d" % (sI, 64 - NT))
        for i in range(NT):
            a("v_add_f32 v%d, v%d, v%d" % (vL, vL, vT + i))
        for i in range(NT):
            a("v_cvt_pk_bf16_f32 v%d, v%d, v%d" % (vT + i, vT + i, vT + i))
        for i in range(NT):
            x, p = vXY + 4 * i, vT + i
            a("v_and_b32 v%d, v%d, v%d" % (x, p, vMX))
            a("v_and_b32 v%d, v%d, v%d" % (x + 3, p, vMY))
            a("v_and_b32_dpp v%d, v%d, v%d row_ror:4 %s" % (x + 1, p, vMY, DPPF))
            a("v_and_b32_dpp v%d, v%d, v%d row_ror:4 %s" % (x + 2, p, vMX, DPPF))

    def pv(js, adv):
        for j in js:
            a("ds_read_b128 %s, v%d offset:%d" % (vr(vK + 4 * j, 4), vRd, j * 4096))
        if adv:
            advance(vRd)
        for j in js:
            a("s_waitcnt lgkmcnt(%d)" % (js[-1] - j))
            for k in range(2):
                a("v_mfma_f32_16x16x16_bf16 %s, %s, %s, %s"
                  % (vr(vO + 4 * k, 4), vr(vXY + 2 * j, 2), vr(vK + 4 * j + 2 * k, 2),
                     vr(vO + 4 * k, 4)))

    a("v_max_f32_dpp v%d, v%d, v%d row_ror:4 %s" % (vM, vM, vM, DPPF))
    rows_reduce("v_max_f32", vM, vB)
    a("v_lshl_add_u32 v%d, %s, 2, v%d" % (vA, sW, vWM))
    a("ds_write_b32 v%d, v%d" % (vA, vM))
    a("s_mov_b32 %s, 0" % sI)
    a("s_waitcnt lgkmcnt(0)")
    a("s_barrier")
    a("ds_read_b128 %s, v%d" % (vr(vD, 4), vWM))
    a("s_waitcnt lgkmcnt(0)")
    a("v_max3_f32 v%d, v%d, v%d, v%d" % (vM, vD, vD + 1, vD + 2))
    a("v_max_f32 v%d, v%d, v%d" % (vM, vM, vD + 3))
    a("v_mul_f32 v%d, %s, v%d" % (vNmc, f32(-CS), vM))
    a("v_fma_f32 v%d, v%d, %s, v%d" % (vA, vSt, sC, vNmc))
    a("v_exp_f32 v%d, v%d" % (vA, vA))
    a("v_cmp_ne_u32 vcc, 0, v%d" % vMX)
    a("v_cvt_pk_bf16_f32 v%d, v%d, v%d" % (vB, vA, vA))
    a("v_and_b32 v%d, v%d, v%d" % (vXY, vB, vMX))
    a("v_and_b32 v%d, v%d, v%d" % (vXY + 1, vB, vMY))
    a("v_cndmask_b32 v%d, 0, v%d, vcc" % (vL, vA))
    for k in range(2):
        a("v_mfma_f32_16x16x16_bf16 %s, %s, %s, 0"
          % (vr(vO + 4 * k, 4), vr(vXY, 2), vr(vVt + 2 * k, 2)))
    prep()
    e0 = a.mark()
    a("s_branch L_v_in")
    if warm:
        a("L_hop3:")
        a("s_branch %s" % ("L_hop5" if warm == 2 else "L_back"))

    a("L_v:")
    l0 = a.mark()
    prep()
    a("s_barrier")
    a("L_v_in:")
    e1 = a.mark()
    pv(list(range(G)), True)
    a("s_cbranch_scc1 L_v")
    a.loop_check(l0)
    a.edge_check(e0, e1)
    prep()
    a("ds_write_b32 v%d, v%d" % (vWL, vL))
    a("s_waitcnt lgkmcnt(0)")
    a("s_barrier")
    pv(list(range(G - 1)), False)
    a("s_barrier")
    pv([G - 1], False)
    for r in range(8):
        a("ds_write_b32 v%d, v%d offset:%d"
          % (vWO1 if r >= 4 else vWO0, vO + r, (r % 4) * 512 + (r // 4) * 256))
    a("s_waitcnt lgkmcnt(0)")
    a("s_barrier")
    a("L_last:")
    a("s_endpgm")
    if wake:
        a(".fill 7000, 4, 0xbf810000")

    nvg = max(a.max_v(), vS + 64)
    acc = (nvg + 3) // 4 * 4
    out = HEADER
    out += "; @launch grid=(%d,1,1) block=(%d,1,1) lds=%d\n" % (NWG, 64 * (C + 2), LDS)
    out += DOC
    out += '.amdgcn_target "amdgcn-amd-amdhsa--gfx950"\n.text\n'
    out += ".globl %s_kernel\n.p2align 8\n.type %s_kernel,@function\n" % (NAME, NAME)
    out += a.text()
    out += """.section .rodata,"a"
.p2align 6
.amdhsa_kernel %s_kernel
  .amdhsa_next_free_vgpr %d
  .amdhsa_next_free_sgpr 64
  .amdhsa_accum_offset %d
  .amdhsa_group_segment_fixed_size 0
  .amdhsa_kernarg_size 72
  .amdhsa_user_sgpr_count 2
  .amdhsa_user_sgpr_kernarg_segment_ptr 1
  .amdhsa_system_sgpr_workgroup_id_x 1
.end_amdhsa_kernel
""" % (NAME, nvg, acc)
    return out


if __name__ == "__main__":
    kw = {}
    for arg in sys.argv[2:]:
        k, v = arg.split("=")
        kw[k] = int(v) if v.lstrip("-").isdigit() else v
    open(sys.argv[1], "w").write(gen(**kw))
```

```python
import math
import struct
import sys

from asmlib import Asm

NAME = "standalone__tree_speculative_verify_tree_attention_over_candidate_token_tree__decode"
HEADER = open("cdna_kernels/%s.s.ref" % NAME).read().split("; Override launch")[0]
DPPF = "row_mask:0xf bank_mask:0xf"

DOC = """\
; Split-KV decode attention, one workgroup per CU, 16 workgroups (slices) per (batch, kv head) pair.
;   wave 0     loader: streams its K pieces, then its V pieces, into a 64 KiB LDS ring (LDS-DMA).
;   wave 5     controller: picks the loader's depth from the workgroup's rank among its
;              neighbours (speed only), and gathers 32 output columns from the pair's 16 slices.
; K is read before V, and pieces are ordered so that concurrent loads spread over all memory
; channels and share DRAM rows; the order and the depth choice never change what is computed.
; relied on only if all 16 slices have reported this XCD and their reset in d_debug; otherwise the
; messages are written through and a d_debug counter orders them.
; d_debug: pair counters at 0, checkpoint counters at 64, progress words at 128.
"""


def f32(x):
    return "0x%08x" % struct.unpack("<I", struct.pack("<f", x))[0]


def vr(a, n):
    return "v[%d:%d]" % (a, a + n - 1)


def gen(depths=(23, 22, 21, 20, 19, 18, 17, 16), D0=20, rnd=5, bias=2, gm=(5, 21, 37, 51), gg=2,
        sbits=(14, 15, 16, 18), tbits=(21, 19, 20, 22, 17), xs=((1, 12), (2, 13)), jb=(12, 13),
        rdpos=14, fixpos=1, smooth=0, pad=0, flag=0, ctr=0, lazy=0, wake=0, rounds=3, rpos="ad", early=0, txs=(), ksplit=1, pre=1, warm=0, stamp=0, diagpad=0, diagg=None, diagsub=0, force=0):
    N, C, G, S, T = 16, 4, 4, 16, 32
    NWG = 16 * S
    RING = 65536
    if isinstance(depths, str):
        depths = tuple(int(x) for x in depths.split("."))
    if isinstance(gm, str):
        gm = tuple(int(x) for x in gm.split("."))
    assert len(depths) == 8 and max(depths) <= 32 and N <= D0 <= 32
    assert sorted(list(jb) + list(sbits) + list(tbits)) == list(range(12, 23))
    seen = set()
    for s_ in range(16):
        for t_ in range(32):
            base = 0
            for v, terms in ((s_, list(enumerate(sbits)) + list(xs)), (t_, list(enumerate(tbits)) + list(txs))):
                for src, dst in terms:
                    base ^= (v >> src & 1) << dst
            seen |= {base ^ (q & 1) << jb[0] ^ (q >> 1) << jb[1] for q in range(4)}
    assert seen == {i << 12 for i in range(2048)}
    CS = 128 ** -0.5 * math.log2(math.e)
    timed = stamp or diagpad
    rounds = len(rpos) + 1
    a = Asm()

    ldsO = RING
    ldsL = ldsO + C * 2048
    ldsM = ldsL + C * 256
    ldsC = ldsM + 64
    LDS = ldsC + 16
    WS_ML = 0x100000
    DBG_RANK, DBG_PROG = 64, 128

    sW, sP, sS, sCnt, sC, sT0, sT1, sIdx = "s3", "s6", "s7", "s22", "s23", "s32", "s33", "s34"

    def stamp_at(i):
        if timed:
            a("s_memrealtime s[%d:%d]" % (40 + 2 * i, 41 + 2 * i))

    def rows_reduce(op, x, tmp):
        for swap in ("v_permlane16_swap_b32", "v_permlane32_swap_b32"):
            a("v_mov_b32 v%d, v%d" % (tmp, x))
            a("%s v%d, v%d" % (swap, x, tmp))
            a("%s v%d, v%d, v%d" % (op, x, x, tmp))

    def runs(bits):
        i = 0
        while i < len(bits):
            n = 1
            while (i + n < len(bits) and bits[i + n][0] == bits[i][0] + n
                   and bits[i + n][1] == bits[i][1] + n):
                n += 1
            yield bits[i][0], n, bits[i][1]
            i += n

    def pair_index():
        a("s_lshl_b32 %s, %s, 4" % (sIdx, sP))
        a("s_add_u32 %s, %s, %s" % (sIdx, sIdx, sS))

    a("%s_kernel:" % NAME)
    a("s_load_dwordx2 s[24:25], s[0:1], 8          ; k_cache")
    def rest():
        a("s_load_dwordx2 s[28:29], s[0:1], 16         ; v_cache")
        a("s_load_dwordx8 s[12:19], s[0:1], 40         ; tree_mask, out, debug, ws")

    if not ksplit:
        rest()
    stamp_at(0)
    a("v_readfirstlane_b32 %s, v0" % sW)
    a("s_cmp_ge_u32 s2, %d" % NWG)
    a("s_cbranch_scc1 L_end")
    a("s_and_b32 %s, s2, 15" % sP)
    a("s_lshr_b32 %s, s2, 4" % sS)
    a("s_cmp_eq_u32 %s, 0" % sW)
    a("s_cbranch_scc1 L_loader")
    if ksplit:
        rest()
    if pre:
        a("; one wave of the first workgroups pulls the code into L2")
        a("s_sub_u32 %s, %s, 64" % (sT0, sW))
        a("s_or_b32 %s, %s, %s" % (sT0, sT0, sS))
        a("s_cbranch_scc1 L_nopre")
        a("s_getpc_b64 s[36:37]")
        a("L_pc:")
        a("v_lshlrev_b32 v1, 7, v0")
        a("v_and_b32 v1, 0x1fff, v1")
        if wake:
            for k in range(4):
                a("global_load_dword v38, v1, s[36:37]")
                a("v_add_u32 v1, 0x2000, v1")
        else:
            a("v_min_u32 v1, L_last-L_pc, v1")
            a("global_load_dword v38, v1, s[36:37]")
        a("L_nopre:")
    a("s_cmp_eq_u32 %s, %d" % (sW, 64 * (C + 1)))
    a("s_cbranch_scc1 L_ctrl")
    a("s_branch L_cons")

    vOff, vTab, vA, vB, vLvA, vLv, vOrd0, vOrd1, vPubO, vCntA = range(1, 11)
    vAcc, vBuf = 12, 20
    sK, sTK, sU, sLv = "s20", "s38", "s37", "s5"
    a("L_loader:")
    a("s_setprio 3")
    a("s_lshl_b32 %s, %s, 23" % (sTK, sP))
    for src, n, dst in runs(list(enumerate(sbits)) + list(xs)):
        a("s_bfe_u32 %s, %s, 0x%x" % (sT0, sS, n << 16 | src))
        a("s_lshl_b32 %s, %s, %d" % (sT0, sT0, dst))
        a("s_xor_b32 %s, %s, %s" % (sTK, sTK, sT0))
    a("s_mov_b32 %s, %s" % (sK, sTK))
    a("s_mov_b32 s26, 0x8000000")
    a("s_mov_b32 s27, 0x00020000")
    a("s_mov_b32 m0, 0")
    a("v_lshlrev_b32 v%d, 4, v0" % vA)
    a("v_and_b32 v%d, 32, v0" % vB)
    a("v_lshlrev_b32 v%d, 2, v%d" % (vB, vB))
    a("v_xor_b32 v%d, v%d, v%d" % (vOff, vA, vB))

    def load(j):
        a("buffer_load_dwordx4 v%d, s[24:27], %s offen offset:%d nt lds" % (vOff, sK, (j % 4) * 1024))
        if j % 4 == 3:
            a("s_add_u32 m0, m0, 4096")
            if j + 1 < N:
                q = (j + 1) // 4
                a("s_xor_b32 %s, %s, %d" % (sK, sTK, (q & 1) << jb[0] | (q >> 1) << jb[1]))

    a("s_waitcnt lgkmcnt(0)")
    for j in range(N):
        load(j)
    one = 1 << tbits[0]
    for src, dst in txs:
        one ^= (src == 0) << dst
    a("s_xor_b32 %s, %s, %d" % (sTK, sTK, one))
    a("s_mov_b32 %s, %s" % (sK, sTK))
    for j in range(D0 - N):
        load(j)
    if ksplit:
        rest()
    a("s_xor_b32 %s, %s, %d" % (sT0, sTK, one))
    a("v_mov_b32 v%d, %s" % (vTab, sT0))
    for src, n, dst in runs(list(enumerate(tbits)) + list(txs)):
        a("v_bfe_u32 v%d, v0, %d, %d" % (vA, src, n))
        a("v_lshlrev_b32 v%d, %d, v%d" % (vA, dst, vA))
        a("v_xor_b32 v%d, v%d, v%d" % (vTab, vTab, vA))
    a("; addresses for the workgroup's final sum, lane = (head, 16-byte column)")
    pair_index()
    a("v_mov_b32 v%d, %d" % (vLvA, ldsC))
    a("v_mov_b32 v%d, 4" % vLv)
    a("v_lshrrev_b32 v%d, 4, v0" % vA)
    a("v_and_b32 v%d, 15, v0" % vB)
    a("v_and_b32 v%d, 1, v0" % vOrd0)
    a("v_mul_u32_u24 v%d, 24, v%d" % (vOrd0, vOrd0))
    a("v_bfe_u32 v%d, v0, 1, 3" % vOrd1)
    a("v_add_u32 v%d, v%d, v%d" % (vOrd0, vOrd0, vOrd1))
    a("v_lshl_add_u32 v%d, v%d, 5, v%d" % (vOrd0, vA, vOrd0))
    a("v_lshlrev_b32 v%d, 4, v%d" % (vOrd0, vOrd0))
    a("v_add_u32 v%d, %d, v%d" % (vOrd0, ldsO, vOrd0))
    a("v_xor_b32 v%d, 0x80, v%d" % (vOrd1, vOrd0))
    a("s_lshl_b32 %s, %s, 11" % (sT0, sIdx))
    a("v_lshl_add_u32 v%d, v%d, 5, v%d" % (vPubO, vA, vB))
    a("v_lshl_add_u32 v%d, v%d, 4, %s" % (vPubO, vPubO, sT0))
    a("s_mov_b32 %s, 2" % sU)
    if timed:
        a("v_mov_b32 v%d, s40" % vA)
        a("ds_write_b32 v%d, v%d offset:8" % (vLvA, vA))
        a("s_waitcnt vmcnt(%d)" % (D0 - 1))
        a("s_memrealtime s[44:45]")
        a("s_waitcnt lgkmcnt(0)")
        a("v_mov_b32 v%d, s44" % vA)
        a("ds_write_b32 v%d, v%d offset:12" % (vLvA, vA))
    for j in range(D0 - N, N):
        a("s_waitcnt vmcnt(%d)" % (D0 - 1))
        load(j)
        if lazy and j == D0 - N:
            a("s_barrier")

    a("L_next:")
    a("v_readlane_b32 %s, v%d, %s" % (sTK, vTab, sU))
    a("s_waitcnt lgkmcnt(0)")
    a("v_readfirstlane_b32 %s, v%d" % (sLv, vLv))
    a("s_and_b32 m0, m0, %d" % (RING - 1))
    a("s_cmp_eq_u32 %s, %d" % (sU, T))
    a("s_cselect_b64 s[24:25], s[28:29], s[24:25]")
    a("s_add_u32 %s, %s, 1" % (sU, sU))
    a("s_mov_b32 %s, %s" % (sK, sTK))

    def block(lv):
        d = depths[lv]
        a("; %d loads in flight; piece u-2 has landed at the barrier" % d)
        for j in range(N):
            a("s_waitcnt vmcnt(%d)" % (d - 1))
            load(j)
            if j == max(0, (max(depths) if fixpos else d) - N - 1):
                a("s_barrier")
            if j == rdpos:
                a("ds_read_b32 v%d, v%d" % (vLv, vLvA))
        a("s_cmp_lt_u32 %s, %d" % (sU, 2 * T))
        a("s_cbranch_scc1 L_next")
        if lv != 7:
            a("s_branch L_drain")
            if warm == 1 and lv % 3 == 0:
                a("L_hop%d:" % (lv // 3))
                a("s_branch L_back")
            if warm == 2 and lv % 2 == 0:
                a("L_hop%s:" % "0125"[lv // 2])
                a("s_branch L_back")

    def tree(lo, bit):
        if bit < 0:
            block(lo)
            return
        a("s_bitcmp1_b32 %s, %d" % (sLv, bit))
        a("s_cbranch_scc1 L_lv%d" % (lo + (1 << bit)))
        tree(lo, bit - 1)
        a("L_lv%d:" % (lo + (1 << bit)))
        tree(lo + (1 << bit), bit - 1)

    tree(0, 2)
    a("L_drain:")
    a("s_waitcnt vmcnt(%d)" % N)
    a("s_barrier")
    a("s_waitcnt vmcnt(%d)" % C)
    a("s_barrier")
    a("ds_read_b32 v%d, v%d offset:4" % (vLv, vLvA))
    a("s_waitcnt vmcnt(0)")
    a("s_barrier")
    a("s_waitcnt lgkmcnt(0)")
    a("v_readfirstlane_b32 %s, v%d" % (sLv, vLv))
    a("s_nop 1")
    a("s_cmp_lg_u32 %s, 0" % sLv)
    a("s_barrier")
    for k in range(2):
        for c in range(C):
            a("ds_read_b128 %s, v%d offset:%d"
              % (vr(vBuf + 16 * k + 4 * c, 4), vOrd1 if k else vOrd0, c * 2048))

    def pub_o(k, flags):
        a("global_store_dwordx4 v%d, %s, s[18:19] offset:%d %s"
          % (vPubO, vr(vAcc + 4 * k, 4), 256 * k, flags))

    for k in range(2):
        for c in range(1, C):
            a("s_waitcnt lgkmcnt(%d)" % (7 - 4 * k - c))
            for r in (0, 2):
                prev = vBuf + 16 * k + r if c == 1 else vAcc + 4 * k + r
                a("v_pk_add_f32 %s, %s, %s"
                  % (vr(vAcc + 4 * k + r, 2), vr(prev, 2), vr(vBuf + 16 * k + 4 * c + r, 2)))
        for r in range(4):
            a("v_min_u32 v%d, -2, v%d" % (vAcc + 4 * k + r, vAcc + 4 * k + r))
        pub_o(k, "")
    a("s_cbranch_scc0 L_sent")
    pub_o(0, "sc1")
    pub_o(1, "sc1")
    a("L_sent:")
    a("s_waitcnt vmcnt(0)")
    a("L_end:")
    a("s_endpgm")

    vLane, vA, vB, vSlot, vPeerA, vPeer, vVal, vTk, vTkA, vTwo, vCA, vLrd, vMrd = range(1, 14)
    vOut, vF = 14, 15
    vML, vMLi, vX, vY = 16, 18, 20, 28
    vPubML, vInO, vInML, vCntA, vSt = 36, 37, 38, 39, 40
    sProg, sRnd, sSlow, sRep, sB = "s4", "s8", "s9", "s10", "s21"
    vPeer2 = 41
    for _ in range(pad):
        a("s_nop 0")
    a("L_ctrl:")
    a("v_and_b32 v%d, 63, v0" % vLane)
    pair_index()
    a("v_and_b32 v%d, 31, v%d" % (vPeerA, vLane))
    a("v_lshlrev_b32 v%d, 2, v%d" % (vPeerA, vPeerA))
    a("s_lshl_b32 %s, %s, 11" % (sT0, sIdx))
    a("v_lshl_add_u32 v%d, v%d, 4, %s" % (vA, vLane, sT0))
    a("s_lshl_b32 %s, %s, 7" % (sT1, sIdx))
    a("s_add_u32 %s, %s, %d" % (sT1, sT1, WS_ML))
    a("v_and_b32 v%d, 7, v%d" % (vB, vLane))
    a("v_lshl_add_u32 v%d, v%d, 4, %s" % (vB, vB, sT1))
    for r in range(10):
        a("v_mov_b32 v%d, -1" % (vMLi + r))
    a("s_waitcnt lgkmcnt(0)")
    stamp_at(1)
    if lazy:
        a("s_barrier")
    a("global_load_dword v%d, v%d, s[16:17] offset:%d" % (vPeer, vPeerA, DBG_PROG))
    a("global_store_dwordx4 v%d, %s, s[18:19]" % (vA, vr(vX, 4)))
    a("global_store_dwordx4 v%d, %s, s[18:19] offset:1024" % (vA, vr(vX, 4)))
    a("global_store_dwordx4 v%d, %s, s[18:19]" % (vB, vr(vX, 4)))
    a("; progress word: (pieces landed << 16) | (group rank << 8) | (XCD << 3) | (workgroup id & 7)")
    a("s_getreg_b32 %s, hwreg(HW_REG_XCC_ID, 0, 4)" % sT0)
    a("s_and_b32 %s, %s, 1" % (sRnd, sT0))
    a("s_mul_i32 %s, %s, %d" % (sRnd, sRnd, 2 * bias))
    top = 16 - ctr if flag else 7
    a("s_add_u32 %s, %s, %d" % (sRnd, sRnd, rnd - bias + top * gg // 2))
    a("s_lshl_b32 %s, %s, 3" % (sT0, sT0))
    a("s_and_b32 %s, s2, 7" % sProg)
    a("s_or_b32 %s, %s, %s" % (sProg, sProg, sT0))
    a("s_lshr_b32 %s, s2, 3" % sT0)
    a("s_lshl_b32 %s, %s, 2" % (sT0, sT0))
    a("v_mov_b32 v%d, %s" % (vSlot, sT0))
    assert all(c % 2 == 1 for c in gm)
    a("s_cmp_lt_u32 s2, 8")
    a("s_cselect_b32 %s, 0x%x, 0" % (sRep, sum(1 << (c // 2) for c in gm)))
    if flag:
        assert all(y - x >= 4 for x, y in zip(gm, gm[1:]))
        a("v_mov_b32 v%d, %d" % (vTk, top))
        a("v_mul_u32_u24 v%d, %d, v%d" % (vTkA, flag, vLane))
        a("v_add_u32 v%d, %d, v%d" % (vTkA, 0x180000, vTkA))
        a("s_mov_b32 s36, 0")
        a("s_cbranch_scc0 L_nosnap")
        a("global_load_dword v%d, v%d, s[18:19] sc1" % (vTwo, vTkA))
        a("L_nosnap:")
    else:
        a("v_mov_b32 v%d, 7" % vTk)
        a("v_mov_b32 v%d, %d" % (vTkA, DBG_RANK))
        a("v_mov_b32 v%d, 2" % vTwo)
    a("v_mov_b32 v%d, %d" % (vCA, ldsC))
    a("v_mov_b32 v%d, 4" % vF)
    a("ds_write_b32 v%d, v%d" % (vCA, vF))
    a("s_mov_b32 %s, %s" % (sC, f32(CS)))
    a("s_lshl_b32 %s, %s, 2" % (sT0, sP))
    a("v_mov_b32 v%d, %s" % (vCntA, sT0))
    a("v_lshrrev_b32 v%d, 4, v%d" % (vOut, vLane))
    a("v_and_b32 v%d, 15, v%d" % (vLrd, vLane))
    a("v_lshlrev_b32 v%d, 6, v%d" % (vLrd, vLrd))
    a("v_lshl_add_u32 v%d, v%d, 2, v%d" % (vLrd, vOut, vLrd))
    a("v_add_u32 v%d, %d, v%d" % (vLrd, ldsL, vLrd))
    a("v_lshlrev_b32 v%d, 4, v%d" % (vMrd, vOut))
    a("v_add_u32 v%d, %d, v%d" % (vMrd, ldsM, vMrd))
    a("v_lshl_add_u32 v%d, v%d, 3, %s" % (vPubML, vOut, sT1))
    a("v_lshrrev_b32 v%d, 2, v%d" % (vInML, vLane))
    a("v_and_b32 v%d, 3, v%d" % (vF, vLane))
    a("s_lshl_b32 %s, %s, 8" % (sT0, sP))
    a("s_add_u32 %s, %s, %s" % (sT0, sT0, sS))
    a("s_lshl_b32 %s, %s, 7" % (sT0, sT0))
    a("v_lshl_add_u32 v%d, v%d, 7, v%d" % (vInO, vInML, vF))
    a("v_lshl_add_u32 v%d, v%d, 4, %s" % (vInO, vInO, sT0))
    a("s_lshl_b32 %s, %s, 11" % (sT0, sP))
    a("s_lshr_b32 %s, %s, 2" % (sT1, sS))
    a("s_lshl_b32 %s, %s, 3" % (sT1, sT1))
    a("s_add_u32 %s, %s, %s" % (sT0, sT0, sT1))
    a("s_add_u32 %s, %s, %d" % (sT0, sT0, WS_ML))
    a("v_lshl_add_u32 v%d, v%d, 7, %s" % (vInML, vInML, sT0))
    a("v_lshrrev_b32 v%d, 5, v%d" % (vOut, vLane))
    a("v_lshl_add_u32 v%d, v%d, 2, v%d" % (vOut, vOut, vF))
    a("v_bfe_u32 v%d, v%d, 4, 1" % (vF, vLane))
    a("v_lshl_add_u32 v%d, v%d, 1, v%d" % (vOut, vOut, vF))
    a("s_lshl_b32 %s, %s, 6" % (sT0, sIdx))
    a("v_lshl_add_u32 v%d, v%d, 2, %s" % (vOut, vOut, sT0))
    a("s_mov_b32 %s, 0" % sB)
    if smooth:
        a("s_mov_b32 s11, 72")
    a("v_lshlrev_b32 v%d, 31, v%d" % (vPeer2, vLane))
    a("v_or_b32 v%d, 0x%x, v%d" % (vPeer2, top << 8 | 0xff, vPeer2))
    a("s_mov_b32 %s, 0x200000                ; bound on all polling rounds" % sCnt)
    a("s_waitcnt lgkmcnt(0)")
    if warm:
        a("s_mov_b64 exec, 0")
        a("s_branch L_hop4")
        a("L_back4:")
    a("s_mov_b64 exec, 1")
    a("s_barrier")
    a("s_waitcnt vmcnt(0)")
    a("s_branch L_ctl_in")

    def ctl(h):
        new, old = (vPeer, vPeer2)[h], (vPeer2, vPeer)[h]
        a("s_mov_b64 exec, 1")
        a("s_barrier")
        if h == 0:
            a("L_ctl_in:")
        if stamp and h == 1:
            a("s_memrealtime s[60:61]")
        a("s_add_u32 %s, %s, 0x10000" % (sT0, sProg))
        a("v_lshl_or_b32 v%d, v%d, 8, %s" % (vVal, vTk, sT0))
        a("global_store_dword v%d, v%d, s[16:17] offset:%d" % (vSlot, vVal, DBG_PROG))
        if h == 0 or flag:
            a("s_bitcmp1_b32 %s, %s" % (sRep, sB))
            a("s_cbranch_scc1 L_rank%d" % h)
        a("s_mov_b64 exec, -1")
        a("global_load_dword v%d, v%d, s[16:17] offset:%d nt" % (new, vPeerA, DBG_PROG))
        a("s_waitcnt vmcnt(2)")
        a("L_ranked%d:" % h)
        if flag and h == 0:
            a("s_lshl_b32 %s, %s, 1" % (sT0, sRep))
            a("s_bitcmp1_b32 %s, %s" % (sT0, sB))
            a("s_cbranch_scc1 L_count")
            a("L_counted:")
        a("v_cmp_le_i32 vcc, %s, v%d" % (sProg, old))
        a("v_readfirstlane_b32 %s, v%d" % (sT1, old))
        a("s_add_u32 %s, %s, 0x10000" % (sProg, sProg))
        a("s_nop 0")
        a("s_bcnt0_i32_b64 %s, vcc" % sT0)
        a("s_add_u32 %s, %s, %s" % (sT0, sT0, sRnd))
        a("s_bfe_u32 %s, %s, 0x50008" % (sT1, sT1))
        if gg != 2:
            a("s_mul_i32 %s, %s, %d" % (sT1, sT1, gg))
            a("s_lshr_b32 %s, %s, 1" % (sT1, sT1))
        a("s_sub_i32 %s, %s, %s" % (sT0, sT0, sT1))
        if smooth:
            a("s_lshr_b32 s11, s11, 1")
            a("s_add_i32 s11, s11, %s" % sT0)
            a("s_max_i32 s11, s11, 0")
            a("s_ashr_i32 %s, s11, 4" % sT0)
        else:
            a("s_ashr_i32 %s, %s, 3" % (sT0, sT0))
        a("v_med3_i32 v%d, %s, 0, 7" % (vA, sT0))
        a("ds_write_b32 v%d, v%d" % (vCA, vA))

    a("L_ctl:")
    l0 = a.mark()
    ctl(0)
    ctl(1)
    if stamp:
        a("s_waitcnt lgkmcnt(0)")
        a("s_sub_u32 m0, 31, %s" % sB)
        a("s_nop 0")
        a("v_writelane_b32 v%d, s60, m0" % vSt)
    a("s_add_u32 %s, %s, 1" % (sB, sB))
    a("s_cmp_lt_u32 %s, %d" % (sB, T - 1))
    a("s_cbranch_scc1 L_ctl")
    a.loop_check(l0)

    def pub_ml(flags):
        a("s_mov_b32 exec_lo, 0x00010001")
        a("s_mov_b32 exec_hi, 0x00010001")
        a("global_store_dwordx2 v%d, %s, s[18:19] %s" % (vPubML, vr(vML, 2), flags))
        a("s_mov_b64 exec, -1")

    def get_ml():
        a("global_load_dwordx2 %s, v%d, s[18:19] sc1" % (vr(vMLi, 2), vInML))

    def get_o():
        a("global_load_dwordx4 %s, v%d, s[18:19] sc1" % (vr(vX, 4), vInO))
        a("global_load_dwordx4 %s, v%d, s[18:19] offset:64 sc1" % (vr(vX + 4, 4), vInO))

    def bound():
        a("s_sub_u32 %s, %s, 1" % (sCnt, sCnt))
        a("s_cbranch_scc1 L_end")

    a("ds_read_b128 %s, v%d" % (vr(vY, 4), vMrd))
    a("s_and_b32 %s, %s, 0xff" % (sT0, sProg))
    a("v_xor_b32 v%d, %s, v%d" % (vA, sT0, vPeer))
    a("v_and_b32 v%d, 0xff, v%d" % (vB, vA))
    a("v_cmp_eq_u32 vcc, 0, v%d" % vB)
    a("s_lshr_b32 %s, %s, 3" % (sT0, sP))
    a("s_lshl_b32 %s, 0x55555555, %s" % (sT0, sT0))
    a("s_and_b32 %s, %s, vcc_lo" % (sT1, sT0))
    a("v_cmp_le_i32 vcc, 0x10000, v%d" % vA)
    a("s_nop 1")
    a("s_and_b32 %s, %s, vcc_lo" % (sT1, sT1))
    if force:
        a("s_and_b32 s11, s2, %d" % force)
        a("s_cselect_b32 %s, 0, %s" % (sT1, sT1))
    a("s_cmp_eq_u32 %s, %s" % (sT0, sT1))
    a("s_cselect_b32 %s, 0, 0x80000000" % sSlow)
    a("v_mov_b32 v%d, %s" % (vA, sSlow))
    a("ds_write_b32 v%d, v%d offset:4" % (vCA, vA))
    a("s_waitcnt lgkmcnt(0)")
    a("v_max3_f32 v%d, v%d, v%d, v%d" % (vML, vY, vY + 1, vY + 2))
    a("v_max_f32 v%d, v%d, v%d" % (vML, vML, vY + 3))
    a("v_min_u32 v%d, -2, v%d" % (vML, vML))
    a("s_barrier")
    a("s_cbranch_scc0 L_notouch")
    a("global_load_dword v%d, v%d, s[18:19] sc1" % (vVal, vInML))
    a("global_load_dword v%d, v%d, s[18:19] sc1" % (vPeer, vInO))
    a("L_notouch:")
    a("s_barrier")
    a("ds_read2_b32 %s, v%d offset0:0 offset1:4" % (vr(vY, 2), vLrd))
    a("s_waitcnt lgkmcnt(0)")
    a("v_add_f32 v%d, v%d, v%d" % (vML + 1, vY, vY + 1))
    for sh in (8, 4, 2, 1):
        a("v_add_f32_dpp v%d, v%d, v%d row_ror:%d %s" % (vML + 1, vML + 1, vML + 1, sh, DPPF))
    a("v_or_b32 v%d, %s, v%d                ; the sign of L marks a write-through sender"
      % (vML + 1, sSlow, vML + 1))
    a("v_min_u32 v%d, -2, v%d" % (vML + 1, vML + 1))
    pub_ml("")
    a("s_barrier")
    stamp_at(3)
    a("s_cbranch_scc0 L_slow")
    get_ml()
    if early:
        get_o()
    a("s_barrier")
    stamp_at(4)
    if early:
        a("L_first:")
    a("s_waitcnt vmcnt(0)")

    def missing(dst):
        a("v_max3_u32 v%d, v%d, v%d, v%d" % (vA, vX, vX + 1, vX + 2))
        a("v_max3_u32 v%d, v%d, v%d, v%d" % (vB, vX + 3, vX + 4, vX + 5))
        a("v_max3_u32 v%d, v%d, v%d, v%d" % (vA, vA, vX + 6, vX + 7))
        a("v_max_u32 v%d, v%d, v%d" % (vA, vA, vB))
        a("v_cmp_eq_u32 %s, -1, v%d" % (dst, vA))

    full_o = get_o
    if early:
        missing("s[36:37]")

        def get_o():
            a("s_or_b64 exec, s[36:37], 1")
            full_o()
            a("s_mov_b64 exec, -1")

    a("L_ml:")
    a("v_max_u32 v%d, v%d, v%d" % (vA, vMLi, vMLi + 1))
    a("v_cmp_eq_u32 vcc, -1, v%d" % vA)
    a("s_nop 1")
    a("s_and_b64 exec, exec, vcc")
    a("s_cbranch_scc1 L_ml_again")
    a("s_mov_b64 exec, -1")
    if "a" in rpos:
        get_o()
    a("v_max_f32_dpp v%d, v%d, v%d row_ror:4 %s" % (vA, vMLi, vMLi, DPPF))
    a("v_cmp_gt_i32 s[10:11], 0, v%d" % (vMLi + 1))
    if warm:
        a("L_hop4:")
        a("s_cbranch_execz L_back4")
    a("v_max_f32_dpp v%d, v%d, v%d row_ror:8 %s" % (vA, vA, vA, DPPF))
    rows_reduce("v_max_f32", vA, vB)
    a("v_sub_f32 v%d, v%d, v%d" % (vF, vMLi, vA))
    a("v_mul_f32 v%d, %s, v%d" % (vF, sC, vF))
    a("v_exp_f32 v%d, v%d" % (vF, vF))
    if "b" in rpos:
        get_o()
    a("v_mul_f32 v%d, v%d, abs(v%d)" % (vA, vF, vMLi + 1))
    for sh in (4, 8):
        a("v_add_f32_dpp v%d, v%d, v%d row_ror:%d %s" % (vA, vA, vA, sh, DPPF))
    if "c" in rpos:
        get_o()
    for i, swap in enumerate(("v_permlane16_swap_b32", "v_permlane32_swap_b32")):
        a("v_mov_b32 v%d, v%d" % (vB, vA))
        if "de"[i] in rpos:
            get_o()
        a("%s v%d, v%d" % (swap, vA, vB))
        a("v_add_f32 v%d, v%d, v%d" % (vA, vA, vB))
    a("v_rcp_f32 v%d, v%d" % (vA, vA))
    a("v_mul_f32 v%d, v%d, v%d" % (vF, vF, vA))
    if early:
        a("s_or_b64 exec, s[36:37], 1")
    a("L_o:")
    full_o()
    bound()
    a("s_waitcnt vmcnt(%d)" % (2 * rounds - 2))
    missing("vcc")
    a("s_nop 1")
    a("s_and_b64 exec, exec, vcc")
    a("s_cbranch_scc1 L_o")
    a("s_mov_b64 exec, -1")
    stamp_at(5)
    for r in range(0, 8, 2):
        a("v_pk_mul_f32 %s, %s, %s op_sel:[0,1] op_sel_hi:[1,1]"
          % (vr(vY + r, 2), vr(vX + r, 2), vr(vF - 1, 2)))
    for e in range(4):
        a("v_permlane32_swap_b32 v%d, v%d" % (vY + e, vY + 4 + e))
    for e in (0, 2):
        a("v_pk_add_f32 %s, %s, %s" % (vr(vY + e, 2), vr(vY + e, 2), vr(vY + 4 + e, 2)))
    for e in range(2):
        a("v_permlane16_swap_b32 v%d, v%d" % (vY + e, vY + 2 + e))
    a("v_pk_add_f32 %s, %s, %s" % (vr(vY, 2), vr(vY, 2), vr(vY + 2, 2)))
    a("s_cmp_lg_u64 s[10:11], 0")
    for sh in (4, 8):
        for x in (vY, vY + 1):
            a("v_add_f32_dpp v%d, v%d, v%d row_ror:%d %s" % (x, x, x, sh, DPPF))
    a("s_mov_b32 exec_lo, 0x000f000f")
    a("s_mov_b32 exec_hi, 0x000f000f")
    a("v_cvt_pk_bf16_f32 v%d, v%d, v%d" % (vY, vY, vY + 1))
    a("global_store_dword v%d, v%d, s[14:15]" % (vOut, vY))
    a("s_cbranch_scc1 L_help")
    a("L_fin:")
    if timed:
        a("s_waitcnt vmcnt(0)")
        stamp_at(6)
        a("s_mov_b64 exec, -1")
        a("ds_read_b32 v%d, v%d offset:8" % (vA, vCA))
        a("ds_read_b32 v%d, v%d offset:12" % (vB, vCA))
        a("s_waitcnt lgkmcnt(0)")
        a("v_readfirstlane_b32 s40, v%d" % vA)
        a("v_readfirstlane_b32 s44, v%d" % vB)
        a("s_nop 3")
    if stamp:
        a("s_getreg_b32 s54, hwreg(HW_REG_XCC_ID)")
        a("s_or_b32 s54, s54, %s" % sSlow)
        a("s_lshl_b32 %s, s2, 6" % sT1)
        a("s_add_u32 %s, %s, 0x200000" % (sT1, sT1))
        a("v_mov_b32 v%d, %s" % (vA, sT1))
        for i in range(8):
            a("v_mov_b32 v%d, s%d" % (vY + i, 40 + 2 * i))
        a("s_lshl_b32 %s, s2, 8" % sT1)
        a("s_add_u32 %s, %s, 0x300000" % (sT1, sT1))
        a("v_lshl_add_u32 v%d, v%d, 2, %s" % (vB, vLane, sT1))
        a("global_store_dword v%d, v%d, s[18:19]" % (vB, vSt))
        a("s_mov_b64 exec, 1")
        a("global_store_dwordx4 v%d, %s, s[18:19]" % (vA, vr(vY, 4)))
        a("global_store_dwordx4 v%d, %s, s[18:19] offset:16" % (vA, vr(vY + 4, 4)))
    if diagpad:
        def spin(label):
            a("%s:" % label)
            a("s_memrealtime s[58:59]")
            a("s_waitcnt lgkmcnt(0)")
            a("s_sub_u32 s58, s58, s40")
            a("s_cmp_lt_u32 s58, s56")
            a("s_cbranch_scc1 %s" % label)

        a("s_mov_b32 s56, %d" % (diagpad * 100))
        if diagg:
            lo, hi = int(diagg[1]), int(diagg[2])
            a("s_mov_b64 exec, 1")
            a("v_mov_b32 v%d, 120" % vA)
            a("v_mov_b32 v%d, s%d" % (vY, 40 + 2 * hi))
            a("v_mov_b32 v%d, s%d" % (vY + 1, 40 + 2 * lo))
            if diagg[0] in "mn":
                a("v_not_b32 v%d, v%d" % (vY + 1, vY + 1))
            if diagg[0] == "n":
                a("v_not_b32 v%d, v%d" % (vY, vY))
            a("global_atomic_umax v%d, v%d, s[16:17]" % (vA, vY))
            a("global_atomic_umax v%d, v%d, s[16:17] offset:4" % (vA, vY + 1))
        spin("L_pad")
        if diagg:
            a("global_load_dwordx2 %s, v%d, s[16:17] sc1" % (vr(vY, 2), vA))
            a("s_waitcnt vmcnt(0)")
            a("v_readfirstlane_b32 s10, v%d" % vY)
            a("v_readfirstlane_b32 s11, v%d" % (vY + 1))
            a("s_nop 3")
            if diagg[0] in "mn":
                a("s_not_b32 s11, s11")
            if diagg[0] == "n":
                a("s_not_b32 s10, s10")
            a("s_sub_u32 s10, s10, s11")
            a("s_sub_u32 s10, s10, %d" % (diagsub * 100))
            a("s_max_i32 s10, s10, 0")
            a("s_min_u32 s10, s10, 2000")
            a("s_mul_i32 s10, s10, 10")
            a("s_add_u32 s56, s56, s10")
            spin("L_pad2")
    a("s_endpgm")

    def count_in():
        a("; the barrier opens once the loader has ended, that is after its stores completed")
        a("s_waitcnt vmcnt(0)")
        a("s_barrier")
        a("s_mov_b64 exec, 1")
        a("v_mov_b32 v%d, 1" % vVal)
        a("global_atomic_add v%d, v%d, s[16:17]" % (vCntA, vVal))

    if flag:
        vFl = 42
        a("L_rank0:")
        a("s_add_u32 %s, s36, s2" % sT0)
        a("s_lshl_b64 exec, 1, %s" % sT0)
        a("s_lshr_b32 %s, s36, 6" % sT0)
        a("v_add3_u32 v%d, v%d, %s, 1" % (vB, vTwo, sT0))
        a("global_store_dword v%d, v%d, s[18:19] sc1" % (vTkA, vB))
        a("s_mov_b64 exec, -1")
        a("global_load_dword v%d, v%d, s[16:17] offset:%d nt" % (vPeer, vPeerA, DBG_PROG))
        a("s_waitcnt vmcnt(3)")
        a("s_branch L_ranked0")
        a("L_rank1:")
        a("s_lshl_b64 exec, 0xff, s36")
        a("global_load_dword v%d, v%d, s[18:19] sc1" % (vFl, vTkA))
        a("s_mov_b64 exec, -1")
        a("global_load_dword v%d, v%d, s[16:17] offset:%d nt" % (vPeer2, vPeerA, DBG_PROG))
        a("s_waitcnt vmcnt(3)")
        a("s_branch L_ranked1")
        a("L_count:")
        a("s_lshl_b64 exec, 0xff, s36")
        a("s_lshr_b32 %s, s36, 6" % sT0)
        a("v_sub_u32 v%d, v%d, v%d" % (vB, vFl, vTwo))
        a("v_cmp_lt_u32 vcc, %s, v%d" % (sT0, vB))
        a("s_mov_b64 exec, -1")
        a("s_add_u32 s36, s36, 8")
        a("s_bcnt1_i32_b64 %s, vcc" % sT0)
        a("s_lshl_b32 %s, %s, 1" % (sT0, sT0))
        a("v_mov_b32 v%d, %s" % (vTk, sT0))
        a("s_branch L_counted")
    else:
        a("; arrival order of the eight workgroup groups at a checkpoint, in steps of 2")
        a("L_rank0:")
        a("global_atomic_add v%d, v%d, v%d, s[16:17] sc0" % (vTk, vTkA, vTwo))
        a("v_add_u32 v%d, 4, v%d" % (vTkA, vTkA))
        a("s_mov_b64 exec, -1")
        a("global_load_dword v%d, v%d, s[16:17] offset:%d nt" % (vPeer, vPeerA, DBG_PROG))
        a("s_waitcnt vmcnt(3)")
        a("s_branch L_ranked0")

    a("L_help:")
    a("s_cmp_lg_u32 %s, 0" % sSlow)
    a("s_cbranch_scc1 L_fin")
    count_in()
    a("s_branch L_fin")

    a("L_slow:")
    a("s_barrier")
    pub_ml("sc1")
    count_in()
    a("L_cnt:")
    bound()
    a("global_load_dword v%d, v%d, s[16:17] sc1" % (vPeer, vCntA))
    a("s_waitcnt vmcnt(0)")
    a("v_readfirstlane_b32 %s, v%d" % (sT0, vPeer))
    a("s_nop 1")
    a("s_cmp_ge_u32 %s, %d" % (sT0, S))
    a("s_cbranch_scc0 L_cnt")
    a("s_mov_b64 exec, -1")
    if early:
        get_ml()
        full_o()
        a("s_branch L_first")
    a("L_ml_again:")
    get_ml()
    bound()
    a("s_waitcnt vmcnt(0)")
    a("s_branch L_ml")

    vSt, vRdK, vLane, vRd, vMX, vMY, vWM, vNmc, vA, vB, vWO0, vWO1, vWL = range(1, 14)
    vM, vL = 14, 15
    vQ, vO, vT, vXY, vD, vK, vVt, vS = 16, 20, 28, 30, 40, 56, 72, 76
    sI, sOwn, sMask = "s21", "s36", "s35"
    NT = G // 2

    def fold(part, t, da, db):
        src, own, ror, bank = ((da + 1, da, 12, 1), (da + 3, da + 2, 12, 4),
                               (db, db + 1, 4, 2), (db + 2, db + 3, 4, 8))[part]
        a("v_add_f32_dpp v%d, v%d, v%d row_ror:%d row_mask:0xf bank_mask:0x%x"
          % (t, src, own, ror, bank))

    def fold_c(t):
        a("v_add_f32_dpp v%d, v%d, v%d row_ror:8 %s" % (t, t, t, DPPF))

    def advance(rd):
        a("v_add_u32 v%d, %d, v%d" % (rd, N * 1024, rd))
        a("v_and_b32 v%d, %d, v%d" % (rd, RING - 1, rd))

    a("L_cons:")
    a("s_load_dwordx2 s[4:5], s[0:1], 0            ; q")
    a("s_load_dwordx4 s[8:11], s[0:1], 24")
    a("v_and_b32 v%d, 63, v0" % vLane)
    a("s_lshr_b32 %s, %s, 6" % (sW, sW))
    a("s_sub_u32 %s, %s, 1" % (sW, sW))
    a("s_mov_b32 %s, %s" % (sC, f32(CS)))
    a("; QK^T operands: A row = (key, quarter), B column = (quarter, head), lane>>4 = 64-byte block")
    a("v_lshrrev_b32 v%d, 4, v%d" % (vA, vLane))
    a("v_lshlrev_b32 v%d, 6, v%d" % (vA, vA))
    a("v_and_b32 v%d, 3, v%d" % (vB, vLane))
    a("v_bfe_u32 v%d, v%d, 2, 2" % (vWM, vLane))
    a("v_lshl_add_u32 v%d, v%d, 4, v%d" % (vNmc, vB, vA))
    a("v_lshl_add_u32 v%d, v%d, 8, v%d" % (vRdK, vWM, vNmc))
    a("v_lshl_add_u32 v%d, v%d, 8, v%d" % (vA, vB, vA))
    a("v_lshl_add_u32 v%d, v%d, 4, v%d" % (vA, vWM, vA))
    a("v_lshlrev_b32 v%d, 4, v%d" % (vRd, vLane))
    a("s_lshl_b32 %s, %s, 10" % (sT0, sP))
    a("s_lshl_b32 %s, %s, 8" % (sT1, sP))
    a("v_add_u32 v%d, %s, v%d" % (vA, sT0, vA))
    a("v_add_u32 v%d, %s, v%d" % (vNmc, sT1, vNmc))
    a("v_and_b32 v%d, 0xf0, v%d" % (vB, vRd))
    a("v_add_u32 v%d, %s, v%d" % (vB, sT1, vB))
    for r in range(4):
        a("v_mov_b32 v%d, 0" % (vVt + r))
    a("s_or_b32 %s, %s, %s" % (sOwn, sS, sW))
    a("s_waitcnt lgkmcnt(0)")
    if lazy:
        a("s_barrier")
    a("global_load_dwordx4 %s, v%d, s[4:5]" % (vr(vQ, 4), vA))
    a("s_cbranch_scc1 L_notree")
    a("global_load_dwordx4 %s, v%d, s[8:9]" % (vr(vK, 4), vNmc))
    a("global_load_dwordx4 %s, v%d, s[10:11]" % (vr(vVt, 4), vB))
    a("s_load_dword %s, s[12:13], 0" % sMask)
    a("L_notree:")
    if warm:
        a("; fetch code that first runs late, one region per wave")
        a("s_mov_b64 exec, 0")
        for c in range(C - 1):
            a("s_cmp_eq_u32 %s, %d" % (sW, c))
            a("s_cbranch_scc1 L_hop%d" % c)
        a("s_branch L_hop3")
        a("L_back:")
        a("s_mov_b64 exec, -1")
    a("s_lshl_b32 %s, %s, 10" % (sT0, sW))
    a("v_and_b32 v%d, 32, v%d" % (vA, vLane))
    a("v_lshlrev_b32 v%d, 2, v%d" % (vA, vA))
    a("v_xor_b32 v%d, v%d, v%d" % (vRd, vRd, vA))
    a("v_add_u32 v%d, %s, v%d" % (vRd, sT0, vRd))
    a("v_and_b32 v%d, 8, v%d" % (vA, vLane))
    a("v_lshlrev_b32 v%d, 4, v%d" % (vA, vA))
    a("v_xor_b32 v%d, v%d, v%d" % (vRdK, vRdK, vA))
    a("v_add_u32 v%d, %s, v%d" % (vRdK, sT0, vRdK))
    a("s_lshl_b32 %s, %s, 8" % (sT0, sW))
    a("s_add_u32 %s, %s, %d" % (sT0, sT0, ldsL))
    a("v_lshl_add_u32 v%d, v%d, 2, %s" % (vWL, vLane, sT0))
    a("v_and_b32 v%d, 3, v%d" % (vWM, vLane))
    a("v_lshlrev_b32 v%d, 4, v%d" % (vWM, vWM))
    a("v_add_u32 v%d, %d, v%d" % (vWM, ldsM, vWM))
    a("v_bfe_u32 v%d, v%d, 4, 1" % (vA, vLane))
    a("v_bfe_u32 v%d, v%d, 5, 1" % (vB, vLane))
    a("v_lshl_add_u32 v%d, v%d, 1, v%d" % (vA, vA, vB))
    a("v_and_b32 v%d, 15, v%d" % (vB, vLane))
    a("v_lshl_add_u32 v%d, v%d, 2, v%d" % (vA, vB, vA))
    a("s_lshl_b32 %s, %s, 11" % (sT0, sW))
    a("s_add_u32 %s, %s, %d" % (sT0, sT0, ldsO))
    a("v_lshl_add_u32 v%d, v%d, 2, %s" % (vWO0, vA, sT0))
    a("v_xor_b32 v%d, 0x80, v%d" % (vWO1, vWO0))
    a("; PV operand masks: A row = (element of a 4-column group, head) keeps one bf16 of p")
    a("v_and_b32 v%d, 8, v%d" % (vA, vLane))
    a("v_lshlrev_b32 v%d, 1, v%d" % (vA, vA))
    a("v_mov_b32 v%d, 0xffff" % vB)
    a("v_lshlrev_b32 v%d, v%d, v%d" % (vA, vA, vB))
    a("v_bfe_i32 v%d, v%d, 2, 1" % (vB, vLane))
    a("v_and_b32 v%d, v%d, v%d" % (vMY, vA, vB))
    a("v_xor_b32 v%d, v%d, v%d" % (vMX, vA, vMY))
    a("v_mov_b32 v%d, 0xff800000" % vM)
    a("v_mov_b32 v%d, v%d" % (vSt, vM))
    a("s_mov_b32 %s, 0" % sI)
    a("s_cmp_lg_u32 %s, 0" % sOwn)
    a("s_barrier")
    a("s_waitcnt vmcnt(0) lgkmcnt(0)")
    a("s_cbranch_scc1 L_k_in")
    a("v_mfma_f32_16x16x32_bf16 %s, %s, %s, 0" % (vr(vD, 4), vr(vK, 4), vr(vQ, 4)))
    a("s_lshr_b32 %s, %s, 3" % (sT0, sP))
    a("s_lshl_b32 %s, %s, 4" % (sT0, sT0))
    a("s_lshr_b32 %s, %s, %s" % (sMask, sMask, sT0))
    a("s_lshl_b32 %s, %s, 16" % (sMask, sMask))
    a("v_mov_b32 v%d, %s" % (vA, sMask))
    a("v_sub_f32 v%d, 1.0, v%d" % (vA, vA))
    a("v_mul_f32 v%d, %s, v%d           ; (1 - mask) * -1e9 / scale" % (vA, f32(-1e9 * 128 ** 0.5), vA))
    for part in range(4):
        fold(part, vM, vD, vD)
    fold_c(vM)
    a("v_add_f32 v%d, v%d, v%d" % (vM, vM, vA))
    a("s_mov_b64 exec, 0xffff")
    a("v_mov_b32 v%d, v%d" % (vSt, vM))
    a("s_mov_b64 exec, -1")
    a("s_branch L_k_in")

    a("; scores of all keys into v[%d:%d], running per-lane max" % (vS, vS + 63))
    a("L_k:")
    l0 = a.mark()
    a("s_barrier")
    a("L_k_in:")
    for j in range(G):
        a("ds_read_b128 %s, v%d offset:%d" % (vr(vK + 4 * j, 4), vRdK, j * 4096))
    advance(vRdK)
    for j in range(G):
        a("s_waitcnt lgkmcnt(%d)" % (G - 1 - j))
        a("v_mfma_f32_16x16x32_bf16 %s, %s, %s, 0"
          % (vr(vD + 4 * j, 4), vr(vK + 4 * j, 4), vr(vQ, 4)))
    for part in range(4):
        for i in range(NT):
            fold(part, vT + i, vD + 8 * i, vD + 8 * i + 4)
    for i in range(NT):
        fold_c(vT + i)
    a("s_set_gpr_idx_on %s, gpr_idx(DST)" % sI)
    for i in range(NT):
        a("v_mov_b32 v%d, v%d" % (vS + i, vT + i))
    a("s_set_gpr_idx_off")
    a("v_max3_f32 v%d, v%d, v%d, v%d" % (vM, vM, vT, vT + 1))
    a("s_add_u32 %s, %s, %d" % (sI, sI, NT))
    a("s_cmp_lt_u32 %s, 64" % sI)
    a("s_cbranch_scc1 L_k")
    a.loop_check(l0)

    def prep():
        a("s_set_gpr_idx_on %s, gpr_idx(SRC0)" % sI)
        for i in range(NT):
            a("v_mov_b32 v%d, v%d" % (vT + i, vS + i))
        a("s_set_gpr_idx_off")
        for i in range(NT):
            a("v_fma_f32 v%d, v%d, %s, v%d" % (vT + i, vT + i, sC, vNmc))
        for i in range(NT):
            a("v_exp_f32 v%d, v%d" % (vT + i, vT + i))
        a("s_add_u32 %s, %s, %d" % (sI, sI, NT))
        a("s_cmp_lt_u32 %s, %d" % (sI, 64 - NT))
        for i in range(NT):
            a("v_add_f32 v%d, v%d, v%d" % (vL, vL, vT + i))
        for i in range(NT):
            a("v_cvt_pk_bf16_f32 v%d, v%d, v%d" % (vT + i, vT + i, vT + i))
        for i in range(NT):
            x, p = vXY + 4 * i, vT + i
            a("v_and_b32 v%d, v%d, v%d" % (x, p, vMX))
            a("v_and_b32 v%d, v%d, v%d" % (x + 3, p, vMY))
            a("v_and_b32_dpp v%d, v%d, v%d row_ror:4 %s" % (x + 1, p, vMY, DPPF))
            a("v_and_b32_dpp v%d, v%d, v%d row_ror:4 %s" % (x + 2, p, vMX, DPPF))

    def pv(js, adv):
        for j in js:
            a("ds_read_b128 %s, v%d offset:%d" % (vr(vK + 4 * j, 4), vRd, j * 4096))
        if adv:
            advance(vRd)
        for j in js:
            a("s_waitcnt lgkmcnt(%d)" % (js[-1] - j))
            for k in range(2):
                a("v_mfma_f32_16x16x16_bf16 %s, %s, %s, %s"
                  % (vr(vO + 4 * k, 4), vr(vXY + 2 * j, 2), vr(vK + 4 * j + 2 * k, 2),
                     vr(vO + 4 * k, 4)))

    a("v_max_f32_dpp v%d, v%d, v%d row_ror:4 %s" % (vM, vM, vM, DPPF))
    rows_reduce("v_max_f32", vM, vB)
    a("v_lshl_add_u32 v%d, %s, 2, v%d" % (vA, sW, vWM))
    a("ds_write_b32 v%d, v%d" % (vA, vM))
    a("s_mov_b32 %s, 0" % sI)
    a("s_waitcnt lgkmcnt(0)")
    a("s_barrier")
    a("ds_read_b128 %s, v%d" % (vr(vD, 4), vWM))
    a("s_waitcnt lgkmcnt(0)")
    a("v_max3_f32 v%d, v%d, v%d, v%d" % (vM, vD, vD + 1, vD + 2))
    a("v_max_f32 v%d, v%d, v%d" % (vM, vM, vD + 3))
    a("v_mul_f32 v%d, %s, v%d" % (vNmc, f32(-CS), vM))
    a("v_fma_f32 v%d, v%d, %s, v%d" % (vA, vSt, sC, vNmc))
    a("v_exp_f32 v%d, v%d" % (vA, vA))
    a("v_cmp_ne_u32 vcc, 0, v%d" % vMX)
    a("v_cvt_pk_bf16_f32 v%d, v%d, v%d" % (vB, vA, vA))
    a("v_and_b32 v%d, v%d, v%d" % (vXY, vB, vMX))
    a("v_and_b32 v%d, v%d, v%d" % (vXY + 1, vB, vMY))
    a("v_cndmask_b32 v%d, 0, v%d, vcc" % (vL, vA))
    for k in range(2):
        a("v_mfma_f32_16x16x16_bf16 %s, %s, %s, 0"
          % (vr(vO + 4 * k, 4), vr(vXY, 2), vr(vVt + 2 * k, 2)))
    prep()
    e0 = a.mark()
    a("s_branch L_v_in")
    if warm:
        a("L_hop3:")
        a("s_branch %s" % ("L_hop5" if warm == 2 else "L_back"))

    a("L_v:")
    l0 = a.mark()
    prep()
    a("s_barrier")
    a("L_v_in:")
    e1 = a.mark()
    pv(list(range(G)), True)
    a("s_cbranch_scc1 L_v")
    a.loop_check(l0)
    a.edge_check(e0, e1)
    prep()
    a("ds_write_b32 v%d, v%d" % (vWL, vL))
    a("s_waitcnt lgkmcnt(0)")
    a("s_barrier")
    pv(list(range(G - 1)), False)
    a("s_barrier")
    pv([G - 1], False)
    for r in range(8):
        a("ds_write_b32 v%d, v%d offset:%d"
          % (vWO1 if r >= 4 else vWO0, vO + r, (r % 4) * 512 + (r // 4) * 256))
    a("s_waitcnt lgkmcnt(0)")
    a("s_barrier")
    a("L_last:")
    a("s_endpgm")
    if wake:
        a(".fill 7000, 4, 0xbf810000")

    nvg = max(a.max_v(), vS + 64)
    acc = (nvg + 3) // 4 * 4
    out = HEADER
    out += "; @launch grid=(%d,1,1) block=(%d,1,1) lds=%d\n" % (NWG, 64 * (C + 2), LDS)
    out += DOC
    out += '.amdgcn_target "amdgcn-amd-amdhsa--gfx950"\n.text\n'
    out += ".globl %s_kernel\n.p2align 8\n.type %s_kernel,@function\n" % (NAME, NAME)
    out += a.text()
    out += """.section .rodata,"a"
.p2align 6
.amdhsa_kernel %s_kernel
  .amdhsa_next_free_vgpr %d
  .amdhsa_next_free_sgpr 64
  .amdhsa_accum_offset %d
  .amdhsa_group_segment_fixed_size 0
  .amdhsa_kernarg_size 72
  .amdhsa_user_sgpr_count 2
  .amdhsa_user_sgpr_kernarg_segment_ptr 1
  .amdhsa_system_sgpr_workgroup_id_x 1
.end_amdhsa_kernel
""" % (NAME, nvg, acc)
    return out


if __name__ == "__main__":
    kw = {}
    for arg in sys.argv[2:]:
        k, v = arg.split("=")
        kw[k] = int(v) if v.lstrip("-").isdigit() else v
    open(sys.argv[1], "w").write(gen(**kw))
```

```python
import math
import struct
import sys

from asmlib import Asm

NAME = "standalone__tree_speculative_verify_tree_attention_over_candidate_token_tree__decode"
HEADER = open("cdna_kernels/%s.s.ref" % NAME).read().split("; Override launch")[0]
DPPF = "row_mask:0xf bank_mask:0xf"

DOC = """\
; Split-KV decode attention, one workgroup per CU, 16 workgroups (slices) per (batch, kv head) pair.
;   wave 0     loader: streams its K pieces, then its V pieces, into a 64 KiB LDS ring (LDS-DMA).
;   wave 5     controller: picks the loader's depth from the workgroup's rank among its
;              neighbours (speed only), and gathers 32 output columns from the pair's 16 slices.
; K is read before V, and pieces are ordered so that concurrent loads spread over all memory
; channels and share DRAM rows; the order and the depth choice never change what is computed.
; relied on only if all 16 slices have reported this XCD and their reset in d_debug; otherwise the
; messages are written through and a d_debug counter orders them.
; d_debug: pair counters at 0, checkpoint counters at 64, progress words at 128.
"""


def f32(x):
    return "0x%08x" % struct.unpack("<I", struct.pack("<f", x))[0]


def vr(a, n):
    return "v[%d:%d]" % (a, a + n - 1)


def gen(depths=(23, 22, 21, 20, 19, 18, 17, 16), D0=20, rnd=6, endk=0, endo=0, tr=(), lvmin=0, bias=2, gm=(5, 21, 37, 51), gg=2,
        sbits=(14, 15, 16, 18), tbits=(21, 19, 20, 22, 17), xs=((1, 12), (2, 13)), jb=(12, 13),
        rdpos=14, fixpos=1, smooth=0, pad=0, flag=0, ctr=0, lazy=0, wake=0, rounds=3, rpos="ad", early=0, txs=(), ksplit=1, pre=1, warm=0, stamp=0, diagpad=0, diagg=None, diagsub=0, force=0):
    N, C, G, S, T = 16, 4, 4, 16, 32
    NWG = 16 * S
    RING = 65536
    if isinstance(depths, str):
        depths = tuple(int(x) for x in depths.split("."))
    if isinstance(gm, str):
        gm = tuple(int(x) for x in gm.split("."))
    assert len(depths) == 8 and max(depths) <= 32 and N <= D0 <= 32
    assert sorted(list(jb) + list(sbits) + list(tbits)) == list(range(12, 23))
    seen = set()
    for s_ in range(16):
        for t_ in range(32):
            base = 0
            for v, terms in ((s_, list(enumerate(sbits)) + list(xs)), (t_, list(enumerate(tbits)) + list(txs))):
                for src, dst in terms:
                    base ^= (v >> src & 1) << dst
            seen |= {base ^ (q & 1) << jb[0] ^ (q >> 1) << jb[1] for q in range(4)}
    assert seen == {i << 12 for i in range(2048)}
    CS = 128 ** -0.5 * math.log2(math.e)
    timed = stamp or diagpad
    rounds = len(rpos) + 1
    a = Asm()

    ldsO = RING
    ldsL = ldsO + C * 2048
    ldsM = ldsL + C * 256
    ldsC = ldsM + 64
    LDS = ldsC + 16
    WS_ML = 0x100000
    DBG_RANK, DBG_PROG = 64, 128

    sW, sP, sS, sCnt, sC, sT0, sT1, sIdx = "s3", "s6", "s7", "s22", "s23", "s32", "s33", "s34"

    def stamp_at(i):
        if timed:
            a("s_memrealtime s[%d:%d]" % (40 + 2 * i, 41 + 2 * i))

    def rows_reduce(op, x, tmp):
        for swap in ("v_permlane16_swap_b32", "v_permlane32_swap_b32"):
            a("v_mov_b32 v%d, v%d" % (tmp, x))
            a("%s v%d, v%d" % (swap, x, tmp))
            a("%s v%d, v%d, v%d" % (op, x, x, tmp))

    def runs(bits):
        i = 0
        while i < len(bits):
            n = 1
            while (i + n < len(bits) and bits[i + n][0] == bits[i][0] + n
                   and bits[i + n][1] == bits[i][1] + n):
                n += 1
            yield bits[i][0], n, bits[i][1]
            i += n

    def pair_index():
        a("s_lshl_b32 %s, %s, 4" % (sIdx, sP))
        a("s_add_u32 %s, %s, %s" % (sIdx, sIdx, sS))

    a("%s_kernel:" % NAME)
    a("s_load_dwordx2 s[24:25], s[0:1], 8          ; k_cache")
    def rest():
        a("s_load_dwordx2 s[28:29], s[0:1], 16         ; v_cache")
        a("s_load_dwordx8 s[12:19], s[0:1], 40         ; tree_mask, out, debug, ws")

    if not ksplit:
        rest()
    stamp_at(0)
    a("v_readfirstlane_b32 %s, v0" % sW)
    a("s_cmp_ge_u32 s2, %d" % NWG)
    a("s_cbranch_scc1 L_end")
    a("s_and_b32 %s, s2, 15" % sP)
    a("s_lshr_b32 %s, s2, 4" % sS)
    a("s_cmp_eq_u32 %s, 0" % sW)
    a("s_cbranch_scc1 L_loader")
    if ksplit:
        rest()
    if pre:
        a("; one wave of the first workgroups pulls the code into L2")
        a("s_sub_u32 %s, %s, 64" % (sT0, sW))
        a("s_or_b32 %s, %s, %s" % (sT0, sT0, sS))
        a("s_cbranch_scc1 L_nopre")
        a("s_getpc_b64 s[36:37]")
        a("L_pc:")
        a("v_lshlrev_b32 v1, 7, v0")
        a("v_and_b32 v1, 0x1fff, v1")
        if wake:
            for k in range(4):
                a("global_load_dword v38, v1, s[36:37]")
                a("v_add_u32 v1, 0x2000, v1")
        else:
            a("v_min_u32 v1, L_last-L_pc, v1")
            a("global_load_dword v38, v1, s[36:37]")
        a("L_nopre:")
    a("s_cmp_eq_u32 %s, %d" % (sW, 64 * (C + 1)))
    a("s_cbranch_scc1 L_ctrl")
    a("s_branch L_cons")

    vOff, vTab, vA, vB, vLvA, vLv, vOrd0, vOrd1, vPubO, vCntA = range(1, 11)
    vAcc, vBuf = 12, 20
    sK, sTK, sU, sLv = "s20", "s38", "s37", "s5"
    a("L_loader:")
    a("s_setprio 3")
    a("s_lshl_b32 %s, %s, 23" % (sTK, sP))
    for src, n, dst in runs(list(enumerate(sbits)) + list(xs)):
        a("s_bfe_u32 %s, %s, 0x%x" % (sT0, sS, n << 16 | src))
        a("s_lshl_b32 %s, %s, %d" % (sT0, sT0, dst))
        a("s_xor_b32 %s, %s, %s" % (sTK, sTK, sT0))
    a("s_mov_b32 %s, %s" % (sK, sTK))
    a("s_mov_b32 s26, 0x8000000")
    a("s_mov_b32 s27, 0x00020000")
    a("s_mov_b32 m0, 0")
    a("v_lshlrev_b32 v%d, 4, v0" % vA)
    a("v_and_b32 v%d, 32, v0" % vB)
    a("v_lshlrev_b32 v%d, 2, v%d" % (vB, vB))
    a("v_xor_b32 v%d, v%d, v%d" % (vOff, vA, vB))

    def load(j):
        a("buffer_load_dwordx4 v%d, s[24:27], %s offen offset:%d nt lds" % (vOff, sK, (j % 4) * 1024))
        if j % 4 == 3:
            a("s_add_u32 m0, m0, 4096")
            if j + 1 < N:
                q = (j + 1) // 4
                a("s_xor_b32 %s, %s, %d" % (sK, sTK, (q & 1) << jb[0] | (q >> 1) << jb[1]))

    a("s_waitcnt lgkmcnt(0)")
    for j in range(N):
        load(j)
    one = 1 << tbits[0]
    for src, dst in txs:
        one ^= (src == 0) << dst
    a("s_xor_b32 %s, %s, %d" % (sTK, sTK, one))
    a("s_mov_b32 %s, %s" % (sK, sTK))
    for j in range(D0 - N):
        load(j)
    if ksplit:
        rest()
    a("s_xor_b32 %s, %s, %d" % (sT0, sTK, one))
    a("v_mov_b32 v%d, %s" % (vTab, sT0))
    for src, n, dst in runs(list(enumerate(tbits)) + list(txs)):
        a("v_bfe_u32 v%d, v0, %d, %d" % (vA, src, n))
        a("v_lshlrev_b32 v%d, %d, v%d" % (vA, dst, vA))
        a("v_xor_b32 v%d, v%d, v%d" % (vTab, vTab, vA))
    a("; addresses for the workgroup's final sum, lane = (head, 16-byte column)")
    pair_index()
    a("v_mov_b32 v%d, %d" % (vLvA, ldsC))
    a("v_mov_b32 v%d, 4" % vLv)
    a("v_lshrrev_b32 v%d, 4, v0" % vA)
    a("v_and_b32 v%d, 15, v0" % vB)
    a("v_and_b32 v%d, 1, v0" % vOrd0)
    a("v_mul_u32_u24 v%d, 24, v%d" % (vOrd0, vOrd0))
    a("v_bfe_u32 v%d, v0, 1, 3" % vOrd1)
    a("v_add_u32 v%d, v%d, v%d" % (vOrd0, vOrd0, vOrd1))
    a("v_lshl_add_u32 v%d, v%d, 5, v%d" % (vOrd0, vA, vOrd0))
    a("v_lshlrev_b32 v%d, 4, v%d" % (vOrd0, vOrd0))
    a("v_add_u32 v%d, %d, v%d" % (vOrd0, ldsO, vOrd0))
    a("v_xor_b32 v%d, 0x80, v%d" % (vOrd1, vOrd0))
    a("s_lshl_b32 %s, %s, 11" % (sT0, sIdx))
    a("v_lshl_add_u32 v%d, v%d, 5, v%d" % (vPubO, vA, vB))
    a("v_lshl_add_u32 v%d, v%d, 4, %s" % (vPubO, vPubO, sT0))
    a("s_mov_b32 %s, 2" % sU)
    if timed:
        a("v_mov_b32 v%d, s40" % vA)
        a("ds_write_b32 v%d, v%d offset:8" % (vLvA, vA))
        a("s_waitcnt vmcnt(%d)" % (D0 - 1))
        a("s_memrealtime s[44:45]")
        a("s_waitcnt lgkmcnt(0)")
        a("v_mov_b32 v%d, s44" % vA)
        a("ds_write_b32 v%d, v%d offset:12" % (vLvA, vA))
    for j in range(D0 - N, N):
        a("s_waitcnt vmcnt(%d)" % (D0 - 1))
        load(j)
        if lazy and j == D0 - N:
            a("s_barrier")

    a("L_next:")
    a("v_readlane_b32 %s, v%d, %s" % (sTK, vTab, sU))
    a("s_waitcnt lgkmcnt(0)")
    a("v_readfirstlane_b32 %s, v%d" % (sLv, vLv))
    a("s_and_b32 m0, m0, %d" % (RING - 1))
    a("s_cmp_eq_u32 %s, %d" % (sU, T))
    a("s_cselect_b64 s[24:25], s[28:29], s[24:25]")
    for u, lv in tr:
        a("s_cmp_eq_u32 %s, %d" % (sU, u))
        a("s_cselect_b32 %s, %d, %s" % (sLv, lv, sLv))
    a("s_add_u32 %s, %s, 1" % (sU, sU))
    a("s_mov_b32 %s, %s" % (sK, sTK))

    def block(lv):
        d = depths[lv]
        a("; %d loads in flight; piece u-2 has landed at the barrier" % d)
        for j in range(N):
            a("s_waitcnt vmcnt(%d)" % (d - 1))
            load(j)
            if j == max(0, d - N - 1, depths[lvmin] + lvmin - N - 1 if fixpos else 0):
                a("s_barrier")
            if j == rdpos:
                a("ds_read_b32 v%d, v%d" % (vLv, vLvA))
        a("s_cmp_lt_u32 %s, %d" % (sU, 2 * T))
        a("s_cbranch_scc1 L_next")
        if lv != 7:
            a("s_branch L_drain")
            if warm == 1 and lv % 3 == 0:
                a("L_hop%d:" % (lv // 3))
                a("s_branch L_back")
            if warm == 2 and lv % 2 == 0:
                a("L_hop%s:" % "0125"[lv // 2])
                a("s_branch L_back")

    def tree(lo, bit):
        if bit < 0:
            block(lo)
            return
        a("s_bitcmp1_b32 %s, %d" % (sLv, bit))
        a("s_cbranch_scc1 L_lv%d" % (lo + (1 << bit)))
        tree(lo, bit - 1)
        a("L_lv%d:" % (lo + (1 << bit)))
        tree(lo + (1 << bit), bit - 1)

    tree(0, 2)
    a("L_drain:")
    a("s_waitcnt vmcnt(%d)" % N)
    a("s_barrier")
    a("s_waitcnt vmcnt(%d)" % C)
    a("s_barrier")
    a("ds_read_b32 v%d, v%d offset:4" % (vLv, vLvA))
    a("s_waitcnt vmcnt(0)")
    a("s_barrier")
    a("s_waitcnt lgkmcnt(0)")
    a("v_readfirstlane_b32 %s, v%d" % (sLv, vLv))
    a("s_nop 1")
    a("s_cmp_lg_u32 %s, 0" % sLv)
    a("s_barrier")
    for k in range(2):
        for c in range(C):
            a("ds_read_b128 %s, v%d offset:%d"
              % (vr(vBuf + 16 * k + 4 * c, 4), vOrd1 if k else vOrd0, c * 2048))

    def pub_o(k, flags):
        a("global_store_dwordx4 v%d, %s, s[18:19] offset:%d %s"
          % (vPubO, vr(vAcc + 4 * k, 4), 256 * k, flags))

    for k in range(2):
        for c in range(1, C):
            a("s_waitcnt lgkmcnt(%d)" % (7 - 4 * k - c))
            for r in (0, 2):
                prev = vBuf + 16 * k + r if c == 1 else vAcc + 4 * k + r
                a("v_pk_add_f32 %s, %s, %s"
                  % (vr(vAcc + 4 * k + r, 2), vr(prev, 2), vr(vBuf + 16 * k + 4 * c + r, 2)))
        for r in range(4):
            a("v_min_u32 v%d, -2, v%d" % (vAcc + 4 * k + r, vAcc + 4 * k + r))
        pub_o(k, "")
    a("s_cbranch_scc0 L_sent")
    pub_o(0, "sc1")
    pub_o(1, "sc1")
    a("L_sent:")
    a("s_waitcnt vmcnt(0)")
    a("L_end:")
    a("s_endpgm")

    vLane, vA, vB, vSlot, vPeerA, vPeer, vVal, vTk, vTkA, vTwo, vCA, vLrd, vMrd = range(1, 14)
    vOut, vF = 14, 15
    vML, vMLi, vX, vY = 16, 18, 20, 28
    vPubML, vInO, vInML, vCntA, vSt = 36, 37, 38, 39, 40
    sProg, sRnd, sSlow, sRep, sB = "s4", "s8", "s9", "s10", "s21"
    vPeer2 = 41
    for _ in range(pad):
        a("s_nop 0")
    a("L_ctrl:")
    a("v_and_b32 v%d, 63, v0" % vLane)
    pair_index()
    a("v_and_b32 v%d, 31, v%d" % (vPeerA, vLane))
    a("v_lshlrev_b32 v%d, 2, v%d" % (vPeerA, vPeerA))
    a("s_lshl_b32 %s, %s, 11" % (sT0, sIdx))
    a("v_lshl_add_u32 v%d, v%d, 4, %s" % (vA, vLane, sT0))
    a("s_lshl_b32 %s, %s, 7" % (sT1, sIdx))
    a("s_add_u32 %s, %s, %d" % (sT1, sT1, WS_ML))
    a("v_and_b32 v%d, 7, v%d" % (vB, vLane))
    a("v_lshl_add_u32 v%d, v%d, 4, %s" % (vB, vB, sT1))
    for r in range(10):
        a("v_mov_b32 v%d, -1" % (vMLi + r))
    a("s_waitcnt lgkmcnt(0)")
    stamp_at(1)
    if lazy:
        a("s_barrier")
    a("global_load_dword v%d, v%d, s[16:17] offset:%d" % (vPeer, vPeerA, DBG_PROG))
    a("global_store_dwordx4 v%d, %s, s[18:19]" % (vA, vr(vX, 4)))
    a("global_store_dwordx4 v%d, %s, s[18:19] offset:1024" % (vA, vr(vX, 4)))
    a("global_store_dwordx4 v%d, %s, s[18:19]" % (vB, vr(vX, 4)))
    a("; progress word: (pieces landed << 16) | (group rank << 8) | (XCD << 3) | (workgroup id & 7)")
    a("s_getreg_b32 %s, hwreg(HW_REG_XCC_ID, 0, 4)" % sT0)
    a("s_and_b32 %s, %s, 1" % (sRnd, sT0))
    a("s_mul_i32 %s, %s, %d" % (sRnd, sRnd, 2 * bias))
    top = 16 - ctr if flag else 7
    a("s_add_u32 %s, %s, %d" % (sRnd, sRnd, rnd - bias + top * gg // 2))
    a("s_lshl_b32 %s, %s, 3" % (sT0, sT0))
    a("s_and_b32 %s, s2, 7" % sProg)
    a("s_or_b32 %s, %s, %s" % (sProg, sProg, sT0))
    a("s_lshr_b32 %s, s2, 3" % sT0)
    a("s_lshl_b32 %s, %s, 2" % (sT0, sT0))
    a("v_mov_b32 v%d, %s" % (vSlot, sT0))
    assert all(c % 2 == 1 for c in gm)
    a("s_cmp_lt_u32 s2, 8")
    a("s_cselect_b32 %s, 0x%x, 0" % (sRep, sum(1 << (c // 2) for c in gm)))
    if flag:
        assert all(y - x >= 4 for x, y in zip(gm, gm[1:]))
        a("v_mov_b32 v%d, %d" % (vTk, top))
        a("v_mul_u32_u24 v%d, %d, v%d" % (vTkA, flag, vLane))
        a("v_add_u32 v%d, %d, v%d" % (vTkA, 0x180000, vTkA))
        a("s_mov_b32 s36, 0")
        a("s_cbranch_scc0 L_nosnap")
        a("global_load_dword v%d, v%d, s[18:19] sc1" % (vTwo, vTkA))
        a("L_nosnap:")
    else:
        a("v_mov_b32 v%d, 7" % vTk)
        a("v_mov_b32 v%d, %d" % (vTkA, DBG_RANK))
        a("v_mov_b32 v%d, 2" % vTwo)
    a("v_mov_b32 v%d, %d" % (vCA, ldsC))
    a("v_mov_b32 v%d, 4" % vF)
    a("ds_write_b32 v%d, v%d" % (vCA, vF))
    a("s_mov_b32 %s, %s" % (sC, f32(CS)))
    a("s_lshl_b32 %s, %s, 2" % (sT0, sP))
    a("v_mov_b32 v%d, %s" % (vCntA, sT0))
    a("v_lshrrev_b32 v%d, 4, v%d" % (vOut, vLane))
    a("v_and_b32 v%d, 15, v%d" % (vLrd, vLane))
    a("v_lshlrev_b32 v%d, 6, v%d" % (vLrd, vLrd))
    a("v_lshl_add_u32 v%d, v%d, 2, v%d" % (vLrd, vOut, vLrd))
    a("v_add_u32 v%d, %d, v%d" % (vLrd, ldsL, vLrd))
    a("v_lshlrev_b32 v%d, 4, v%d" % (vMrd, vOut))
    a("v_add_u32 v%d, %d, v%d" % (vMrd, ldsM, vMrd))
    a("v_lshl_add_u32 v%d, v%d, 3, %s" % (vPubML, vOut, sT1))
    a("v_lshrrev_b32 v%d, 2, v%d" % (vInML, vLane))
    a("v_and_b32 v%d, 3, v%d" % (vF, vLane))
    a("s_lshl_b32 %s, %s, 8" % (sT0, sP))
    a("s_add_u32 %s, %s, %s" % (sT0, sT0, sS))
    a("s_lshl_b32 %s, %s, 7" % (sT0, sT0))
    a("v_lshl_add_u32 v%d, v%d, 7, v%d" % (vInO, vInML, vF))
    a("v_lshl_add_u32 v%d, v%d, 4, %s" % (vInO, vInO, sT0))
    a("s_lshl_b32 %s, %s, 11" % (sT0, sP))
    a("s_lshr_b32 %s, %s, 2" % (sT1, sS))
    a("s_lshl_b32 %s, %s, 3" % (sT1, sT1))
    a("s_add_u32 %s, %s, %s" % (sT0, sT0, sT1))
    a("s_add_u32 %s, %s, %d" % (sT0, sT0, WS_ML))
    a("v_lshl_add_u32 v%d, v%d, 7, %s" % (vInML, vInML, sT0))
    a("v_lshrrev_b32 v%d, 5, v%d" % (vOut, vLane))
    a("v_lshl_add_u32 v%d, v%d, 2, v%d" % (vOut, vOut, vF))
    a("v_bfe_u32 v%d, v%d, 4, 1" % (vF, vLane))
    a("v_lshl_add_u32 v%d, v%d, 1, v%d" % (vOut, vOut, vF))
    a("s_lshl_b32 %s, %s, 6" % (sT0, sIdx))
    a("v_lshl_add_u32 v%d, v%d, 2, %s" % (vOut, vOut, sT0))
    a("s_mov_b32 %s, 0" % sB)
    if smooth:
        a("s_mov_b32 s11, 72")
    a("v_lshlrev_b32 v%d, 31, v%d" % (vPeer2, vLane))
    a("v_or_b32 v%d, 0x%x, v%d" % (vPeer2, top << 8 | 0xff, vPeer2))
    a("s_mov_b32 %s, 0x200000                ; bound on all polling rounds" % sCnt)
    a("s_waitcnt lgkmcnt(0)")
    if warm:
        a("s_mov_b64 exec, 0")
        a("s_branch L_hop4")
        a("L_back4:")
    a("s_mov_b64 exec, 1")
    a("s_barrier")
    a("s_waitcnt vmcnt(0)")
    a("s_branch L_ctl_in")

    def ctl(h):
        new, old = (vPeer, vPeer2)[h], (vPeer2, vPeer)[h]
        a("s_mov_b64 exec, 1")
        a("s_barrier")
        if h == 0:
            a("L_ctl_in:")
        if stamp and h == 1:
            a("s_memrealtime s[60:61]")
        a("s_add_u32 %s, %s, 0x10000" % (sT0, sProg))
        a("v_lshl_or_b32 v%d, v%d, 8, %s" % (vVal, vTk, sT0))
        a("global_store_dword v%d, v%d, s[16:17] offset:%d" % (vSlot, vVal, DBG_PROG))
        if h == 0 or flag:
            a("s_bitcmp1_b32 %s, %s" % (sRep, sB))
            a("s_cbranch_scc1 L_rank%d" % h)
        a("s_mov_b64 exec, -1")
        a("global_load_dword v%d, v%d, s[16:17] offset:%d nt" % (new, vPeerA, DBG_PROG))
        a("s_waitcnt vmcnt(2)")
        a("L_ranked%d:" % h)
        if flag and h == 0:
            a("s_lshl_b32 %s, %s, 1" % (sT0, sRep))
            a("s_bitcmp1_b32 %s, %s" % (sT0, sB))
            a("s_cbranch_scc1 L_count")
            a("L_counted:")
        a("v_cmp_le_i32 vcc, %s, v%d" % (sProg, old))
        a("v_readfirstlane_b32 %s, v%d" % (sT1, old))
        a("s_add_u32 %s, %s, 0x10000" % (sProg, sProg))
        a("s_nop 0")
        a("s_bcnt0_i32_b64 %s, vcc" % sT0)
        a("s_add_u32 %s, %s, %s" % (sT0, sT0, sRnd))
        a("s_bfe_u32 %s, %s, 0x50008" % (sT1, sT1))
        if gg != 2:
            a("s_mul_i32 %s, %s, %d" % (sT1, sT1, gg))
            a("s_lshr_b32 %s, %s, 1" % (sT1, sT1))
        a("s_sub_i32 %s, %s, %s" % (sT0, sT0, sT1))
        if endk:
            a("s_lshl_b32 %s, %s, 1" % (sT1, sT0))
            a("s_sub_i32 %s, %s, %d" % (sT1, sT1, 31 + rnd + endo))
            a("s_cmp_ge_u32 %s, %d" % (sB, T - 1 - endk))
            a("s_cselect_b32 %s, %s, %s" % (sT0, sT1, sT0))
        if smooth:
            a("s_lshr_b32 s11, s11, 1")
            a("s_add_i32 s11, s11, %s" % sT0)
            a("s_max_i32 s11, s11, 0")
            a("s_ashr_i32 %s, s11, 4" % sT0)
        else:
            a("s_ashr_i32 %s, %s, 3" % (sT0, sT0))
        a("v_med3_i32 v%d, %s, %d, 7" % (vA, sT0, lvmin))
        a("ds_write_b32 v%d, v%d" % (vCA, vA))

    a("L_ctl:")
    l0 = a.mark()
    ctl(0)
    ctl(1)
    if stamp:
        a("s_waitcnt lgkmcnt(0)")
        a("s_sub_u32 m0, 31, %s" % sB)
        a("s_nop 0")
        a("v_writelane_b32 v%d, s60, m0" % vSt)
    a("s_add_u32 %s, %s, 1" % (sB, sB))
    a("s_cmp_lt_u32 %s, %d" % (sB, T - 1))
    a("s_cbranch_scc1 L_ctl")
    a.loop_check(l0)

    def pub_ml(flags):
        a("s_mov_b32 exec_lo, 0x00010001")
        a("s_mov_b32 exec_hi, 0x00010001")
        a("global_store_dwordx2 v%d, %s, s[18:19] %s" % (vPubML, vr(vML, 2), flags))
        a("s_mov_b64 exec, -1")

    def get_ml():
        a("global_load_dwordx2 %s, v%d, s[18:19] sc1" % (vr(vMLi, 2), vInML))

    def get_o():
        a("global_load_dwordx4 %s, v%d, s[18:19] sc1" % (vr(vX, 4), vInO))
        a("global_load_dwordx4 %s, v%d, s[18:19] offset:64 sc1" % (vr(vX + 4, 4), vInO))

    def bound():
        a("s_sub_u32 %s, %s, 1" % (sCnt, sCnt))
        a("s_cbranch_scc1 L_end")

    a("ds_read_b128 %s, v%d" % (vr(vY, 4), vMrd))
    a("s_and_b32 %s, %s, 0xff" % (sT0, sProg))
    a("v_xor_b32 v%d, %s, v%d" % (vA, sT0, vPeer))
    a("v_and_b32 v%d, 0xff, v%d" % (vB, vA))
    a("v_cmp_eq_u32 vcc, 0, v%d" % vB)
    a("s_lshr_b32 %s, %s, 3" % (sT0, sP))
    a("s_lshl_b32 %s, 0x55555555, %s" % (sT0, sT0))
    a("s_and_b32 %s, %s, vcc_lo" % (sT1, sT0))
    a("v_cmp_le_i32 vcc, 0x10000, v%d" % vA)
    a("s_nop 1")
    a("s_and_b32 %s, %s, vcc_lo" % (sT1, sT1))
    if force:
        a("s_and_b32 s11, s2, %d" % force)
        a("s_cselect_b32 %s, 0, %s" % (sT1, sT1))
    a("s_cmp_eq_u32 %s, %s" % (sT0, sT1))
    a("s_cselect_b32 %s, 0, 0x80000000" % sSlow)
    a("v_mov_b32 v%d, %s" % (vA, sSlow))
    a("ds_write_b32 v%d, v%d offset:4" % (vCA, vA))
    a("s_waitcnt lgkmcnt(0)")
    a("v_max3_f32 v%d, v%d, v%d, v%d" % (vML, vY, vY + 1, vY + 2))
    a("v_max_f32 v%d, v%d, v%d" % (vML, vML, vY + 3))
    a("v_min_u32 v%d, -2, v%d" % (vML, vML))
    a("s_barrier")
    a("s_cbranch_scc0 L_notouch")
    a("global_load_dword v%d, v%d, s[18:19] sc1" % (vVal, vInML))
    a("global_load_dword v%d, v%d, s[18:19] sc1" % (vPeer, vInO))
    a("L_notouch:")
    a("s_barrier")
    a("ds_read2_b32 %s, v%d offset0:0 offset1:4" % (vr(vY, 2), vLrd))
    a("s_waitcnt lgkmcnt(0)")
    a("v_add_f32 v%d, v%d, v%d" % (vML + 1, vY, vY + 1))
    for sh in (8, 4, 2, 1):
        a("v_add_f32_dpp v%d, v%d, v%d row_ror:%d %s" % (vML + 1, vML + 1, vML + 1, sh, DPPF))
    a("v_or_b32 v%d, %s, v%d                ; the sign of L marks a write-through sender"
      % (vML + 1, sSlow, vML + 1))
    a("v_min_u32 v%d, -2, v%d" % (vML + 1, vML + 1))
    pub_ml("")
    a("s_barrier")
    stamp_at(3)
    a("s_cbranch_scc0 L_slow")
    get_ml()
    if early:
        get_o()
    a("s_barrier")
    stamp_at(4)
    if early:
        a("L_first:")
    a("s_waitcnt vmcnt(0)")

    def missing(dst):
        a("v_max3_u32 v%d, v%d, v%d, v%d" % (vA, vX, vX + 1, vX + 2))
        a("v_max3_u32 v%d, v%d, v%d, v%d" % (vB, vX + 3, vX + 4, vX + 5))
        a("v_max3_u32 v%d, v%d, v%d, v%d" % (vA, vA, vX + 6, vX + 7))
        a("v_max_u32 v%d, v%d, v%d" % (vA, vA, vB))
        a("v_cmp_eq_u32 %s, -1, v%d" % (dst, vA))

    full_o = get_o
    if early:
        missing("s[36:37]")

        def get_o():
            a("s_or_b64 exec, s[36:37], 1")
            full_o()
            a("s_mov_b64 exec, -1")

    a("L_ml:")
    a("v_max_u32 v%d, v%d, v%d" % (vA, vMLi, vMLi + 1))
    a("v_cmp_eq_u32 vcc, -1, v%d" % vA)
    a("s_nop 1")
    a("s_and_b64 exec, exec, vcc")
    a("s_cbranch_scc1 L_ml_again")
    a("s_mov_b64 exec, -1")
    if "a" in rpos:
        get_o()
    a("v_max_f32_dpp v%d, v%d, v%d row_ror:4 %s" % (vA, vMLi, vMLi, DPPF))
    a("v_cmp_gt_i32 s[10:11], 0, v%d" % (vMLi + 1))
    if warm:
        a("L_hop4:")
        a("s_cbranch_execz L_back4")
    a("v_max_f32_dpp v%d, v%d, v%d row_ror:8 %s" % (vA, vA, vA, DPPF))
    rows_reduce("v_max_f32", vA, vB)
    a("v_sub_f32 v%d, v%d, v%d" % (vF, vMLi, vA))
    a("v_mul_f32 v%d, %s, v%d" % (vF, sC, vF))
    a("v_exp_f32 v%d, v%d" % (vF, vF))
    if "b" in rpos:
        get_o()
    a("v_mul_f32 v%d, v%d, abs(v%d)" % (vA, vF, vMLi + 1))
    for sh in (4, 8):
        a("v_add_f32_dpp v%d, v%d, v%d row_ror:%d %s" % (vA, vA, vA, sh, DPPF))
    if "c" in rpos:
        get_o()
    for i, swap in enumerate(("v_permlane16_swap_b32", "v_permlane32_swap_b32")):
        a("v_mov_b32 v%d, v%d" % (vB, vA))
        if "de"[i] in rpos:
            get_o()
        a("%s v%d, v%d" % (swap, vA, vB))
        a("v_add_f32 v%d, v%d, v%d" % (vA, vA, vB))
    a("v_rcp_f32 v%d, v%d" % (vA, vA))
    a("v_mul_f32 v%d, v%d, v%d" % (vF, vF, vA))
    if early:
        a("s_or_b64 exec, s[36:37], 1")
    a("L_o:")
    full_o()
    bound()
    a("s_waitcnt vmcnt(%d)" % (2 * rounds - 2))
    missing("vcc")
    a("s_nop 1")
    a("s_and_b64 exec, exec, vcc")
    a("s_cbranch_scc1 L_o")
    a("s_mov_b64 exec, -1")
    stamp_at(5)
    for r in range(0, 8, 2):
        a("v_pk_mul_f32 %s, %s, %s op_sel:[0,1] op_sel_hi:[1,1]"
          % (vr(vY + r, 2), vr(vX + r, 2), vr(vF - 1, 2)))
    for e in range(4):
        a("v_permlane32_swap_b32 v%d, v%d" % (vY + e, vY + 4 + e))
    for e in (0, 2):
        a("v_pk_add_f32 %s, %s, %s" % (vr(vY + e, 2), vr(vY + e, 2), vr(vY + 4 + e, 2)))
    for e in range(2):
        a("v_permlane16_swap_b32 v%d, v%d" % (vY + e, vY + 2 + e))
    a("v_pk_add_f32 %s, %s, %s" % (vr(vY, 2), vr(vY, 2), vr(vY + 2, 2)))
    a("s_cmp_lg_u64 s[10:11], 0")
    for sh in (4, 8):
        for x in (vY, vY + 1):
            a("v_add_f32_dpp v%d, v%d, v%d row_ror:%d %s" % (x, x, x, sh, DPPF))
    a("s_mov_b32 exec_lo, 0x000f000f")
    a("s_mov_b32 exec_hi, 0x000f000f")
    a("v_cvt_pk_bf16_f32 v%d, v%d, v%d" % (vY, vY, vY + 1))
    a("global_store_dword v%d, v%d, s[14:15]" % (vOut, vY))
    a("s_cbranch_scc1 L_help")
    a("L_fin:")
    if timed:
        a("s_waitcnt vmcnt(0)")
        stamp_at(6)
        a("s_mov_b64 exec, -1")
        a("ds_read_b32 v%d, v%d offset:8" % (vA, vCA))
        a("ds_read_b32 v%d, v%d offset:12" % (vB, vCA))
        a("s_waitcnt lgkmcnt(0)")
        a("v_readfirstlane_b32 s40, v%d" % vA)
        a("v_readfirstlane_b32 s44, v%d" % vB)
        a("s_nop 3")
    if stamp:
        a("s_getreg_b32 s54, hwreg(HW_REG_XCC_ID)")
        a("s_or_b32 s54, s54, %s" % sSlow)
        a("s_lshl_b32 %s, s2, 6" % sT1)
        a("s_add_u32 %s, %s, 0x200000" % (sT1, sT1))
        a("v_mov_b32 v%d, %s" % (vA, sT1))
        for i in range(8):
            a("v_mov_b32 v%d, s%d" % (vY + i, 40 + 2 * i))
        a("s_lshl_b32 %s, s2, 8" % sT1)
        a("s_add_u32 %s, %s, 0x300000" % (sT1, sT1))
        a("v_lshl_add_u32 v%d, v%d, 2, %s" % (vB, vLane, sT1))
        a("global_store_dword v%d, v%d, s[18:19]" % (vB, vSt))
        a("s_mov_b64 exec, 1")
        a("global_store_dwordx4 v%d, %s, s[18:19]" % (vA, vr(vY, 4)))
        a("global_store_dwordx4 v%d, %s, s[18:19] offset:16" % (vA, vr(vY + 4, 4)))
    if diagpad:
        def spin(label):
            a("%s:" % label)
            a("s_memrealtime s[58:59]")
            a("s_waitcnt lgkmcnt(0)")
            a("s_sub_u32 s58, s58, s40")
            a("s_cmp_lt_u32 s58, s56")
            a("s_cbranch_scc1 %s" % label)

        a("s_mov_b32 s56, %d" % (diagpad * 100))
        if diagg:
            lo, hi = int(diagg[1]), int(diagg[2])
            a("s_mov_b64 exec, 1")
            a("v_mov_b32 v%d, 120" % vA)
            a("v_mov_b32 v%d, s%d" % (vY, 40 + 2 * hi))
            a("v_mov_b32 v%d, s%d" % (vY + 1, 40 + 2 * lo))
            if diagg[0] in "mn":
                a("v_not_b32 v%d, v%d" % (vY + 1, vY + 1))
            if diagg[0] == "n":
                a("v_not_b32 v%d, v%d" % (vY, vY))
            a("global_atomic_umax v%d, v%d, s[16:17]" % (vA, vY))
            a("global_atomic_umax v%d, v%d, s[16:17] offset:4" % (vA, vY + 1))
        spin("L_pad")
        if diagg:
            a("global_load_dwordx2 %s, v%d, s[16:17] sc1" % (vr(vY, 2), vA))
            a("s_waitcnt vmcnt(0)")
            a("v_readfirstlane_b32 s10, v%d" % vY)
            a("v_readfirstlane_b32 s11, v%d" % (vY + 1))
            a("s_nop 3")
            if diagg[0] in "mn":
                a("s_not_b32 s11, s11")
            if diagg[0] == "n":
                a("s_not_b32 s10, s10")
            a("s_sub_u32 s10, s10, s11")
            a("s_sub_u32 s10, s10, %d" % (diagsub * 100))
            a("s_max_i32 s10, s10, 0")
            a("s_min_u32 s10, s10, 2000")
            a("s_mul_i32 s10, s10, 10")
            a("s_add_u32 s56, s56, s10")
            spin("L_pad2")
    a("s_endpgm")

    def count_in():
        a("; the barrier opens once the loader has ended, that is after its stores completed")
        a("s_waitcnt vmcnt(0)")
        a("s_barrier")
        a("s_mov_b64 exec, 1")
        a("v_mov_b32 v%d, 1" % vVal)
        a("global_atomic_add v%d, v%d, s[16:17]" % (vCntA, vVal))

    if flag:
        vFl = 42
        a("L_rank0:")
        a("s_add_u32 %s, s36, s2" % sT0)
        a("s_lshl_b64 exec, 1, %s" % sT0)
        a("s_lshr_b32 %s, s36, 6" % sT0)
        a("v_add3_u32 v%d, v%d, %s, 1" % (vB, vTwo, sT0))
        a("global_store_dword v%d, v%d, s[18:19] sc1" % (vTkA, vB))
        a("s_mov_b64 exec, -1")
        a("global_load_dword v%d, v%d, s[16:17] offset:%d nt" % (vPeer, vPeerA, DBG_PROG))
        a("s_waitcnt vmcnt(3)")
        a("s_branch L_ranked0")
        a("L_rank1:")
        a("s_lshl_b64 exec, 0xff, s36")
        a("global_load_dword v%d, v%d, s[18:19] sc1" % (vFl, vTkA))
        a("s_mov_b64 exec, -1")
        a("global_load_dword v%d, v%d, s[16:17] offset:%d nt" % (vPeer2, vPeerA, DBG_PROG))
        a("s_waitcnt vmcnt(3)")
        a("s_branch L_ranked1")
        a("L_count:")
        a("s_lshl_b64 exec, 0xff, s36")
        a("s_lshr_b32 %s, s36, 6" % sT0)
        a("v_sub_u32 v%d, v%d, v%d" % (vB, vFl, vTwo))
        a("v_cmp_lt_u32 vcc, %s, v%d" % (sT0, vB))
        a("s_mov_b64 exec, -1")
        a("s_add_u32 s36, s36, 8")
        a("s_bcnt1_i32_b64 %s, vcc" % sT0)
        a("s_lshl_b32 %s, %s, 1" % (sT0, sT0))
        a("v_mov_b32 v%d, %s" % (vTk, sT0))
        a("s_branch L_counted")
    else:
        a("; arrival order of the eight workgroup groups at a checkpoint, in steps of 2")
        a("L_rank0:")
        a("global_atomic_add v%d, v%d, v%d, s[16:17] sc0" % (vTk, vTkA, vTwo))
        a("v_add_u32 v%d, 4, v%d" % (vTkA, vTkA))
        a("s_mov_b64 exec, -1")
        a("global_load_dword v%d, v%d, s[16:17] offset:%d nt" % (vPeer, vPeerA, DBG_PROG))
        a("s_waitcnt vmcnt(3)")
        a("s_branch L_ranked0")

    a("L_help:")
    a("s_cmp_lg_u32 %s, 0" % sSlow)
    a("s_cbranch_scc1 L_fin")
    count_in()
    a("s_branch L_fin")

    a("L_slow:")
    a("s_barrier")
    pub_ml("sc1")
    count_in()
    a("L_cnt:")
    bound()
    a("global_load_dword v%d, v%d, s[16:17] sc1" % (vPeer, vCntA))
    a("s_waitcnt vmcnt(0)")
    a("v_readfirstlane_b32 %s, v%d" % (sT0, vPeer))
    a("s_nop 1")
    a("s_cmp_ge_u32 %s, %d" % (sT0, S))
    a("s_cbranch_scc0 L_cnt")
    a("s_mov_b64 exec, -1")
    if early:
        get_ml()
        full_o()
        a("s_branch L_first")
    a("L_ml_again:")
    get_ml()
    bound()
    a("s_waitcnt vmcnt(0)")
    a("s_branch L_ml")

    vSt, vRdK, vLane, vRd, vMX, vMY, vWM, vNmc, vA, vB, vWO0, vWO1, vWL = range(1, 14)
    vM, vL = 14, 15
    vQ, vO, vT, vXY, vD, vK, vVt, vS = 16, 20, 28, 30, 40, 56, 72, 76
    sI, sOwn, sMask = "s21", "s36", "s35"
    NT = G // 2

    def fold(part, t, da, db):
        src, own, ror, bank = ((da + 1, da, 12, 1), (da + 3, da + 2, 12, 4),
                               (db, db + 1, 4, 2), (db + 2, db + 3, 4, 8))[part]
        a("v_add_f32_dpp v%d, v%d, v%d row_ror:%d row_mask:0xf bank_mask:0x%x"
          % (t, src, own, ror, bank))

    def fold_c(t):
        a("v_add_f32_dpp v%d, v%d, v%d row_ror:8 %s" % (t, t, t, DPPF))

    def advance(rd):
        a("v_add_u32 v%d, %d, v%d" % (rd, N * 1024, rd))
        a("v_and_b32 v%d, %d, v%d" % (rd, RING - 1, rd))

    a("L_cons:")
    a("s_load_dwordx2 s[4:5], s[0:1], 0            ; q")
    a("s_load_dwordx4 s[8:11], s[0:1], 24")
    a("v_and_b32 v%d, 63, v0" % vLane)
    a("s_lshr_b32 %s, %s, 6" % (sW, sW))
    a("s_sub_u32 %s, %s, 1" % (sW, sW))
    a("s_mov_b32 %s, %s" % (sC, f32(CS)))
    a("; QK^T operands: A row = (key, quarter), B column = (quarter, head), lane>>4 = 64-byte block")
    a("v_lshrrev_b32 v%d, 4, v%d" % (vA, vLane))
    a("v_lshlrev_b32 v%d, 6, v%d" % (vA, vA))
    a("v_and_b32 v%d, 3, v%d" % (vB, vLane))
    a("v_bfe_u32 v%d, v%d, 2, 2" % (vWM, vLane))
    a("v_lshl_add_u32 v%d, v%d, 4, v%d" % (vNmc, vB, vA))
    a("v_lshl_add_u32 v%d, v%d, 8, v%d" % (vRdK, vWM, vNmc))
    a("v_lshl_add_u32 v%d, v%d, 8, v%d" % (vA, vB, vA))
    a("v_lshl_add_u32 v%d, v%d, 4, v%d" % (vA, vWM, vA))
    a("v_lshlrev_b32 v%d, 4, v%d" % (vRd, vLane))
    a("s_lshl_b32 %s, %s, 10" % (sT0, sP))
    a("s_lshl_b32 %s, %s, 8" % (sT1, sP))
    a("v_add_u32 v%d, %s, v%d" % (vA, sT0, vA))
    a("v_add_u32 v%d, %s, v%d" % (vNmc, sT1, vNmc))
    a("v_and_b32 v%d, 0xf0, v%d" % (vB, vRd))
    a("v_add_u32 v%d, %s, v%d" % (vB, sT1, vB))
    for r in range(4):
        a("v_mov_b32 v%d, 0" % (vVt + r))
    a("s_or_b32 %s, %s, %s" % (sOwn, sS, sW))
    a("s_waitcnt lgkmcnt(0)")
    if lazy:
        a("s_barrier")
    a("global_load_dwordx4 %s, v%d, s[4:5]" % (vr(vQ, 4), vA))
    a("s_cbranch_scc1 L_notree")
    a("global_load_dwordx4 %s, v%d, s[8:9]" % (vr(vK, 4), vNmc))
    a("global_load_dwordx4 %s, v%d, s[10:11]" % (vr(vVt, 4), vB))
    a("s_load_dword %s, s[12:13], 0" % sMask)
    a("L_notree:")
    if warm:
        a("; fetch code that first runs late, one region per wave")
        a("s_mov_b64 exec, 0")
        for c in range(C - 1):
            a("s_cmp_eq_u32 %s, %d" % (sW, c))
            a("s_cbranch_scc1 L_hop%d" % c)
        a("s_branch L_hop3")
        a("L_back:")
        a("s_mov_b64 exec, -1")
    a("s_lshl_b32 %s, %s, 10" % (sT0, sW))
    a("v_and_b32 v%d, 32, v%d" % (vA, vLane))
    a("v_lshlrev_b32 v%d, 2, v%d" % (vA, vA))
    a("v_xor_b32 v%d, v%d, v%d" % (vRd, vRd, vA))
    a("v_add_u32 v%d, %s, v%d" % (vRd, sT0, vRd))
    a("v_and_b32 v%d, 8, v%d" % (vA, vLane))
    a("v_lshlrev_b32 v%d, 4, v%d" % (vA, vA))
    a("v_xor_b32 v%d, v%d, v%d" % (vRdK, vRdK, vA))
    a("v_add_u32 v%d, %s, v%d" % (vRdK, sT0, vRdK))
    a("s_lshl_b32 %s, %s, 8" % (sT0, sW))
    a("s_add_u32 %s, %s, %d" % (sT0, sT0, ldsL))
    a("v_lshl_add_u32 v%d, v%d, 2, %s" % (vWL, vLane, sT0))
    a("v_and_b32 v%d, 3, v%d" % (vWM, vLane))
    a("v_lshlrev_b32 v%d, 4, v%d" % (vWM, vWM))
    a("v_add_u32 v%d, %d, v%d" % (vWM, ldsM, vWM))
    a("v_bfe_u32 v%d, v%d, 4, 1" % (vA, vLane))
    a("v_bfe_u32 v%d, v%d, 5, 1" % (vB, vLane))
    a("v_lshl_add_u32 v%d, v%d, 1, v%d" % (vA, vA, vB))
    a("v_and_b32 v%d, 15, v%d" % (vB, vLane))
    a("v_lshl_add_u32 v%d, v%d, 2, v%d" % (vA, vB, vA))
    a("s_lshl_b32 %s, %s, 11" % (sT0, sW))
    a("s_add_u32 %s, %s, %d" % (sT0, sT0, ldsO))
    a("v_lshl_add_u32 v%d, v%d, 2, %s" % (vWO0, vA, sT0))
    a("v_xor_b32 v%d, 0x80, v%d" % (vWO1, vWO0))
    a("; PV operand masks: A row = (element of a 4-column group, head) keeps one bf16 of p")
    a("v_and_b32 v%d, 8, v%d" % (vA, vLane))
    a("v_lshlrev_b32 v%d, 1, v%d" % (vA, vA))
    a("v_mov_b32 v%d, 0xffff" % vB)
    a("v_lshlrev_b32 v%d, v%d, v%d" % (vA, vA, vB))
    a("v_bfe_i32 v%d, v%d, 2, 1" % (vB, vLane))
    a("v_and_b32 v%d, v%d, v%d" % (vMY, vA, vB))
    a("v_xor_b32 v%d, v%d, v%d" % (vMX, vA, vMY))
    a("v_mov_b32 v%d, 0xff800000" % vM)
    a("v_mov_b32 v%d, v%d" % (vSt, vM))
    a("s_mov_b32 %s, 0" % sI)
    a("s_cmp_lg_u32 %s, 0" % sOwn)
    a("s_barrier")
    a("s_waitcnt vmcnt(0) lgkmcnt(0)")
    a("s_cbranch_scc1 L_k_in")
    a("v_mfma_f32_16x16x32_bf16 %s, %s, %s, 0" % (vr(vD, 4), vr(vK, 4), vr(vQ, 4)))
    a("s_lshr_b32 %s, %s, 3" % (sT0, sP))
    a("s_lshl_b32 %s, %s, 4" % (sT0, sT0))
    a("s_lshr_b32 %s, %s, %s" % (sMask, sMask, sT0))
    a("s_lshl_b32 %s, %s, 16" % (sMask, sMask))
    a("v_mov_b32 v%d, %s" % (vA, sMask))
    a("v_sub_f32 v%d, 1.0, v%d" % (vA, vA))
    a("v_mul_f32 v%d, %s, v%d           ; (1 - mask) * -1e9 / scale" % (vA, f32(-1e9 * 128 ** 0.5), vA))
    for part in range(4):
        fold(part, vM, vD, vD)
    fold_c(vM)
    a("v_add_f32 v%d, v%d, v%d" % (vM, vM, vA))
    a("s_mov_b64 exec, 0xffff")
    a("v_mov_b32 v%d, v%d" % (vSt, vM))
    a("s_mov_b64 exec, -1")
    a("s_branch L_k_in")

    a("; scores of all keys into v[%d:%d], running per-lane max" % (vS, vS + 63))
    a("L_k:")
    l0 = a.mark()
    a("s_barrier")
    a("L_k_in:")
    for j in range(G):
        a("ds_read_b128 %s, v%d offset:%d" % (vr(vK + 4 * j, 4), vRdK, j * 4096))
    advance(vRdK)
    for j in range(G):
        a("s_waitcnt lgkmcnt(%d)" % (G - 1 - j))
        a("v_mfma_f32_16x16x32_bf16 %s, %s, %s, 0"
          % (vr(vD + 4 * j, 4), vr(vK + 4 * j, 4), vr(vQ, 4)))
    for part in range(4):
        for i in range(NT):
            fold(part, vT + i, vD + 8 * i, vD + 8 * i + 4)
    for i in range(NT):
        fold_c(vT + i)
    a("s_set_gpr_idx_on %s, gpr_idx(DST)" % sI)
    for i in range(NT):
        a("v_mov_b32 v%d, v%d" % (vS + i, vT + i))
    a("s_set_gpr_idx_off")
    a("v_max3_f32 v%d, v%d, v%d, v%d" % (vM, vM, vT, vT + 1))
    a("s_add_u32 %s, %s, %d" % (sI, sI, NT))
    a("s_cmp_lt_u32 %s, 64" % sI)
    a("s_cbranch_scc1 L_k")
    a.loop_check(l0)

    def prep():
        a("s_set_gpr_idx_on %s, gpr_idx(SRC0)" % sI)
        for i in range(NT):
            a("v_mov_b32 v%d, v%d" % (vT + i, vS + i))
        a("s_set_gpr_idx_off")
        for i in range(NT):
            a("v_fma_f32 v%d, v%d, %s, v%d" % (vT + i, vT + i, sC, vNmc))
        for i in range(NT):
            a("v_exp_f32 v%d, v%d" % (vT + i, vT + i))
        a("s_add_u32 %s, %s, %d" % (sI, sI, NT))
        a("s_cmp_lt_u32 %s, %d" % (sI, 64 - NT))
        for i in range(NT):
            a("v_add_f32 v%d, v%d, v%d" % (vL, vL, vT + i))
        for i in range(NT):
            a("v_cvt_pk_bf16_f32 v%d, v%d, v%d" % (vT + i, vT + i, vT + i))
        for i in range(NT):
            x, p = vXY + 4 * i, vT + i
            a("v_and_b32 v%d, v%d, v%d" % (x, p, vMX))
            a("v_and_b32 v%d, v%d, v%d" % (x + 3, p, vMY))
            a("v_and_b32_dpp v%d, v%d, v%d row_ror:4 %s" % (x + 1, p, vMY, DPPF))
            a("v_and_b32_dpp v%d, v%d, v%d row_ror:4 %s" % (x + 2, p, vMX, DPPF))

    def pv(js, adv):
        for j in js:
            a("ds_read_b128 %s, v%d offset:%d" % (vr(vK + 4 * j, 4), vRd, j * 4096))
        if adv:
            advance(vRd)
        for j in js:
            a("s_waitcnt lgkmcnt(%d)" % (js[-1] - j))
            for k in range(2):
                a("v_mfma_f32_16x16x16_bf16 %s, %s, %s, %s"
                  % (vr(vO + 4 * k, 4), vr(vXY + 2 * j, 2), vr(vK + 4 * j + 2 * k, 2),
                     vr(vO + 4 * k, 4)))

    a("v_max_f32_dpp v%d, v%d, v%d row_ror:4 %s" % (vM, vM, vM, DPPF))
    rows_reduce("v_max_f32", vM, vB)
    a("v_lshl_add_u32 v%d, %s, 2, v%d" % (vA, sW, vWM))
    a("ds_write_b32 v%d, v%d" % (vA, vM))
    a("s_mov_b32 %s, 0" % sI)
    a("s_waitcnt lgkmcnt(0)")
    a("s_barrier")
    a("ds_read_b128 %s, v%d" % (vr(vD, 4), vWM))
    a("s_waitcnt lgkmcnt(0)")
    a("v_max3_f32 v%d, v%d, v%d, v%d" % (vM, vD, vD + 1, vD + 2))
    a("v_max_f32 v%d, v%d, v%d" % (vM, vM, vD + 3))
    a("v_mul_f32 v%d, %s, v%d" % (vNmc, f32(-CS), vM))
    a("v_fma_f32 v%d, v%d, %s, v%d" % (vA, vSt, sC, vNmc))
    a("v_exp_f32 v%d, v%d" % (vA, vA))
    a("v_cmp_ne_u32 vcc, 0, v%d" % vMX)
    a("v_cvt_pk_bf16_f32 v%d, v%d, v%d" % (vB, vA, vA))
    a("v_and_b32 v%d, v%d, v%d" % (vXY, vB, vMX))
    a("v_and_b32 v%d, v%d, v%d" % (vXY + 1, vB, vMY))
    a("v_cndmask_b32 v%d, 0, v%d, vcc" % (vL, vA))
    for k in range(2):
        a("v_mfma_f32_16x16x16_bf16 %s, %s, %s, 0"
          % (vr(vO + 4 * k, 4), vr(vXY, 2), vr(vVt + 2 * k, 2)))
    prep()
    e0 = a.mark()
    a("s_branch L_v_in")
    if warm:
        a("L_hop3:")
        a("s_branch %s" % ("L_hop5" if warm == 2 else "L_back"))

    a("L_v:")
    l0 = a.mark()
    prep()
    a("s_barrier")
    a("L_v_in:")
    e1 = a.mark()
    pv(list(range(G)), True)
    a("s_cbranch_scc1 L_v")
    a.loop_check(l0)
    a.edge_check(e0, e1)
    prep()
    a("ds_write_b32 v%d, v%d" % (vWL, vL))
    a("s_waitcnt lgkmcnt(0)")
    a("s_barrier")
    pv(list(range(G - 1)), False)
    a("s_barrier")
    pv([G - 1], False)
    for r in range(8):
        a("ds_write_b32 v%d, v%d offset:%d"
          % (vWO1 if r >= 4 else vWO0, vO + r, (r % 4) * 512 + (r // 4) * 256))
    a("s_waitcnt lgkmcnt(0)")
    a("s_barrier")
    a("L_last:")
    a("s_endpgm")
    if wake:
        a(".fill 7000, 4, 0xbf810000")

    nvg = max(a.max_v(), vS + 64)
    acc = (nvg + 3) // 4 * 4
    out = HEADER
    out += "; @launch grid=(%d,1,1) block=(%d,1,1) lds=%d\n" % (NWG, 64 * (C + 2), LDS)
    out += DOC
    out += '.amdgcn_target "amdgcn-amd-amdhsa--gfx950"\n.text\n'
    out += ".globl %s_kernel\n.p2align 8\n.type %s_kernel,@function\n" % (NAME, NAME)
    out += a.text()
    out += """.section .rodata,"a"
.p2align 6
.amdhsa_kernel %s_kernel
  .amdhsa_next_free_vgpr %d
  .amdhsa_next_free_sgpr 64
  .amdhsa_accum_offset %d
  .amdhsa_group_segment_fixed_size 0
  .amdhsa_kernarg_size 72
  .amdhsa_user_sgpr_count 2
  .amdhsa_user_sgpr_kernarg_segment_ptr 1
  .amdhsa_system_sgpr_workgroup_id_x 1
.end_amdhsa_kernel
""" % (NAME, nvg, acc)
    return out


if __name__ == "__main__":
    kw = {}
    for arg in sys.argv[2:]:
        k, v = arg.split("=")
        kw[k] = int(v) if v.lstrip("-").isdigit() else v
    open(sys.argv[1], "w").write(gen(**kw))
```
